```python
import torch

def _softmax(x, axis=-1):
    return torch.softmax(x, dim=axis)
def _gelu(x):
    return torch.nn.functional.gelu(x, approximate="tanh")
def _silu(x):
    return torch.nn.functional.silu(x)
def _sigmoid(x):
    return torch.sigmoid(x)
def _layernorm(x, axis=-1, eps=1e-5):
    m = x.mean(dim=axis, keepdim=True)
    v = x.var(dim=axis, keepdim=True, unbiased=False)
    return (x - m) / torch.sqrt(v + eps)
def _scatter_add(tgt, idx, src, axis=0):
    return tgt.clone().index_add_(axis, idx, src)
def _segment_sum(src, seg, n):
    out = torch.zeros((n,) + src.shape[1:], dtype=src.dtype)
    return out.index_add_(0, seg, src)
def _pad(x, pw):
    flat = tuple(v for pair in reversed(pw) for v in pair)
    return torch.nn.functional.pad(x, flat)

kernel_name = 'gated_mix__gqa_block_cached__glu_gated_glu__decode'

def setup_inputs():

    _w = (lambda a: (lambda t: t.to(torch.bfloat16) if t.is_floating_point() else t)(torch.as_tensor(a)))
    def _A_setup():
        B, Sq, D = 4, 1, 512
        Hq, Hkv, Sk, Dh = 32, 8, 8192, 128
        assert Hq % Hkv == 0, (Hq, Hkv)
        return {
            "x": _w((lambda *s: torch.randn(*s, dtype=torch.bfloat16) * 0.05)(B, Sq, D)),
            "k_cache": _w((lambda *s: torch.randn(*s, dtype=torch.bfloat16) * 6.4)(B, Hkv, Sk, Dh)),
            "v_cache": _w((lambda *s: torch.randn(*s, dtype=torch.bfloat16) * 3.2)(B, Hkv, Sk, Dh)),
            "wq": _w((lambda *s: torch.randn(*s, dtype=torch.bfloat16) * 6.4)(D, Hq * Dh) * (D ** -0.5)),
            "wo": _w((lambda *s: torch.randn(*s, dtype=torch.bfloat16) * 3.2)(Hq * Dh, D) * ((Hq * Dh) ** -0.5)),
        }
    _A_in = _A_setup()

    def _B_setup():
        B, S, D, F = 4, 1, 512, 1792
        return {
            "x": _w((lambda *s: torch.randn(*s, dtype=torch.bfloat16) * 0.05)(B, S, D)),
            "w_gate": _w((lambda *s: torch.randn(*s, dtype=torch.bfloat16) * 3.2)(D, F)),
            "w_up": _w((lambda *s: torch.randn(*s, dtype=torch.bfloat16) * 0.2)(D, F)),
            "w_down": _w((lambda *s: torch.randn(*s, dtype=torch.bfloat16) * 0.2)(F, D)),
        }
    _B_in = _B_setup()

    return {
        "A_x": _A_in["x"],
        "A_k_cache": _A_in["k_cache"],
        "A_v_cache": _A_in["v_cache"],
        "A_wq": _A_in["wq"],
        "A_wo": _A_in["wo"],
        "B_x": _B_in["x"],
        "B_w_gate": _B_in["w_gate"],
        "B_w_up": _B_in["w_up"],
        "B_w_down": _B_in["w_down"],
        "gate_w": _w((lambda *s: torch.randn(*s, dtype=torch.bfloat16) * 0.05)(512) * 16.0),
    }

def reference(A_x, A_k_cache, A_v_cache, A_wq, A_wo, B_x, B_w_gate, B_w_up, B_w_down, gate_w):
    def _A_ref(x, k_cache, v_cache, wq, wo):
        B, Sq, D = x.shape
        Hq, Dh = 32, 128
        Hkv = k_cache.shape[1]
        rep = Hq // Hkv
        q = (lambda x, *d: x.permute(*d))((x @ wq).reshape(B, Sq, Hq, Dh), 0, 2, 1, 3)
        k = (lambda x, n, axis: torch.repeat_interleave(x, n, dim=axis))(k_cache, rep, axis=1)
        v = (lambda x, n, axis: torch.repeat_interleave(x, n, dim=axis))(v_cache, rep, axis=1)
        scores = torch.einsum("bhqd,bhkd->bhqk", q, k) * (Dh ** -0.5)
        p = _softmax(scores, axis=-1)
        o = torch.einsum("bhqk,bhkd->bhqd", p, v)
        return (lambda x, *d: x.permute(*d))(o, 0, 2, 1, 3).reshape(B, Sq, Hq * Dh) @ wo

    def _B_ref(x, w_gate, w_up, w_down):
        g = torch.einsum("bsd,df->bsf", x, w_gate)
        u = torch.einsum("bsd,df->bsf", x, w_up)
        h = _sigmoid(g) * u
        return torch.einsum("bsf,fd->bsd", h, w_down)

    x = A_x
    g = _sigmoid((x * gate_w).sum(-1, keepdims=True))
    a = _A_ref(x, A_k_cache, A_v_cache, A_wq, A_wo)
    b = _B_ref(x, B_w_gate, B_w_up, B_w_down)
    return g * a + (1 - g) * b
```

```python
import sys
NAME = "gated_mix__gqa_block_cached__glu_gated_glu__decode"
out = []
def E(s=""): out.append(s)

P1 = 0x0
GOFF = 0x80000
AO = 0x100000
AML = 0x180000
CP = 0x200000
WS_BYTES = 0x10000000

HEADER = open("cdna_kernels/" + NAME + ".s.ref").read().split("; Override launch")[0]

def srd(d, b, nbytes):
    E(f"  s_mov_b32 s{d}, s{b}")
    E(f"  s_and_b32 s{d+1}, s{b+1}, 0xffff")
    E(f"  s_mov_b32 s{d+2}, {nbytes:#x}")
    E(f"  s_mov_b32 s{d+3}, 0x00020000")

def kstart(name):
    E(f".globl {name}")
    E(".p2align 8")
    E(f".type {name},@function")
    E(f"{name}:")

def kdesc(name, vgpr, sgpr=102):
    E(".section .rodata,\"a\"")
    E(".p2align 6")
    E(f".amdhsa_kernel {name}")
    E(f"  .amdhsa_next_free_vgpr {vgpr}")
    E(f"  .amdhsa_next_free_sgpr {sgpr}")
    E(f"  .amdhsa_accum_offset {(vgpr+3)//4*4}")
    E("  .amdhsa_group_segment_fixed_size 0")
    E("  .amdhsa_kernarg_size 104")
    E("  .amdhsa_user_sgpr_count 2")
    E("  .amdhsa_user_sgpr_kernarg_segment_ptr 1")
    E("  .amdhsa_system_sgpr_workgroup_id_x 1")
    E(".end_amdhsa_kernel")
    E(".text")

def gemv_block(W, A, T, ACC, SELLO, SELHI, first=True):
    def perms(j):
        c = j >> 1
        sel = SELHI if (j & 1) else SELLO
        t = T + 4 * (j & 1)
        for i in range(4):
            E(f"  v_perm_b32 v{t+i}, v{W+4*(2*i+1)+c}, v{W+4*(2*i)+c}, s{sel}")
    def mfma(j):
        t = T + 4 * (j & 1)
        a = ACC + 4 * j
        c = "0" if first else f"v[{a}:{a+3}]"
        E(f"  v_mfma_f32_16x16x32_bf16 v[{a}:{a+3}], v[{A}:{A+3}], v[{t}:{t+3}], {c}")
    perms(0)
    for j in range(8):
        if j + 1 < 8:
            perms(j + 1)
        else:
            E("  s_nop 1")
        mfma(j)

def kernelA():
    kstart("kA_kernel")
    E("  s_cmp_ge_u32 s2, 241")
    E("  s_cbranch_scc1 kA_end")
    E("  s_load_dwordx2 s[4:5], s[0:1], 0")
    E("  s_load_dwordx2 s[6:7], s[0:1], 24")
    E("  s_load_dwordx2 s[8:9], s[0:1], 48")
    E("  s_load_dwordx2 s[10:11], s[0:1], 56")
    E("  s_load_dwordx2 s[12:13], s[0:1], 72")
    E("  s_load_dwordx2 s[14:15], s[0:1], 96")
    E("  v_and_b32 v1, 63, v0")
    E("  v_lshrrev_b32 v2, 6, v0")
    E("  v_lshrrev_b32 v3, 4, v1")
    E("  v_readfirstlane_b32 s16, v2")
    E("  v_and_b32 v4, 15, v1")
    E("  s_mov_b32 s44, 0x05040100")
    E("  s_mov_b32 s45, 0x07060302")
    E("  s_waitcnt lgkmcnt(0)")
    srd(20, 4, 4096)
    srd(24, 14, WS_BYTES)
    E("  s_cmp_eq_u32 s2, 240")
    E("  s_cbranch_scc1 kA_gate")
    E("  s_lshr_b32 s17, s2, 2")
    E("  s_and_b32 s18, s2, 3")
    E("  s_mov_b32 s28, s6")
    E("  s_mov_b32 s29, s7")
    E("  s_mov_b32 s30, 0x400000")
    E("  s_mov_b32 s19, 8192")
    E("  s_mov_b32 s32, s17")
    E("  s_cmp_ge_u32 s17, 32")
    E("  s_cselect_b32 s28, s8, s28")
    E("  s_cselect_b32 s29, s9, s29")
    E("  s_cselect_b32 s30, 0x1c0000, s30")
    E("  s_cselect_b32 s19, 3584, s19")
    E("  s_cselect_b32 s33, 32, 0")
    E("  s_cmp_ge_u32 s17, 46")
    E("  s_cselect_b32 s28, s10, s28")
    E("  s_cselect_b32 s29, s11, s29")
    E("  s_cselect_b32 s33, 46, s33")
    E("  s_sub_u32 s32, s17, s33")
    E("  s_and_b32 s29, s29, 0xffff")
    E("  s_mov_b32 s31, 0x00020000")
    E("  s_lshl_b32 s34, s18, 7")
    E("  s_lshl_b32 s35, s16, 5")
    E("  s_add_u32 s34, s34, s35")
    E("  v_lshlrev_b32 v5, 3, v3")
    E("  v_add_u32 v5, s34, v5")
    E("  v_and_b32 v6, 3, v4")
    E("  v_lshlrev_b32 v6, 10, v6")
    E("  v_lshl_add_u32 v6, v5, 1, v6")
    E("  buffer_load_dwordx4 v[8:11], v6, s[20:23], 0 offen")
    E("  v_mul_lo_u32 v7, v5, s19")
    E("  s_lshl_b32 s36, s32, 8")
    E("  v_lshl_add_u32 v7, v4, 4, v7")
    E("  v_add_u32 v7, s36, v7")
    E("  s_mov_b32 s37, 0")
    for kk in range(8):
        E(f"  buffer_load_dwordx4 v[{16+4*kk}:{19+4*kk}], v7, s[28:31], s37 offen")
        if kk < 7: E("  s_add_u32 s37, s37, s19")
    E("  s_waitcnt vmcnt(0)")
    gemv_block(16, 8, 48, 64, 44, 45)
    E("  s_lshl_b32 s38, s16, 11")
    E("  v_lshlrev_b32 v5, 7, v4")
    E("  v_add_u32 v5, s38, v5")
    E("  v_cmp_gt_u32 vcc, 16, v1")
    E("  s_nop 4")
    E("  s_and_saveexec_b64 s[40:41], vcc")
    for j in range(8):
        E(f"  ds_write_b128 v5, v[{64+4*j}:{67+4*j}] offset:{16*j}")
    E("  s_mov_b64 exec, s[40:41]")
    E("  s_waitcnt lgkmcnt(0)")
    E("  s_barrier")
    E("  v_lshlrev_b32 v5, 3, v0")
    for w in range(4):
        E(f"  ds_read_b64 v[{8+2*w}:{9+2*w}], v5 offset:{2048*w}")
    E("  s_mul_i32 s38, s18, 122880")
    E("  s_lshl_b32 s39, s17, 9")
    E("  s_add_u32 s38, s38, s39")
    E("  v_and_b32 v6, 1, v0")
    E("  v_mul_u32_u24 v6, 61440, v6")
    E("  v_lshrrev_b32 v7, 1, v0")
    E("  v_lshl_add_u32 v6, v7, 2, v6")
    E("  v_add_u32 v7, 30720, v6")
    E("  s_waitcnt lgkmcnt(0)")
    E("  v_add_f32 v8, v8, v10")
    E("  v_add_f32 v9, v9, v11")
    E("  v_add_f32 v12, v12, v14")
    E("  v_add_f32 v13, v13, v15")
    E("  v_add_f32 v8, v8, v12")
    E("  v_add_f32 v9, v9, v13")
    E("  buffer_store_dword v8, v6, s[24:27], s38 offen")
    E("  buffer_store_dword v9, v7, s[24:27], s38 offen")
    E("  s_endpgm")
    E("kA_gate:")
    srd(28, 12, 1024)
    E("  v_lshlrev_b32 v5, 4, v1")
    E("  s_lshl_b32 s34, s16, 10")
    E("  buffer_load_dwordx4 v[8:11], v5, s[20:23], s34 offen")
    E("  buffer_load_dwordx4 v[12:15], v5, s[28:31], 0 offen")
    E("  s_waitcnt vmcnt(0)")
    E("  v_mov_b32 v20, 0")
    for c in range(4):
        E(f"  v_lshlrev_b32 v16, 16, v{8+c}")
        E(f"  v_lshlrev_b32 v17, 16, v{12+c}")
        E(f"  v_and_b32 v18, 0xffff0000, v{8+c}")
        E(f"  v_and_b32 v19, 0xffff0000, v{12+c}")
        E("  v_fmac_f32 v20, v16, v17")
        E("  v_fmac_f32 v20, v18, v19")
    for r in (8, 4, 2, 1):
        E("  s_nop 1")
        E(f"  v_add_f32_dpp v20, v20, v20 row_ror:{r} row_mask:0xf bank_mask:0xf")
    E("  v_mov_b32 v21, v20")
    E("  s_nop 1")
    E("  v_permlane16_swap_b32 v20, v21")
    E("  v_add_f32 v20, v20, v21")
    E("  v_mov_b32 v21, v20")
    E("  s_nop 1")
    E("  v_permlane32_swap_b32 v20, v21")
    E("  v_add_f32 v20, v20, v21")
    E("  v_mul_f32 v20, 0xbfb8aa3b, v20")
    E("  v_exp_f32 v20, v20")
    E("  s_nop 0")
    E("  v_add_f32 v20, 1.0, v20")
    E("  v_rcp_f32 v20, v20")
    E("  s_lshl_b32 s34, s16, 2")
    E(f"  s_add_u32 s34, s34, {GOFF:#x}")
    E("  v_mov_b32 v5, 0")
    E("  v_cmp_eq_u32 vcc, 0, v1")
    E("  s_nop 1")
    E("  s_and_saveexec_b64 s[40:41], vcc")
    E("  buffer_store_dword v20, v5, s[24:27], s34 offen")
    E("kA_end:")
    E("  s_endpgm")
    kdesc("kA_kernel", 96)

def kernelB():
    KR = 0
    VR = 128
    SR = 192
    QR = 224
    M = 240
    kstart("kB_kernel")
    E("  s_cmp_ge_u32 s2, 256")
    E("  s_cbranch_scc1 kB_end")
    E("  s_load_dwordx2 s[4:5], s[0:1], 8")
    E("  s_load_dwordx2 s[6:7], s[0:1], 16")
    E("  s_load_dwordx2 s[14:15], s[0:1], 96")
    tid, lane, g, n = M, M+1, M+2, M+3
    E(f"  v_mov_b32 v{tid}, v0")
    E(f"  v_and_b32 v{lane}, 63, v0")
    E(f"  v_lshrrev_b32 v{M+4}, 6, v0")
    E(f"  v_lshrrev_b32 v{g}, 4, v{lane}")
    E(f"  v_readfirstlane_b32 s16, v{M+4}")
    E(f"  v_and_b32 v{n}, 15, v{lane}")
    E("  s_mov_b32 s44, 0x05040100")
    E("  s_mov_b32 s45, 0x07060302")
    E("  s_lshr_b32 s17, s2, 3")
    E("  s_and_b32 s18, s2, 7")
    E("  s_lshr_b32 s19, s17, 3")
    E("  s_and_b32 s32, s17, 7")
    E("  s_mul_i32 s33, s19, 30720")
    E("  s_lshl_b32 s34, s32, 11")
    E("  s_add_u32 s33, s33, s34")
    E("  s_lshl_b32 s35, s17, 21")
    E("  s_lshl_b32 s36, s18, 18")
    E("  s_add_u32 s35, s35, s36")
    E("  s_lshl_b32 s36, s16, 15")
    E("  s_add_u32 s35, s35, s36")
    vq, vk, vv = M+5, M+6, M+7
    E(f"  v_lshlrev_b32 v{vq}, 2, v{tid}")
    E(f"  v_lshlrev_b32 v{vk}, 8, v{n}")
    E(f"  v_lshl_add_u32 v{vk}, v{g}, 4, v{vk}")
    E(f"  v_lshlrev_b32 v{vv}, 10, v{g}")
    E(f"  v_lshl_add_u32 v{vv}, v{n}, 4, v{vv}")
    E("  s_waitcnt lgkmcnt(0)")
    srd(20, 4, 0x4000000)
    srd(24, 6, 0x4000000)
    srd(28, 14, WS_BYTES)
    q = []
    def ld(name): q.append(name)
    def wait_for(name):
        idx = max(i for i, x in enumerate(q) if x == name)
        nleft = len(q) - 1 - idx
        E(f"  s_waitcnt vmcnt({nleft})")
        del q[:idx+1]
    for ks in range(4):
        E(f"  buffer_load_dword v{M+8+ks}, v{vq}, s[28:31], s33 offen")
        ld("q")
        if ks < 3: E("  s_add_u32 s33, s33, 122880")
    def kload(t):
        E(f"  s_add_u32 s37, s35, {t*4096}")
        for j in range(4):
            r = KR + 16*t + 4*j
            E(f"  buffer_load_dwordx4 v[{r}:{r+3}], v{vk}, s[20:23], s37 offen offset:{64*j}")
            ld(f"k{t}")
    def vload(t, base):
        for half in range(2):
            E(f"  s_add_u32 s37, s35, {t*8192+half*4096}")
            for k4 in range(4):
                r = base + 4*(half*4+k4)
                E(f"  buffer_load_dwordx4 v[{r}:{r+3}], v{vv}, s[24:27], s37 offen offset:{256*k4}")
                ld(f"v{t}")
    for t in range(8): kload(t)
    vload(0, VR); vload(1, VR+32)
    wait_for("q")
    E(f"  v_add_f32 v{M+8}, v{M+8}, v{M+9}")
    E(f"  v_add_f32 v{M+10}, v{M+10}, v{M+11}")
    E(f"  v_add_f32 v{M+8}, v{M+8}, v{M+10}")
    E(f"  v_cvt_pk_bf16_f32 v{M+8}, v{M+8}, v{M+8}")
    E(f"  v_lshlrev_b32 v{M+9}, 1, v{tid}")
    E(f"  ds_write_b16 v{M+9}, v{M+8}")
    E(f"  v_and_b32 v{M+9}, 3, v{n}")
    E(f"  v_lshlrev_b32 v{M+9}, 8, v{M+9}")
    E(f"  v_lshl_add_u32 v{M+9}, v{g}, 4, v{M+9}")
    E("  s_waitcnt lgkmcnt(0)")
    E("  s_barrier")
    for j in range(4):
        E(f"  ds_read_b128 v[{QR+4*j}:{QR+4*j+3}], v{M+9} offset:{64*j}")
    E("  s_waitcnt lgkmcnt(0)")
    for t in range(8):
        wait_for(f"k{t}")
        s = SR + 4*t
        for j in range(4):
            r = KR + 16*t + 4*j
            c = "0" if j == 0 else f"v[{s}:{s+3}]"
            E(f"  v_mfma_f32_16x16x32_bf16 v[{s}:{s+3}], v[{r}:{r+3}], v[{QR+4*j}:{QR+4*j+3}], {c}")
        if t == 1: vload(2, KR)
        if t == 3: vload(3, KR+32)
    E("  s_nop 7")
    mx, t1, ls = M+8, M+9, M+10
    E(f"  v_max3_f32 v{mx}, v{SR}, v{SR+1}, v{SR+2}")
    i = 3
    while i < 32:
        if i + 1 < 32:
            E(f"  v_max3_f32 v{mx}, v{mx}, v{SR+i}, v{SR+i+1}"); i += 2
        else:
            E(f"  v_max_f32 v{mx}, v{mx}, v{SR+i}"); i += 1
    E(f"  v_mov_b32 v{t1}, v{mx}")
    E("  s_nop 1")
    E(f"  v_permlane16_swap_b32 v{mx}, v{t1}")
    E(f"  v_max_f32 v{mx}, v{mx}, v{t1}")
    E(f"  v_mov_b32 v{t1}, v{mx}")
    E("  s_nop 1")
    E(f"  v_permlane32_swap_b32 v{mx}, v{t1}")
    E(f"  v_max_f32 v{mx}, v{mx}, v{t1}")
    import math
    cval = (128 ** -0.5) * math.log2(math.e)
    import struct
    cbits = struct.unpack("<I", struct.pack("<f", cval))[0]
    E(f"  s_mov_b32 s46, {cbits:#x}")
    E(f"  v_mul_f32 v{mx}, s46, v{mx}")
    for i in range(32):
        E(f"  v_fma_f32 v{SR+i}, v{SR+i}, s46, -v{mx}")
    for i in range(32):
        E(f"  v_exp_f32 v{SR+i}, v{SR+i}")
    E("  s_nop 0")
    E(f"  v_add_f32 v{ls}, v{SR}, v{SR+1}")
    for i in range(2, 32):
        E(f"  v_add_f32 v{ls}, v{ls}, v{SR+i}")
    for t in range(4):
        for h in range(4):
            a = SR + 8*t + 2*h
            E(f"  v_cvt_pk_bf16_f32 v{QR+4*t+h}, v{a}, v{a+1}")
    E(f"  v_mov_b32 v{t1}, v{ls}")
    E("  s_nop 1")
    E(f"  v_permlane16_swap_b32 v{ls}, v{t1}")
    E(f"  v_add_f32 v{ls}, v{ls}, v{t1}")
    E(f"  v_mov_b32 v{t1}, v{ls}")
    E("  s_nop 1")
    E(f"  v_permlane32_swap_b32 v{ls}, v{t1}")
    E(f"  v_add_f32 v{ls}, v{ls}, v{t1}")
    ACC = KR + 64; T = KR + 96
    vbase = [VR, VR+32, KR, KR+32]
    for t in range(4):
        wait_for(f"v{t}")
        gemv_block(vbase[t], QR+4*t, T, ACC, 44, 45, first=(t == 0))
    E("  s_lshl_b32 s38, s16, 11")
    E(f"  v_lshlrev_b32 v{M+11}, 7, v{n}")
    E(f"  v_add_u32 v{M+11}, s38, v{M+11}")
    E(f"  v_cmp_gt_u32 vcc, 16, v{lane}")
    E("  s_nop 4")
    E("  s_and_saveexec_b64 s[40:41], vcc")
    for j in range(8):
        E(f"  ds_write_b128 v{M+11}, v[{ACC+4*j}:{ACC+4*j+3}] offset:{1024+16*j}")
    E("  s_mov_b64 exec, s[40:41]")
    E("  s_lshl_b32 s38, s16, 5")
    E(f"  v_lshlrev_b32 v{M+11}, 3, v{lane}")
    E(f"  v_add_u32 v{M+11}, s38, v{M+11}")
    E(f"  v_mov_b32 v{M+12}, v{mx}")
    E(f"  v_mov_b32 v{M+13}, v{ls}")
    E(f"  v_cmp_gt_u32 vcc, 4, v{lane}")
    E("  s_nop 1")
    E("  s_and_saveexec_b64 s[40:41], vcc")
    E(f"  ds_write_b64 v{M+11}, v[{M+12}:{M+13}] offset:17408")
    E("  s_mov_b64 exec, s[40:41]")
    E("  s_waitcnt lgkmcnt(0)")
    E("  s_barrier")
    E(f"  v_lshrrev_b32 v0, 7, v{tid}")
    E(f"  v_and_b32 v1, 127, v{tid}")
    E("  v_lshlrev_b32 v2, 3, v0")
    E("  v_lshlrev_b32 v3, 4, v1")
    E("  v_lshl_add_u32 v3, v0, 2, v3")
    for w in range(8):
        E(f"  ds_read_b64 v[{8+2*w}:{9+2*w}], v2 offset:{17408+32*w}")
    for w in range(8):
        E(f"  ds_read_b32 v{24+w}, v3 offset:{1024+2048*w}")
    E("  s_waitcnt lgkmcnt(0)")
    E("  v_max3_f32 v4, v8, v10, v12")
    E("  v_max3_f32 v4, v4, v14, v16")
    E("  v_max3_f32 v4, v4, v18, v20")
    E("  v_max_f32 v4, v4, v22")
    for w in range(8):
        E(f"  v_sub_f32 v{8+2*w}, v{8+2*w}, v4")
    for w in range(8):
        E(f"  v_exp_f32 v{8+2*w}, v{8+2*w}")
    E("  s_nop 0")
    E("  v_mul_f32 v5, v8, v9")
    E("  v_mul_f32 v6, v8, v24")
    for w in range(1, 8):
        E(f"  v_fmac_f32 v5, v{8+2*w}, v{9+2*w}")
        E(f"  v_fmac_f32 v6, v{8+2*w}, v{24+w}")
    E("  s_lshl_b32 s38, s2, 11")
    E(f"  s_add_u32 s38, s38, {AO:#x}")
    E(f"  v_lshlrev_b32 v7, 2, v{tid}")
    E("  buffer_store_dword v6, v7, s[28:31], s38 offen")
    E("  s_lshl_b32 s38, s2, 5")
    E(f"  s_add_u32 s38, s38, {AML:#x}")
    E("  v_cmp_eq_u32 vcc, 0, v1")
    E("  s_nop 1")
    E("  s_and_saveexec_b64 s[40:41], vcc")
    E("  buffer_store_dwordx2 v[4:5], v2, s[28:31], s38 offen")
    E("kB_end:")
    E("  s_endpgm")
    kdesc("kB_kernel", 256)

def kernelC():
    kstart("kC_kernel")
    E("  s_cmp_ge_u32 s2, 184")
    E("  s_cbranch_scc1 kC_end")
    E("  s_load_dwordx2 s[4:5], s[0:1], 32")
    E("  s_load_dwordx2 s[6:7], s[0:1], 64")
    E("  s_load_dwordx2 s[14:15], s[0:1], 96")
    E("  v_and_b32 v1, 63, v0")
    E("  v_lshrrev_b32 v2, 6, v0")
    E("  v_lshrrev_b32 v3, 4, v1")
    E("  v_readfirstlane_b32 s16, v2")
    E("  v_and_b32 v4, 15, v1")
    E("  s_mov_b32 s44, 0x05040100")
    E("  s_mov_b32 s45, 0x07060302")
    E("  s_lshr_b32 s17, s2, 2")
    E("  s_and_b32 s18, s2, 3")
    E("  s_waitcnt lgkmcnt(0)")
    srd(24, 14, WS_BYTES)
    E("  s_mov_b32 s30, 0x400000")
    E("  s_cmp_ge_u32 s17, 32")
    E("  s_cselect_b32 s28, s6, s4")
    E("  s_cselect_b32 s29, s7, s5")
    E("  s_cselect_b32 s30, 0x1c0000, s30")
    E("  s_cselect_b32 s33, 32, 0")
    E("  s_and_b32 s29, s29, 0xffff")
    E("  s_mov_b32 s31, 0x00020000")
    E("  s_sub_u32 s32, s17, s33")
    E("  s_lshl_b32 s34, s32, 17")
    E("  s_lshl_b32 s35, s16, 15")
    E("  s_add_u32 s34, s34, s35")
    E("  s_lshl_b32 s35, s18, 8")
    E("  s_add_u32 s34, s34, s35")
    E("  v_lshlrev_b32 v7, 13, v3")
    E("  v_lshl_add_u32 v7, v4, 4, v7")
    E("  s_add_u32 s35, s34, 4096")
    for kk in range(8):
        so = "s34" if kk < 4 else "s35"
        E(f"  buffer_load_dwordx4 v[{16+4*kk}:{19+4*kk}], v7, s[28:31], {so} offen offset:{1024*(kk&3)}")
    E("  v_mov_b32 v5, 0")
    E("  s_lshl_b32 s36, s16, 2")
    E(f"  s_add_u32 s36, s36, {GOFF:#x}")
    E("  buffer_load_dword v96, v5, s[24:27], s36 offen")
    E("  v_lshlrev_b32 v6, 3, v1")
    E("  s_cmp_ge_u32 s17, 32")
    E("  s_cbranch_scc1 kC_ffn")
    E("  s_lshr_b32 s36, s17, 2")
    E("  s_and_b32 s37, s17, 3")
    E("  s_lshl_b32 s38, s16, 3")
    E("  s_add_u32 s38, s38, s36")
    E("  s_lshl_b32 s38, s38, 5")
    E("  s_add_u32 s38, s38, s37")
    E("  s_lshl_b32 s39, s38, 9")
    E(f"  s_add_u32 s39, s39, {AO:#x}")
    E("  s_lshl_b32 s40, s38, 3")
    E(f"  s_add_u32 s40, s40, {AML:#x}")
    for s in range(8):
        E(f"  buffer_load_dwordx2 v[{64+2*s}:{65+2*s}], v6, s[24:27], s39 offen")
        E(f"  buffer_load_dwordx2 v[{80+2*s}:{81+2*s}], v5, s[24:27], s40 offen offset:{32*s}")
        if s < 7: E("  s_add_u32 s39, s39, 2048")
    E("  s_waitcnt vmcnt(0)")
    E("  v_max3_f32 v8, v80, v82, v84")
    E("  v_max3_f32 v8, v8, v86, v88")
    E("  v_max3_f32 v8, v8, v90, v92")
    E("  v_max_f32 v8, v8, v94")
    for s in range(8):
        E(f"  v_sub_f32 v{80+2*s}, v{80+2*s}, v8")
    for s in range(8):
        E(f"  v_exp_f32 v{80+2*s}, v{80+2*s}")
    E("  s_nop 0")
    E("  v_mul_f32 v9, v80, v81")
    E("  v_mul_f32 v10, v80, v64")
    E("  v_mul_f32 v11, v80, v65")
    for s in range(1, 8):
        E(f"  v_fmac_f32 v9, v{80+2*s}, v{81+2*s}")
        E(f"  v_fmac_f32 v10, v{80+2*s}, v{64+2*s}")
        E(f"  v_fmac_f32 v11, v{80+2*s}, v{65+2*s}")
    E("  v_rcp_f32 v9, v9")
    E("  s_nop 0")
    E("  v_mul_f32 v9, v9, v96")
    E("  v_mul_f32 v10, v10, v9")
    E("  v_mul_f32 v11, v11, v9")
    E("  s_branch kC_join")
    E("kC_ffn:")
    E("  s_mul_i32 s36, s16, 30720")
    E("  s_lshl_b32 s37, s32, 9")
    E("  s_add_u32 s36, s36, s37")
    E("  s_add_u32 s36, s36, 16384")
    E("  s_add_u32 s37, s36, 7168")
    for ks in range(4):
        E(f"  buffer_load_dwordx2 v[{64+2*ks}:{65+2*ks}], v6, s[24:27], s36 offen")
        E(f"  buffer_load_dwordx2 v[{72+2*ks}:{73+2*ks}], v6, s[24:27], s37 offen")
        if ks < 3:
            E("  s_add_u32 s36, s36, 122880")
            E("  s_add_u32 s37, s37, 122880")
    E("  s_waitcnt vmcnt(0)")
    for e in range(2):
        E(f"  v_add_f32 v{64+e}, v{64+e}, v{66+e}")
        E(f"  v_add_f32 v{68+e}, v{68+e}, v{70+e}")
        E(f"  v_add_f32 v{64+e}, v{64+e}, v{68+e}")
        E(f"  v_add_f32 v{72+e}, v{72+e}, v{74+e}")
        E(f"  v_add_f32 v{76+e}, v{76+e}, v{78+e}")
        E(f"  v_add_f32 v{72+e}, v{72+e}, v{76+e}")
        E(f"  v_mul_f32 v{64+e}, 0xbfb8aa3b, v{64+e}")
        E(f"  v_exp_f32 v{64+e}, v{64+e}")
        E("  s_nop 0")
        E(f"  v_add_f32 v{64+e}, 1.0, v{64+e}")
        E(f"  v_rcp_f32 v{64+e}, v{64+e}")
        E("  s_nop 0")
        E(f"  v_mul_f32 v{10+e}, v{64+e}, v{72+e}")
    E("  v_sub_f32 v9, 1.0, v96")
    E("  v_mul_f32 v10, v10, v9")
    E("  v_mul_f32 v11, v11, v9")
    E("kC_join:")
    E("  v_cvt_pk_bf16_f32 v10, v10, v11")
    E("  s_lshl_b32 s36, s16, 8")
    E("  v_lshlrev_b32 v6, 2, v1")
    E("  v_add_u32 v6, s36, v6")
    E("  ds_write_b32 v6, v10")
    E("  v_and_b32 v6, 3, v4")
    E("  v_lshlrev_b32 v6, 8, v6")
    E("  v_lshl_add_u32 v6, v3, 4, v6")
    E("  s_lshl_b32 s36, s16, 6")
    E("  v_add_u32 v6, s36, v6")
    E("  s_waitcnt lgkmcnt(0)")
    E("  s_barrier")
    E("  ds_read_b128 v[8:11], v6")
    E("  s_waitcnt lgkmcnt(0)")
    gemv_block(16, 8, 48, 64, 44, 45)
    E("  s_lshl_b32 s38, s16, 11")
    E("  v_lshlrev_b32 v5, 7, v4")
    E("  v_add_u32 v5, s38, v5")
    E("  v_cmp_gt_u32 vcc, 16, v1")
    E("  s_nop 4")
    E("  s_and_saveexec_b64 s[40:41], vcc")
    for j in range(8):
        E(f"  ds_write_b128 v5, v[{64+4*j}:{67+4*j}] offset:{1024+16*j}")
    E("  s_mov_b64 exec, s[40:41]")
    E("  s_waitcnt lgkmcnt(0)")
    E("  s_barrier")
    E("  v_lshlrev_b32 v5, 3, v0")
    for w in range(4):
        E(f"  ds_read_b64 v[{8+2*w}:{9+2*w}], v5 offset:{1024+2048*w}")
    E("  s_lshl_b32 s38, s17, 13")
    E("  s_lshl_b32 s39, s18, 9")
    E("  s_add_u32 s38, s38, s39")
    E(f"  s_add_u32 s38, s38, {CP:#x}")
    E("  v_and_b32 v6, 1, v0")
    E("  v_lshlrev_b32 v6, 12, v6")
    E("  v_lshrrev_b32 v7, 1, v0")
    E("  v_lshl_add_u32 v6, v7, 2, v6")
    E("  s_waitcnt lgkmcnt(0)")
    E("  v_add_f32 v8, v8, v10")
    E("  v_add_f32 v9, v9, v11")
    E("  v_add_f32 v12, v12, v14")
    E("  v_add_f32 v13, v13, v15")
    E("  v_add_f32 v8, v8, v12")
    E("  v_add_f32 v9, v9, v13")
    E("  buffer_store_dword v8, v6, s[24:27], s38 offen")
    E("  buffer_store_dword v9, v6, s[24:27], s38 offen offset:2048")
    E("kC_end:")
    E("  s_endpgm")
    kdesc("kC_kernel", 104)

def kernelD():
    kstart("kD_kernel")
    E("  s_cmp_ge_u32 s2, 16")
    E("  s_cbranch_scc1 kD_end")
    E("  s_load_dwordx2 s[4:5], s[0:1], 80")
    E("  s_load_dwordx2 s[14:15], s[0:1], 96")
    E("  v_and_b32 v1, 31, v0")
    E("  v_lshrrev_b32 v2, 5, v0")
    E("  v_lshlrev_b32 v3, 13, v2")
    E("  v_lshl_add_u32 v3, v1, 4, v3")
    E("  s_lshl_b32 s17, s2, 9")
    E(f"  s_add_u32 s17, s17, {CP:#x}")
    E("  s_waitcnt lgkmcnt(0)")
    srd(24, 14, CP + 46 * 8192)
    srd(20, 4, 4096)
    for i in range(6):
        E(f"  buffer_load_dwordx4 v[{8+4*i}:{11+4*i}], v3, s[24:27], s17 offen")
        if i < 5: E("  s_add_u32 s17, s17, 65536")
    E("  s_waitcnt vmcnt(0)")
    for i in range(1, 6):
        for e in range(4):
            E(f"  v_add_f32 v{8+e}, v{8+e}, v{8+4*i+e}")
    E("  v_lshlrev_b32 v4, 4, v0")
    E("  ds_write_b128 v4, v[8:11]")
    E("  s_waitcnt lgkmcnt(0)")
    E("  s_barrier")
    E("  v_cmp_gt_u32 vcc, 64, v0")
    E("  s_nop 1")
    E("  s_and_saveexec_b64 s[40:41], vcc")
    E("  s_cbranch_execz kD_end")
    E("  v_lshlrev_b32 v4, 3, v0")
    for p in range(8):
        E(f"  ds_read_b64 v[{8+2*p}:{9+2*p}], v4 offset:{512*p}")
    E("  s_waitcnt lgkmcnt(0)")
    for p in range(1, 8):
        E(f"  v_add_f32 v8, v8, v{8+2*p}")
        E(f"  v_add_f32 v9, v9, v{9+2*p}")
    E("  v_cvt_pk_bf16_f32 v8, v8, v9")
    E("  s_lshl_b32 s17, s2, 8")
    E("  v_lshlrev_b32 v4, 2, v0")
    E("  buffer_store_dword v8, v4, s[20:23], s17 offen")
    E("kD_end:")
    E("  s_endpgm")
    kdesc("kD_kernel", 32)

E(HEADER.rstrip())
E("; @launch kernel=kA_kernel grid=(241,1,1) block=(256,1,1) lds=8192")
E("; @launch kernel=kB_kernel grid=(256,1,1) block=(512,1,1) lds=17664")
E("; @launch kernel=kC_kernel grid=(184,1,1) block=(256,1,1) lds=9216")
E("; @launch kernel=kD_kernel grid=(16,1,1) block=(256,1,1) lds=4096")
E('.amdgcn_target "amdgcn-amd-amdhsa--gfx950"')
E(".text")
kernelA(); kernelB(); kernelC(); kernelD()
open(sys.argv[1], "w").write("\n".join(out) + "\n")
```

```python
import sys, os
KVF = os.environ.get("KVF", "")
NAME = "gated_mix__gqa_block_cached__glu_gated_glu__decode"
out = []
def E(s=""): out.append(s)

P1 = 0x0
GOFF = 0x80000
AO = 0x100000
AML = 0x180000
CP = 0x200000
WS_BYTES = 0x10000000

HEADER = open("cdna_kernels/" + NAME + ".s.ref").read().split("; Override launch")[0]

def srd(d, b, nbytes):
    E(f"  s_mov_b32 s{d}, s{b}")
    E(f"  s_and_b32 s{d+1}, s{b+1}, 0xffff")
    E(f"  s_mov_b32 s{d+2}, {nbytes:#x}")
    E(f"  s_mov_b32 s{d+3}, 0x00020000")

def kstart(name):
    E(f".globl {name}")
    E(".p2align 8")
    E(f".type {name},@function")
    E(f"{name}:")

def kdesc(name, vgpr, sgpr=102):
    E(".section .rodata,\"a\"")
    E(".p2align 6")
    E(f".amdhsa_kernel {name}")
    E(f"  .amdhsa_next_free_vgpr {vgpr}")
    E(f"  .amdhsa_next_free_sgpr {sgpr}")
    E(f"  .amdhsa_accum_offset {(vgpr+3)//4*4}")
    E("  .amdhsa_group_segment_fixed_size 0")
    E("  .amdhsa_kernarg_size 104")
    E("  .amdhsa_user_sgpr_count 2")
    E("  .amdhsa_user_sgpr_kernarg_segment_ptr 1")
    E("  .amdhsa_system_sgpr_workgroup_id_x 1")
    E(".end_amdhsa_kernel")
    E(".text")

def gemv_block(W, A, T, ACC, SELLO, SELHI, first=True):
    def perms(j):
        c = j >> 1
        sel = SELHI if (j & 1) else SELLO
        t = T + 4 * (j & 1)
        for i in range(4):
            E(f"  v_perm_b32 v{t+i}, v{W+4*(2*i+1)+c}, v{W+4*(2*i)+c}, s{sel}")
    def mfma(j):
        t = T + 4 * (j & 1)
        a = ACC + 4 * j
        c = "0" if first else f"v[{a}:{a+3}]"
        E(f"  v_mfma_f32_16x16x32_bf16 v[{a}:{a+3}], v[{A}:{A+3}], v[{t}:{t+3}], {c}")
    perms(0)
    for j in range(8):
        if j + 1 < 8:
            perms(j + 1)
        else:
            E("  s_nop 1")
        mfma(j)

def kernelA():
    kstart("kA_kernel")
    E("  s_cmp_ge_u32 s2, 241")
    E("  s_cbranch_scc1 kA_end")
    E("  s_load_dwordx2 s[4:5], s[0:1], 0")
    E("  s_load_dwordx2 s[6:7], s[0:1], 24")
    E("  s_load_dwordx2 s[8:9], s[0:1], 48")
    E("  s_load_dwordx2 s[10:11], s[0:1], 56")
    E("  s_load_dwordx2 s[12:13], s[0:1], 72")
    E("  s_load_dwordx2 s[14:15], s[0:1], 96")
    E("  v_and_b32 v1, 63, v0")
    E("  v_lshrrev_b32 v2, 6, v0")
    E("  v_lshrrev_b32 v3, 4, v1")
    E("  v_readfirstlane_b32 s16, v2")
    E("  v_and_b32 v4, 15, v1")
    E("  s_mov_b32 s44, 0x05040100")
    E("  s_mov_b32 s45, 0x07060302")
    E("  s_waitcnt lgkmcnt(0)")
    srd(20, 4, 4096)
    srd(24, 14, WS_BYTES)
    E("  s_cmp_eq_u32 s2, 240")
    E("  s_cbranch_scc1 kA_gate")
    E("  s_lshr_b32 s17, s2, 2")
    E("  s_and_b32 s18, s2, 3")
    E("  s_mov_b32 s28, s6")
    E("  s_mov_b32 s29, s7")
    E("  s_mov_b32 s30, 0x400000")
    E("  s_mov_b32 s19, 8192")
    E("  s_mov_b32 s32, s17")
    E("  s_cmp_ge_u32 s17, 32")
    E("  s_cselect_b32 s28, s8, s28")
    E("  s_cselect_b32 s29, s9, s29")
    E("  s_cselect_b32 s30, 0x1c0000, s30")
    E("  s_cselect_b32 s19, 3584, s19")
    E("  s_cselect_b32 s33, 32, 0")
    E("  s_cmp_ge_u32 s17, 46")
    E("  s_cselect_b32 s28, s10, s28")
    E("  s_cselect_b32 s29, s11, s29")
    E("  s_cselect_b32 s33, 46, s33")
    E("  s_sub_u32 s32, s17, s33")
    E("  s_and_b32 s29, s29, 0xffff")
    E("  s_mov_b32 s31, 0x00020000")
    E("  s_lshl_b32 s34, s18, 7")
    E("  s_lshl_b32 s35, s16, 5")
    E("  s_add_u32 s34, s34, s35")
    E("  v_lshlrev_b32 v5, 3, v3")
    E("  v_add_u32 v5, s34, v5")
    E("  v_and_b32 v6, 3, v4")
    E("  v_lshlrev_b32 v6, 10, v6")
    E("  v_lshl_add_u32 v6, v5, 1, v6")
    E("  buffer_load_dwordx4 v[8:11], v6, s[20:23], 0 offen")
    E("  v_mul_lo_u32 v7, v5, s19")
    E("  s_lshl_b32 s36, s32, 8")
    E("  v_lshl_add_u32 v7, v4, 4, v7")
    E("  v_add_u32 v7, s36, v7")
    E("  s_mov_b32 s37, 0")
    for kk in range(8):
        E(f"  buffer_load_dwordx4 v[{16+4*kk}:{19+4*kk}], v7, s[28:31], s37 offen")
        if kk < 7: E("  s_add_u32 s37, s37, s19")
    E("  s_waitcnt vmcnt(0)")
    gemv_block(16, 8, 48, 64, 44, 45)
    E("  s_lshl_b32 s38, s16, 11")
    E("  v_lshlrev_b32 v5, 7, v4")
    E("  v_add_u32 v5, s38, v5")
    E("  v_cmp_gt_u32 vcc, 16, v1")
    E("  s_nop 4")
    E("  s_and_saveexec_b64 s[40:41], vcc")
    for j in range(8):
        E(f"  ds_write_b128 v5, v[{64+4*j}:{67+4*j}] offset:{16*j}")
    E("  s_mov_b64 exec, s[40:41]")
    E("  s_waitcnt lgkmcnt(0)")
    E("  s_barrier")
    E("  v_lshlrev_b32 v5, 3, v0")
    for w in range(4):
        E(f"  ds_read_b64 v[{8+2*w}:{9+2*w}], v5 offset:{2048*w}")
    E("  s_mul_i32 s38, s18, 122880")
    E("  s_lshl_b32 s39, s17, 9")
    E("  s_add_u32 s38, s38, s39")
    E("  v_and_b32 v6, 1, v0")
    E("  v_mul_u32_u24 v6, 61440, v6")
    E("  v_lshrrev_b32 v7, 1, v0")
    E("  v_lshl_add_u32 v6, v7, 2, v6")
    E("  v_add_u32 v7, 30720, v6")
    E("  s_waitcnt lgkmcnt(0)")
    E("  v_add_f32 v8, v8, v10")
    E("  v_add_f32 v9, v9, v11")
    E("  v_add_f32 v12, v12, v14")
    E("  v_add_f32 v13, v13, v15")
    E("  v_add_f32 v8, v8, v12")
    E("  v_add_f32 v9, v9, v13")
    E("  buffer_store_dword v8, v6, s[24:27], s38 offen")
    E("  buffer_store_dword v9, v7, s[24:27], s38 offen")
    E("  s_endpgm")
    E("kA_gate:")
    srd(28, 12, 1024)
    E("  v_lshlrev_b32 v5, 4, v1")
    E("  s_lshl_b32 s34, s16, 10")
    E("  buffer_load_dwordx4 v[8:11], v5, s[20:23], s34 offen")
    E("  buffer_load_dwordx4 v[12:15], v5, s[28:31], 0 offen")
    E("  s_waitcnt vmcnt(0)")
    E("  v_mov_b32 v20, 0")
    for c in range(4):
        E(f"  v_lshlrev_b32 v16, 16, v{8+c}")
        E(f"  v_lshlrev_b32 v17, 16, v{12+c}")
        E(f"  v_and_b32 v18, 0xffff0000, v{8+c}")
        E(f"  v_and_b32 v19, 0xffff0000, v{12+c}")
        E("  v_fmac_f32 v20, v16, v17")
        E("  v_fmac_f32 v20, v18, v19")
    for r in (8, 4, 2, 1):
        E("  s_nop 1")
        E(f"  v_add_f32_dpp v20, v20, v20 row_ror:{r} row_mask:0xf bank_mask:0xf")
    E("  v_mov_b32 v21, v20")
    E("  s_nop 1")
    E("  v_permlane16_swap_b32 v20, v21")
    E("  v_add_f32 v20, v20, v21")
    E("  v_mov_b32 v21, v20")
    E("  s_nop 1")
    E("  v_permlane32_swap_b32 v20, v21")
    E("  v_add_f32 v20, v20, v21")
    E("  v_mul_f32 v20, 0xbfb8aa3b, v20")
    E("  v_exp_f32 v20, v20")
    E("  s_nop 0")
    E("  v_add_f32 v20, 1.0, v20")
    E("  v_rcp_f32 v20, v20")
    E("  s_lshl_b32 s34, s16, 2")
    E(f"  s_add_u32 s34, s34, {GOFF:#x}")
    E("  v_mov_b32 v5, 0")
    E("  v_cmp_eq_u32 vcc, 0, v1")
    E("  s_nop 1")
    E("  s_and_saveexec_b64 s[40:41], vcc")
    E("  buffer_store_dword v20, v5, s[24:27], s34 offen")
    E("kA_end:")
    E("  s_endpgm")
    kdesc("kA_kernel", 96)

def kernelB():
    KR = 0
    VR = 128
    SR = 192
    QR = 224
    M = 240
    kstart("kB_kernel")
    E("  s_cmp_ge_u32 s2, 256")
    E("  s_cbranch_scc1 kB_end")
    E("  s_load_dwordx2 s[4:5], s[0:1], 8")
    E("  s_load_dwordx2 s[6:7], s[0:1], 16")
    E("  s_load_dwordx2 s[14:15], s[0:1], 96")
    tid, lane, g, n = M, M+1, M+2, M+3
    E(f"  v_mov_b32 v{tid}, v0")
    E(f"  v_and_b32 v{lane}, 63, v0")
    E(f"  v_lshrrev_b32 v{M+4}, 6, v0")
    E(f"  v_lshrrev_b32 v{g}, 4, v{lane}")
    E(f"  v_readfirstlane_b32 s16, v{M+4}")
    E(f"  v_and_b32 v{n}, 15, v{lane}")
    E("  s_mov_b32 s44, 0x05040100")
    E("  s_mov_b32 s45, 0x07060302")
    E("  s_lshr_b32 s17, s2, 3")
    E("  s_and_b32 s18, s2, 7")
    E("  s_lshr_b32 s19, s17, 3")
    E("  s_and_b32 s32, s17, 7")
    E("  s_mul_i32 s33, s19, 30720")
    E("  s_lshl_b32 s34, s32, 11")
    E("  s_add_u32 s33, s33, s34")
    E("  s_lshl_b32 s35, s17, 21")
    E("  s_lshl_b32 s36, s18, 18")
    E("  s_add_u32 s35, s35, s36")
    E("  s_lshl_b32 s36, s16, 15")
    E("  s_add_u32 s35, s35, s36")
    vq, vk, vv = M+5, M+6, M+7
    E(f"  v_lshlrev_b32 v{vq}, 2, v{tid}")
    E(f"  v_lshlrev_b32 v{vk}, 8, v{n}")
    E(f"  v_lshl_add_u32 v{vk}, v{g}, 4, v{vk}")
    E(f"  v_lshlrev_b32 v{vv}, 10, v{g}")
    E(f"  v_lshl_add_u32 v{vv}, v{n}, 4, v{vv}")
    E("  s_waitcnt lgkmcnt(0)")
    srd(20, 4, 0x4000000)
    srd(24, 6, 0x4000000)
    srd(28, 14, WS_BYTES)
    q = []
    def ld(name): q.append(name)
    def wait_for(name):
        idx = max(i for i, x in enumerate(q) if x == name)
        nleft = len(q) - 1 - idx
        E(f"  s_waitcnt vmcnt({nleft})")
        del q[:idx+1]
    for ks in range(4):
        E(f"  buffer_load_dword v{M+8+ks}, v{vq}, s[28:31], s33 offen")
        ld("q")
        if ks < 3: E("  s_add_u32 s33, s33, 122880")
    def kload(t):
        E(f"  s_add_u32 s37, s35, {t*4096}")
        for j in range(4):
            r = KR + 16*t + 4*j
            E(f"  buffer_load_dwordx4 v[{r}:{r+3}], v{vk}, s[20:23], s37 offen offset:{64*j} {KVF}")
            ld(f"k{t}")
    def vload(t, base):
        for half in range(2):
            E(f"  s_add_u32 s37, s35, {t*8192+half*4096}")
            for k4 in range(4):
                r = base + 4*(half*4+k4)
                E(f"  buffer_load_dwordx4 v[{r}:{r+3}], v{vv}, s[24:27], s37 offen offset:{256*k4} {KVF}")
                ld(f"v{t}")
    for t in range(8): kload(t)
    vload(0, VR); vload(1, VR+32)
    wait_for("q")
    E(f"  v_add_f32 v{M+8}, v{M+8}, v{M+9}")
    E(f"  v_add_f32 v{M+10}, v{M+10}, v{M+11}")
    E(f"  v_add_f32 v{M+8}, v{M+8}, v{M+10}")
    E(f"  v_cvt_pk_bf16_f32 v{M+8}, v{M+8}, v{M+8}")
    E(f"  v_lshlrev_b32 v{M+9}, 1, v{tid}")
    E(f"  ds_write_b16 v{M+9}, v{M+8}")
    E(f"  v_and_b32 v{M+9}, 3, v{n}")
    E(f"  v_lshlrev_b32 v{M+9}, 8, v{M+9}")
    E(f"  v_lshl_add_u32 v{M+9}, v{g}, 4, v{M+9}")
    E("  s_waitcnt lgkmcnt(0)")
    E("  s_barrier")
    for j in range(4):
        E(f"  ds_read_b128 v[{QR+4*j}:{QR+4*j+3}], v{M+9} offset:{64*j}")
    E("  s_waitcnt lgkmcnt(0)")
    for t in range(8):
        wait_for(f"k{t}")
        s = SR + 4*t
        for j in range(4):
            r = KR + 16*t + 4*j
            c = "0" if j == 0 else f"v[{s}:{s+3}]"
            E(f"  v_mfma_f32_16x16x32_bf16 v[{s}:{s+3}], v[{r}:{r+3}], v[{QR+4*j}:{QR+4*j+3}], {c}")
        if t == 1: vload(2, KR)
        if t == 3: vload(3, KR+32)
    E("  s_nop 7")
    mx, t1, ls = M+8, M+9, M+10
    E(f"  v_max3_f32 v{mx}, v{SR}, v{SR+1}, v{SR+2}")
    i = 3
    while i < 32:
        if i + 1 < 32:
            E(f"  v_max3_f32 v{mx}, v{mx}, v{SR+i}, v{SR+i+1}"); i += 2
        else:
            E(f"  v_max_f32 v{mx}, v{mx}, v{SR+i}"); i += 1
    E(f"  v_mov_b32 v{t1}, v{mx}")
    E("  s_nop 1")
    E(f"  v_permlane16_swap_b32 v{mx}, v{t1}")
    E(f"  v_max_f32 v{mx}, v{mx}, v{t1}")
    E(f"  v_mov_b32 v{t1}, v{mx}")
    E("  s_nop 1")
    E(f"  v_permlane32_swap_b32 v{mx}, v{t1}")
    E(f"  v_max_f32 v{mx}, v{mx}, v{t1}")
    import math
    cval = (128 ** -0.5) * math.log2(math.e)
    import struct
    cbits = struct.unpack("<I", struct.pack("<f", cval))[0]
    E(f"  s_mov_b32 s46, {cbits:#x}")
    E(f"  v_mul_f32 v{mx}, s46, v{mx}")
    for i in range(32):
        E(f"  v_fma_f32 v{SR+i}, v{SR+i}, s46, -v{mx}")
    for i in range(32):
        E(f"  v_exp_f32 v{SR+i}, v{SR+i}")
    E("  s_nop 0")
    E(f"  v_add_f32 v{ls}, v{SR}, v{SR+1}")
    for i in range(2, 32):
        E(f"  v_add_f32 v{ls}, v{ls}, v{SR+i}")
    for t in range(4):
        for h in range(4):
            a = SR + 8*t + 2*h
            E(f"  v_cvt_pk_bf16_f32 v{QR+4*t+h}, v{a}, v{a+1}")
    E(f"  v_mov_b32 v{t1}, v{ls}")
    E("  s_nop 1")
    E(f"  v_permlane16_swap_b32 v{ls}, v{t1}")
    E(f"  v_add_f32 v{ls}, v{ls}, v{t1}")
    E(f"  v_mov_b32 v{t1}, v{ls}")
    E("  s_nop 1")
    E(f"  v_permlane32_swap_b32 v{ls}, v{t1}")
    E(f"  v_add_f32 v{ls}, v{ls}, v{t1}")
    ACC = KR + 64; T = KR + 96
    vbase = [VR, VR+32, KR, KR+32]
    for t in range(4):
        wait_for(f"v{t}")
        gemv_block(vbase[t], QR+4*t, T, ACC, 44, 45, first=(t == 0))
    E("  s_lshl_b32 s38, s16, 11")
    E(f"  v_lshlrev_b32 v{M+11}, 7, v{n}")
    E(f"  v_add_u32 v{M+11}, s38, v{M+11}")
    E(f"  v_cmp_gt_u32 vcc, 16, v{lane}")
    E("  s_nop 4")
    E("  s_and_saveexec_b64 s[40:41], vcc")
    for j in range(8):
        E(f"  ds_write_b128 v{M+11}, v[{ACC+4*j}:{ACC+4*j+3}] offset:{1024+16*j}")
    E("  s_mov_b64 exec, s[40:41]")
    E("  s_lshl_b32 s38, s16, 5")
    E(f"  v_lshlrev_b32 v{M+11}, 3, v{lane}")
    E(f"  v_add_u32 v{M+11}, s38, v{M+11}")
    E(f"  v_mov_b32 v{M+12}, v{mx}")
    E(f"  v_mov_b32 v{M+13}, v{ls}")
    E(f"  v_cmp_gt_u32 vcc, 4, v{lane}")
    E("  s_nop 1")
    E("  s_and_saveexec_b64 s[40:41], vcc")
    E(f"  ds_write_b64 v{M+11}, v[{M+12}:{M+13}] offset:17408")
    E("  s_mov_b64 exec, s[40:41]")
    E("  s_waitcnt lgkmcnt(0)")
    E("  s_barrier")
    E(f"  v_lshrrev_b32 v0, 7, v{tid}")
    E(f"  v_and_b32 v1, 127, v{tid}")
    E("  v_lshlrev_b32 v2, 3, v0")
    E("  v_lshlrev_b32 v3, 4, v1")
    E("  v_lshl_add_u32 v3, v0, 2, v3")
    for w in range(8):
        E(f"  ds_read_b64 v[{8+2*w}:{9+2*w}], v2 offset:{17408+32*w}")
    for w in range(8):
        E(f"  ds_read_b32 v{24+w}, v3 offset:{1024+2048*w}")
    E("  s_waitcnt lgkmcnt(0)")
    E("  v_max3_f32 v4, v8, v10, v12")
    E("  v_max3_f32 v4, v4, v14, v16")
    E("  v_max3_f32 v4, v4, v18, v20")
    E("  v_max_f32 v4, v4, v22")
    for w in range(8):
        E(f"  v_sub_f32 v{8+2*w}, v{8+2*w}, v4")
    for w in range(8):
        E(f"  v_exp_f32 v{8+2*w}, v{8+2*w}")
    E("  s_nop 0")
    E("  v_mul_f32 v5, v8, v9")
    E("  v_mul_f32 v6, v8, v24")
    for w in range(1, 8):
        E(f"  v_fmac_f32 v5, v{8+2*w}, v{9+2*w}")
        E(f"  v_fmac_f32 v6, v{8+2*w}, v{24+w}")
    E("  s_lshl_b32 s38, s2, 11")
    E(f"  s_add_u32 s38, s38, {AO:#x}")
    E(f"  v_lshlrev_b32 v7, 2, v{tid}")
    E("  buffer_store_dword v6, v7, s[28:31], s38 offen")
    E("  s_lshl_b32 s38, s2, 5")
    E(f"  s_add_u32 s38, s38, {AML:#x}")
    E("  v_cmp_eq_u32 vcc, 0, v1")
    E("  s_nop 1")
    E("  s_and_saveexec_b64 s[40:41], vcc")
    E("  buffer_store_dwordx2 v[4:5], v2, s[28:31], s38 offen")
    E("kB_end:")
    E("  s_endpgm")
    kdesc("kB_kernel", 256)

def kernelC():
    kstart("kC_kernel")
    E("  s_cmp_ge_u32 s2, 184")
    E("  s_cbranch_scc1 kC_end")
    E("  s_load_dwordx2 s[4:5], s[0:1], 32")
    E("  s_load_dwordx2 s[6:7], s[0:1], 64")
    E("  s_load_dwordx2 s[14:15], s[0:1], 96")
    E("  v_and_b32 v1, 63, v0")
    E("  v_lshrrev_b32 v2, 6, v0")
    E("  v_lshrrev_b32 v3, 4, v1")
    E("  v_readfirstlane_b32 s16, v2")
    E("  v_and_b32 v4, 15, v1")
    E("  s_mov_b32 s44, 0x05040100")
    E("  s_mov_b32 s45, 0x07060302")
    E("  s_lshr_b32 s17, s2, 2")
    E("  s_and_b32 s18, s2, 3")
    E("  s_waitcnt lgkmcnt(0)")
    srd(24, 14, WS_BYTES)
    E("  s_mov_b32 s30, 0x400000")
    E("  s_cmp_ge_u32 s17, 32")
    E("  s_cselect_b32 s28, s6, s4")
    E("  s_cselect_b32 s29, s7, s5")
    E("  s_cselect_b32 s30, 0x1c0000, s30")
    E("  s_cselect_b32 s33, 32, 0")
    E("  s_and_b32 s29, s29, 0xffff")
    E("  s_mov_b32 s31, 0x00020000")
    E("  s_sub_u32 s32, s17, s33")
    E("  s_lshl_b32 s34, s32, 17")
    E("  s_lshl_b32 s35, s16, 15")
    E("  s_add_u32 s34, s34, s35")
    E("  s_lshl_b32 s35, s18, 8")
    E("  s_add_u32 s34, s34, s35")
    E("  v_lshlrev_b32 v7, 13, v3")
    E("  v_lshl_add_u32 v7, v4, 4, v7")
    E("  s_add_u32 s35, s34, 4096")
    for kk in range(8):
        so = "s34" if kk < 4 else "s35"
        E(f"  buffer_load_dwordx4 v[{16+4*kk}:{19+4*kk}], v7, s[28:31], {so} offen offset:{1024*(kk&3)}")
    E("  v_mov_b32 v5, 0")
    E("  s_lshl_b32 s36, s16, 2")
    E(f"  s_add_u32 s36, s36, {GOFF:#x}")
    E("  buffer_load_dword v96, v5, s[24:27], s36 offen")
    E("  v_lshlrev_b32 v6, 3, v1")
    E("  s_cmp_ge_u32 s17, 32")
    E("  s_cbranch_scc1 kC_ffn")
    E("  s_lshr_b32 s36, s17, 2")
    E("  s_and_b32 s37, s17, 3")
    E("  s_lshl_b32 s38, s16, 3")
    E("  s_add_u32 s38, s38, s36")
    E("  s_lshl_b32 s38, s38, 5")
    E("  s_add_u32 s38, s38, s37")
    E("  s_lshl_b32 s39, s38, 9")
    E(f"  s_add_u32 s39, s39, {AO:#x}")
    E("  s_lshl_b32 s40, s38, 3")
    E(f"  s_add_u32 s40, s40, {AML:#x}")
    for s in range(8):
        E(f"  buffer_load_dwordx2 v[{64+2*s}:{65+2*s}], v6, s[24:27], s39 offen")
        E(f"  buffer_load_dwordx2 v[{80+2*s}:{81+2*s}], v5, s[24:27], s40 offen offset:{32*s}")
        if s < 7: E("  s_add_u32 s39, s39, 2048")
    E("  s_waitcnt vmcnt(0)")
    E("  v_max3_f32 v8, v80, v82, v84")
    E("  v_max3_f32 v8, v8, v86, v88")
    E("  v_max3_f32 v8, v8, v90, v92")
    E("  v_max_f32 v8, v8, v94")
    for s in range(8):
        E(f"  v_sub_f32 v{80+2*s}, v{80+2*s}, v8")
    for s in range(8):
        E(f"  v_exp_f32 v{80+2*s}, v{80+2*s}")
    E("  s_nop 0")
    E("  v_mul_f32 v9, v80, v81")
    E("  v_mul_f32 v10, v80, v64")
    E("  v_mul_f32 v11, v80, v65")
    for s in range(1, 8):
        E(f"  v_fmac_f32 v9, v{80+2*s}, v{81+2*s}")
        E(f"  v_fmac_f32 v10, v{80+2*s}, v{64+2*s}")
        E(f"  v_fmac_f32 v11, v{80+2*s}, v{65+2*s}")
    E("  v_rcp_f32 v9, v9")
    E("  s_nop 0")
    E("  v_mul_f32 v9, v9, v96")
    E("  v_mul_f32 v10, v10, v9")
    E("  v_mul_f32 v11, v11, v9")
    E("  s_branch kC_join")
    E("kC_ffn:")
    E("  s_mul_i32 s36, s16, 30720")
    E("  s_lshl_b32 s37, s32, 9")
    E("  s_add_u32 s36, s36, s37")
    E("  s_add_u32 s36, s36, 16384")
    E("  s_add_u32 s37, s36, 7168")
    for ks in range(4):
        E(f"  buffer_load_dwordx2 v[{64+2*ks}:{65+2*ks}], v6, s[24:27], s36 offen")
        E(f"  buffer_load_dwordx2 v[{72+2*ks}:{73+2*ks}], v6, s[24:27], s37 offen")
        if ks < 3:
            E("  s_add_u32 s36, s36, 122880")
            E("  s_add_u32 s37, s37, 122880")
    E("  s_waitcnt vmcnt(0)")
    for e in range(2):
        E(f"  v_add_f32 v{64+e}, v{64+e}, v{66+e}")
        E(f"  v_add_f32 v{68+e}, v{68+e}, v{70+e}")
        E(f"  v_add_f32 v{64+e}, v{64+e}, v{68+e}")
        E(f"  v_add_f32 v{72+e}, v{72+e}, v{74+e}")
        E(f"  v_add_f32 v{76+e}, v{76+e}, v{78+e}")
        E(f"  v_add_f32 v{72+e}, v{72+e}, v{76+e}")
        E(f"  v_mul_f32 v{64+e}, 0xbfb8aa3b, v{64+e}")
        E(f"  v_exp_f32 v{64+e}, v{64+e}")
        E("  s_nop 0")
        E(f"  v_add_f32 v{64+e}, 1.0, v{64+e}")
        E(f"  v_rcp_f32 v{64+e}, v{64+e}")
        E("  s_nop 0")
        E(f"  v_mul_f32 v{10+e}, v{64+e}, v{72+e}")
    E("  v_sub_f32 v9, 1.0, v96")
    E("  v_mul_f32 v10, v10, v9")
    E("  v_mul_f32 v11, v11, v9")
    E("kC_join:")
    E("  v_cvt_pk_bf16_f32 v10, v10, v11")
    E("  s_lshl_b32 s36, s16, 8")
    E("  v_lshlrev_b32 v6, 2, v1")
    E("  v_add_u32 v6, s36, v6")
    E("  ds_write_b32 v6, v10")
    E("  v_and_b32 v6, 3, v4")
    E("  v_lshlrev_b32 v6, 8, v6")
    E("  v_lshl_add_u32 v6, v3, 4, v6")
    E("  s_lshl_b32 s36, s16, 6")
    E("  v_add_u32 v6, s36, v6")
    E("  s_waitcnt lgkmcnt(0)")
    E("  s_barrier")
    E("  ds_read_b128 v[8:11], v6")
    E("  s_waitcnt lgkmcnt(0)")
    gemv_block(16, 8, 48, 64, 44, 45)
    E("  s_lshl_b32 s38, s16, 11")
    E("  v_lshlrev_b32 v5, 7, v4")
    E("  v_add_u32 v5, s38, v5")
    E("  v_cmp_gt_u32 vcc, 16, v1")
    E("  s_nop 4")
    E("  s_and_saveexec_b64 s[40:41], vcc")
    for j in range(8):
        E(f"  ds_write_b128 v5, v[{64+4*j}:{67+4*j}] offset:{1024+16*j}")
    E("  s_mov_b64 exec, s[40:41]")
    E("  s_waitcnt lgkmcnt(0)")
    E("  s_barrier")
    E("  v_lshlrev_b32 v5, 3, v0")
    for w in range(4):
        E(f"  ds_read_b64 v[{8+2*w}:{9+2*w}], v5 offset:{1024+2048*w}")
    E("  s_lshl_b32 s38, s17, 13")
    E("  s_lshl_b32 s39, s18, 9")
    E("  s_add_u32 s38, s38, s39")
    E(f"  s_add_u32 s38, s38, {CP:#x}")
    E("  v_and_b32 v6, 1, v0")
    E("  v_lshlrev_b32 v6, 12, v6")
    E("  v_lshrrev_b32 v7, 1, v0")
    E("  v_lshl_add_u32 v6, v7, 2, v6")
    E("  s_waitcnt lgkmcnt(0)")
    E("  v_add_f32 v8, v8, v10")
    E("  v_add_f32 v9, v9, v11")
    E("  v_add_f32 v12, v12, v14")
    E("  v_add_f32 v13, v13, v15")
    E("  v_add_f32 v8, v8, v12")
    E("  v_add_f32 v9, v9, v13")
    E("  buffer_store_dword v8, v6, s[24:27], s38 offen")
    E("  buffer_store_dword v9, v6, s[24:27], s38 offen offset:2048")
    E("kC_end:")
    E("  s_endpgm")
    kdesc("kC_kernel", 104)

def kernelD():
    kstart("kD_kernel")
    E("  s_cmp_ge_u32 s2, 16")
    E("  s_cbranch_scc1 kD_end")
    E("  s_load_dwordx2 s[4:5], s[0:1], 80")
    E("  s_load_dwordx2 s[14:15], s[0:1], 96")
    E("  v_and_b32 v1, 31, v0")
    E("  v_lshrrev_b32 v2, 5, v0")
    E("  v_lshlrev_b32 v3, 13, v2")
    E("  v_lshl_add_u32 v3, v1, 4, v3")
    E("  s_lshl_b32 s17, s2, 9")
    E(f"  s_add_u32 s17, s17, {CP:#x}")
    E("  s_waitcnt lgkmcnt(0)")
    srd(24, 14, CP + 46 * 8192)
    srd(20, 4, 4096)
    for i in range(6):
        E(f"  buffer_load_dwordx4 v[{8+4*i}:{11+4*i}], v3, s[24:27], s17 offen")
        if i < 5: E("  s_add_u32 s17, s17, 65536")
    E("  s_waitcnt vmcnt(0)")
    for i in range(1, 6):
        for e in range(4):
            E(f"  v_add_f32 v{8+e}, v{8+e}, v{8+4*i+e}")
    E("  v_lshlrev_b32 v4, 4, v0")
    E("  ds_write_b128 v4, v[8:11]")
    E("  s_waitcnt lgkmcnt(0)")
    E("  s_barrier")
    E("  v_cmp_gt_u32 vcc, 64, v0")
    E("  s_nop 1")
    E("  s_and_saveexec_b64 s[40:41], vcc")
    E("  s_cbranch_execz kD_end")
    E("  v_lshlrev_b32 v4, 3, v0")
    for p in range(8):
        E(f"  ds_read_b64 v[{8+2*p}:{9+2*p}], v4 offset:{512*p}")
    E("  s_waitcnt lgkmcnt(0)")
    for p in range(1, 8):
        E(f"  v_add_f32 v8, v8, v{8+2*p}")
        E(f"  v_add_f32 v9, v9, v{9+2*p}")
    E("  v_cvt_pk_bf16_f32 v8, v8, v9")
    E("  s_lshl_b32 s17, s2, 8")
    E("  v_lshlrev_b32 v4, 2, v0")
    E("  buffer_store_dword v8, v4, s[20:23], s17 offen")
    E("kD_end:")
    E("  s_endpgm")
    kdesc("kD_kernel", 32)

E(HEADER.rstrip())
E("; @launch kernel=kA_kernel grid=(241,1,1) block=(256,1,1) lds=8192")
E("; @launch kernel=kB_kernel grid=(256,1,1) block=(512,1,1) lds=17664")
E("; @launch kernel=kC_kernel grid=(184,1,1) block=(256,1,1) lds=9216")
E("; @launch kernel=kD_kernel grid=(16,1,1) block=(256,1,1) lds=4096")
E('.amdgcn_target "amdgcn-amd-amdhsa--gfx950"')
E(".text")
kernelA(); kernelB(); kernelC(); kernelD()
open(sys.argv[1], "w").write("\n".join(out) + "\n")
```

```python
import sys, os, math, struct
NAME = "gated_mix__gqa_block_cached__glu_gated_glu__decode"
KVF = os.environ.get("KVF", "nt")
DIAG = int(os.environ.get("DIAG", "0"))
out = []
def E(s=""): out.append(s)

P1 = 0x0
GOFF = 0x80000
AO = 0x100000
AML = 0x180000
L2 = 0x200000
DIAGOFF = 0x400000
WS_BYTES = 0x10000000
NT = 92

HEADER = open("cdna_kernels/" + NAME + ".s.ref").read().split("; Override launch")[0]

def srd(d, b, nbytes):
    E(f"  s_mov_b32 s{d}, s{b}")
    E(f"  s_and_b32 s{d+1}, s{b+1}, 0xffff")
    E(f"  s_mov_b32 s{d+2}, {nbytes:#x}")
    E(f"  s_mov_b32 s{d+3}, 0x00020000")

SELLO, SELHI = 80, 81
def gemv_block(W, A, T, ACC, first=True):
    def perms(j):
        c = j >> 1
        sel = SELHI if (j & 1) else SELLO
        t = T + 4 * (j & 1)
        for i in range(4):
            E(f"  v_perm_b32 v{t+i}, v{W+4*(2*i+1)+c}, v{W+4*(2*i)+c}, s{sel}")
    def mfma(j):
        t = T + 4 * (j & 1)
        a = ACC + 4 * j
        c = "0" if first else f"v[{a}:{a+3}]"
        E(f"  v_mfma_f32_16x16x32_bf16 v[{a}:{a+3}], v[{A}:{A+3}], v[{t}:{t+3}], {c}")
    perms(0)
    for j in range(8):
        if j + 1 < 8:
            perms(j + 1)
        else:
            E("  s_nop 1")
        mfma(j)

nstamp = [0]
def stamp():
    if not DIAG: return
    i = nstamp[0]; nstamp[0] += 1
    assert i < 8
    E(f"  s_memrealtime s[{84+2*i}:{85+2*i}]")

KR, VR, SR, QR, M = 0, 128, 192, 224, 240
tid, lane, g, n = M, M+1, M+2, M+3
vk, vv = M+6, M+7
SK, SV, SW, SD, ST, SX, SO = 32, 36, 40, 44, 48, 52, 56
def S(x): return f"s[{x}:{x+3}]"

def kernel():
    name = NAME + "_kernel"
    E(f".globl {name}")
    E(".p2align 8")
    E(f".type {name},@function")
    E(f"{name}:")
    E("  s_cmp_ge_u32 s2, 256")
    E("  s_cbranch_scc1 L_end")
    E("  s_load_dwordx16 s[4:19], s[0:1], 0")
    E("  s_load_dwordx8 s[20:27], s[0:1], 64")
    E("  s_load_dwordx2 s[28:29], s[0:1], 96")
    if DIAG:
        for i in range(18): E(f"  s_mov_b32 s{84+i}, 0")
    stamp()
    E(f"  v_mov_b32 v{tid}, v0")
    E(f"  v_and_b32 v{lane}, 63, v0")
    E(f"  v_lshrrev_b32 v{M+4}, 6, v0")
    E(f"  v_lshrrev_b32 v{g}, 4, v{lane}")
    E(f"  v_readfirstlane_b32 s60, v{M+4}")
    E(f"  v_and_b32 v{n}, 15, v{lane}")
    E("  s_mov_b32 s83, 0")
    E(f"  s_mov_b32 s{SELLO}, 0x05040100")
    E(f"  s_mov_b32 s{SELHI}, 0x07060302")
    E("  s_and_b32 s61, s2, 7")
    E("  s_lshr_b32 s62, s2, 3")
    E("  s_lshr_b32 s63, s62, 3")
    E("  s_and_b32 s64, s62, 7")
    E("  s_lshl_b32 s65, s63, 3")
    E("  s_add_u32 s65, s65, s61")
    E("  s_lshl_b32 s66, s65, 21")
    E("  s_lshl_b32 s67, s64, 18")
    E("  s_add_u32 s66, s66, s67")
    E("  s_lshl_b32 s67, s60, 15")
    E("  s_add_u32 s66, s66, s67")
    E(f"  v_lshlrev_b32 v{vk}, 8, v{n}")
    E(f"  v_lshl_add_u32 v{vk}, v{g}, 4, v{vk}")
    E(f"  v_lshlrev_b32 v{vv}, 10, v{g}")
    E(f"  v_lshl_add_u32 v{vv}, v{n}, 4, v{vv}")
    E("  s_waitcnt lgkmcnt(0)")
    srd(SK, 6, 0x4000000)
    srd(SV, 8, 0x4000000)
    srd(SW, 28, WS_BYTES)
    srd(SD, 26, 256)
    srd(SX, 4, 4096)
    srd(SO, 24, 4096)
    E("  s_cmp_eq_u32 s60, 0")
    E("  s_cbranch_scc1 L_stage1")
    E("L_loads:")
    q = []
    def ld(nm): q.append(nm)
    def wait_for(nm):
        idx = max(i for i, x in enumerate(q) if x == nm)
        E(f"  s_waitcnt vmcnt({len(q)-1-idx})")
        del q[:idx+1]
    def kload(t):
        E(f"  s_add_u32 s67, s66, {t*4096}")
        for j in range(4):
            r = KR + 16*t + 4*j
            E(f"  buffer_load_dwordx4 v[{r}:{r+3}], v{vk}, {S(SK)}, s67 offen offset:{64*j} {KVF}")
            ld(f"k{t}")
    def vload(t, base):
        for half in range(2):
            E(f"  s_add_u32 s67, s66, {t*8192+half*4096}")
            for k4 in range(4):
                r = base + 4*(half*4+k4)
                E(f"  buffer_load_dwordx4 v[{r}:{r+3}], v{vv}, {S(SV)}, s67 offen offset:{256*k4} {KVF}")
                ld(f"v{t}")
    for t in range(8): kload(t)
    vload(0, VR); vload(1, VR+32)
    E("  s_cmp_eq_u32 s60, 0")
    E("  s_cbranch_scc1 L_afterbar")
    E("  s_barrier")
    E("L_afterbar:")
    stamp()
    E(f"  v_and_b32 v{M+9}, 3, v{n}")
    E(f"  v_lshlrev_b32 v{M+9}, 8, v{M+9}")
    E(f"  v_lshl_add_u32 v{M+9}, v{g}, 4, v{M+9}")
    for j in range(4):
        E(f"  ds_read_b128 v[{QR+4*j}:{QR+4*j+3}], v{M+9} offset:{64*j}")
    E("  s_waitcnt lgkmcnt(0)")
    for t in range(8):
        wait_for(f"k{t}")
        s = SR + 4*t
        for j in range(4):
            r = KR + 16*t + 4*j
            c = "0" if j == 0 else f"v[{s}:{s+3}]"
            E(f"  v_mfma_f32_16x16x32_bf16 v[{s}:{s+3}], v[{r}:{r+3}], v[{QR+4*j}:{QR+4*j+3}], {c}")
        if t == 1: vload(2, KR)
        if t == 3: vload(3, KR+32)
    stamp()
    E("  s_nop 7")
    mx, t1, ls = M+8, M+9, M+10
    E(f"  v_max3_f32 v{mx}, v{SR}, v{SR+1}, v{SR+2}")
    i = 3
    while i < 32:
        if i + 1 < 32:
            E(f"  v_max3_f32 v{mx}, v{mx}, v{SR+i}, v{SR+i+1}"); i += 2
        else:
            E(f"  v_max_f32 v{mx}, v{mx}, v{SR+i}"); i += 1
    E(f"  v_mov_b32 v{t1}, v{mx}")
    E("  s_nop 1")
    E(f"  v_permlane16_swap_b32 v{mx}, v{t1}")
    E(f"  v_max_f32 v{mx}, v{mx}, v{t1}")
    E(f"  v_mov_b32 v{t1}, v{mx}")
    E("  s_nop 1")
    E(f"  v_permlane32_swap_b32 v{mx}, v{t1}")
    E(f"  v_max_f32 v{mx}, v{mx}, v{t1}")
    cval = (128 ** -0.5) * math.log2(math.e)
    cbits = struct.unpack("<I", struct.pack("<f", cval))[0]
    E(f"  s_mov_b32 s82, {cbits:#x}")
    E(f"  v_mul_f32 v{mx}, s82, v{mx}")
    for i in range(32):
        E(f"  v_fma_f32 v{SR+i}, v{SR+i}, s82, -v{mx}")
    for i in range(32):
        E(f"  v_exp_f32 v{SR+i}, v{SR+i}")
    E("  s_nop 0")
    E(f"  v_add_f32 v{ls}, v{SR}, v{SR+1}")
    for i in range(2, 32):
        E(f"  v_add_f32 v{ls}, v{ls}, v{SR+i}")
    for t in range(4):
        for h in range(4):
            a = SR + 8*t + 2*h
            E(f"  v_cvt_pk_bf16_f32 v{QR+4*t+h}, v{a}, v{a+1}")
    E(f"  v_mov_b32 v{t1}, v{ls}")
    E("  s_nop 1")
    E(f"  v_permlane16_swap_b32 v{ls}, v{t1}")
    E(f"  v_add_f32 v{ls}, v{ls}, v{t1}")
    E(f"  v_mov_b32 v{t1}, v{ls}")
    E("  s_nop 1")
    E(f"  v_permlane32_swap_b32 v{ls}, v{t1}")
    E(f"  v_add_f32 v{ls}, v{ls}, v{t1}")
    ACC = KR + 64; T = KR + 96
    vbase = [VR, VR+32, KR, KR+32]
    for t in range(4):
        wait_for(f"v{t}")
        if t == 3:
            stamp()
            E("  s_cmp_eq_u32 s60, 1")
            E("  s_cbranch_scc1 L_pf_wo")
            E("  s_cmp_eq_u32 s60, 2")
            E("  s_cbranch_scc0 L_pf_done")
            E("  s_cmp_ge_u32 s2, 112")
            E("  s_cbranch_scc1 L_pf_done")
            srd(ST, 20, 0x1c0000)
            E("  s_lshr_b32 s68, s2, 2")
            E("  s_lshl_b32 s68, s68, 16")
            E("  s_and_b32 s69, s2, 3")
            E("  s_branch L_pf_go")
            E("L_pf_wo:")
            srd(ST, 12, 0x400000)
            E("  s_lshl_b32 s68, s61, 3")
            E("  s_lshr_b32 s69, s62, 2")
            E("  s_add_u32 s68, s68, s69")
            E("  s_lshl_b32 s68, s68, 16")
            E("  s_and_b32 s69, s62, 3")
            E("L_pf_go:")
            E("  s_lshl_b32 s69, s69, 8")
            E("  s_add_u32 s68, s68, s69")
            E(f"  v_lshlrev_b32 v{M+11}, 13, v{g}")
            E(f"  v_lshl_add_u32 v{M+11}, v{n}, 4, v{M+11}")
            for blk in range(2):
                for half in range(2):
                    E(f"  s_add_u32 s69, s68, {blk*32768+half*4096}")
                    for k4 in range(4):
                        r = VR + 32*blk + 4*(half*4+k4)
                        E(f"  buffer_load_dwordx4 v[{r}:{r+3}], v{M+11}, {S(ST)}, s69 offen offset:{1024*k4}")
            E("L_pf_done:")
        gemv_block(vbase[t], QR+4*t, T, ACC, first=(t == 0))
    E("  s_lshl_b32 s67, s60, 11")
    E(f"  v_lshlrev_b32 v{M+11}, 7, v{n}")
    E(f"  v_add_u32 v{M+11}, s67, v{M+11}")
    E(f"  v_cmp_gt_u32 vcc, 16, v{lane}")
    E("  s_nop 4")
    E("  s_and_saveexec_b64 s[70:71], vcc")
    for j in range(8):
        E(f"  ds_write_b128 v{M+11}, v[{ACC+4*j}:{ACC+4*j+3}] offset:{1024+16*j}")
    E("  s_mov_b64 exec, s[70:71]")
    E("  s_lshl_b32 s67, s60, 5")
    E(f"  v_lshlrev_b32 v{M+11}, 3, v{lane}")
    E(f"  v_add_u32 v{M+11}, s67, v{M+11}")
    E(f"  v_mov_b32 v{M+12}, v{mx}")
    E(f"  v_mov_b32 v{M+13}, v{ls}")
    E(f"  v_cmp_gt_u32 vcc, 4, v{lane}")
    E("  s_nop 1")
    E("  s_and_saveexec_b64 s[70:71], vcc")
    E(f"  ds_write_b64 v{M+11}, v[{M+12}:{M+13}] offset:17408")
    E("  s_mov_b64 exec, s[70:71]")
    E("  s_waitcnt lgkmcnt(0)")
    E("  s_barrier")
    E(f"  v_lshrrev_b32 v0, 7, v{tid}")
    E(f"  v_and_b32 v1, 127, v{tid}")
    E("  v_lshlrev_b32 v2, 3, v0")
    E("  v_lshlrev_b32 v3, 4, v1")
    E("  v_lshl_add_u32 v3, v0, 2, v3")
    for w in range(8):
        E(f"  ds_read_b64 v[{8+2*w}:{9+2*w}], v2 offset:{17408+32*w}")
    for w in range(8):
        E(f"  ds_read_b32 v{24+w}, v3 offset:{1024+2048*w}")
    E("  s_waitcnt lgkmcnt(0)")
    E("  v_max3_f32 v4, v8, v10, v12")
    E("  v_max3_f32 v4, v4, v14, v16")
    E("  v_max3_f32 v4, v4, v18, v20")
    E("  v_max_f32 v4, v4, v22")
    for w in range(8):
        E(f"  v_sub_f32 v{8+2*w}, v{8+2*w}, v4")
    for w in range(8):
        E(f"  v_exp_f32 v{8+2*w}, v{8+2*w}")
    E("  s_nop 0")
    E("  v_mul_f32 v5, v8, v9")
    E("  v_mul_f32 v6, v8, v24")
    for w in range(1, 8):
        E(f"  v_fmac_f32 v5, v{8+2*w}, v{9+2*w}")
        E(f"  v_fmac_f32 v6, v{8+2*w}, v{24+w}")
    E("  v_min_u32 v4, 0xfffffffe, v4")
    E("  v_min_u32 v5, 0xfffffffe, v5")
    E("  v_min_u32 v6, 0xfffffffe, v6")
    E("  s_lshl_b32 s67, s65, 5")
    E("  s_add_u32 s67, s67, s64")
    E("  s_lshl_b32 s68, s67, 9")
    E(f"  s_add_u32 s68, s68, {AO:#x}")
    E("  v_lshlrev_b32 v7, 12, v0")
    E("  v_lshl_add_u32 v7, v1, 2, v7")
    E(f"  buffer_store_dword v6, v7, {S(SW)}, s68 offen sc1")
    E("  s_lshl_b32 s68, s67, 3")
    E(f"  s_add_u32 s68, s68, {AML:#x}")
    E("  v_lshlrev_b32 v7, 6, v0")
    E("  v_cmp_eq_u32 vcc, 0, v1")
    E("  s_nop 1")
    E("  s_and_saveexec_b64 s[70:71], vcc")
    E("  s_cbranch_execz L_noml")
    E(f"  buffer_store_dwordx2 v[4:5], v7, {S(SW)}, s68 offen sc1")
    E("L_noml:")
    E("  s_mov_b64 exec, s[70:71]")
    stamp()
    E("  s_cmp_eq_u32 s60, 1")
    E("  s_cbranch_scc1 L_tail_wo")
    E("  s_cmp_eq_u32 s60, 3")
    E("  s_cbranch_scc1 L_tail_fin")
    E("  s_cmp_eq_u32 s60, 2")
    E("  s_cbranch_scc0 L_exit")
    E("  s_cmp_ge_u32 s2, 112")
    E("  s_cbranch_scc1 L_exit")
    E(f"  v_and_b32 v0, 3, v{n}")
    E(f"  v_lshrrev_b32 v1, 2, v{n}")
    E("  v_lshl_add_u32 v2, v1, 2, v0")
    E("  s_movk_i32 s67, 30720")
    E("  v_mul_lo_u32 v2, v2, s67")
    E(f"  v_lshl_add_u32 v2, v{g}, 5, v2")
    E("  s_lshr_b32 s68, s2, 2")
    E("  s_lshl_b32 s69, s68, 8")
    E("  s_add_u32 s69, s69, 16384")
    E("  s_add_u32 s72, s69, 7168")
    for blk in range(2):
        E(f"  buffer_load_dwordx4 v[{8+8*blk}:{11+8*blk}], v2, {S(SW)}, s69 offen offset:{128*blk} sc1")
        E(f"  buffer_load_dwordx4 v[{12+8*blk}:{15+8*blk}], v2, {S(SW)}, s69 offen offset:{128*blk+16} sc1")
        E(f"  buffer_load_dwordx4 v[{24+8*blk}:{27+8*blk}], v2, {S(SW)}, s72 offen offset:{128*blk} sc1")
        E(f"  buffer_load_dwordx4 v[{28+8*blk}:{31+8*blk}], v2, {S(SW)}, s72 offen offset:{128*blk+16} sc1")
    E("  v_lshlrev_b32 v3, 2, v0")
    E(f"  s_mov_b32 s73, {GOFF:#x}")
    E(f"  buffer_load_dword v4, v3, {S(SW)}, s73 offen sc1")
    E("  s_waitcnt vmcnt(0)")
    for r in (4, 8):
        for i in range(32):
            E(f"  v_add_f32_dpp v{8+i}, v{8+i}, v{8+i} row_ror:{r} row_mask:0xf bank_mask:0xf")
    E("  v_sub_f32 v4, 1.0, v4")
    for i in range(16):
        E(f"  v_mul_f32 v{8+i}, 0xbfb8aa3b, v{8+i}")
    for i in range(16):
        E(f"  v_exp_f32 v{8+i}, v{8+i}")
    for i in range(16):
        E(f"  v_mul_f32 v{24+i}, v{24+i}, v4")
    for i in range(16):
        E(f"  v_add_f32 v{8+i}, 1.0, v{8+i}")
    for i in range(16):
        E(f"  v_rcp_f32 v{8+i}, v{8+i}")
    E("  s_nop 0")
    for i in range(16):
        E(f"  v_mul_f32 v{8+i}, v{8+i}, v{24+i}")
    for i in range(8):
        E(f"  v_cvt_pk_bf16_f32 v{40+i}, v{8+2*i}, v{9+2*i}")
    E("  s_and_b32 s69, s2, 3")
    E(f"  s_mul_i32 s69, s69, {NT}")
    E("  s_add_u32 s69, s69, s68")
    E("  s_add_u32 s69, s69, 64")
    E("  s_branch L_tail_mm")
    E("L_tail_wo:")
    E(f"  v_and_b32 v0, 3, v{n}")
    E(f"  v_lshrrev_b32 v1, 2, v{n}")
    E("  s_lshr_b32 s68, s62, 3")
    E("  s_lshl_b32 s69, s61, 2")
    E("  s_add_u32 s69, s69, s68")
    E("  v_lshlrev_b32 v2, 17, v0")
    E("  v_lshl_add_u32 v2, v1, 10, v2")
    E(f"  v_lshl_add_u32 v2, v{g}, 5, v2")
    E("  s_lshl_b32 s72, s69, 12")
    E("  s_lshr_b32 s73, s62, 2")
    E("  s_and_b32 s73, s73, 1")
    E("  s_lshl_b32 s73, s73, 8")
    E("  s_add_u32 s72, s72, s73")
    E(f"  s_add_u32 s72, s72, {AO:#x}")
    E("  v_lshlrev_b32 v3, 11, v0")
    E("  v_lshl_add_u32 v5, v1, 4, v3")
    E("  s_lshl_b32 s73, s69, 6")
    E(f"  s_add_u32 s73, s73, {AML:#x}")
    E("  v_lshlrev_b32 v6, 2, v0")
    E(f"  s_mov_b32 s74, {GOFF:#x}")
    E(f"  buffer_load_dword v4, v6, {S(SW)}, s74 offen sc1")
    E("L_poll1:")
    for s in range(2):
        for blk in range(2):
            r = 8 + 16*s + 8*blk
            E(f"  buffer_load_dwordx4 v[{r}:{r+3}], v2, {S(SW)}, s72 offen offset:{512*s+128*blk} sc1")
            E(f"  buffer_load_dwordx4 v[{r+4}:{r+7}], v2, {S(SW)}, s72 offen offset:{512*s+128*blk+16} sc1")
    for i in range(4):
        E(f"  buffer_load_dwordx4 v[{40+4*i}:{43+4*i}], v3, {S(SW)}, s73 offen offset:{16*i} sc1")
    E(f"  buffer_load_dwordx4 v[56:59], v5, {S(SW)}, s73 offen sc1")
    E("  s_waitcnt vmcnt(0)")
    E("  v_max3_u32 v7, v8, v9, v10")
    i = 11
    while i < 60:
        if i + 1 < 60:
            E(f"  v_max3_u32 v7, v7, v{i}, v{i+1}"); i += 2
        else:
            E(f"  v_max_u32 v7, v7, v{i}"); i += 1
    E("  v_cmp_eq_u32 vcc, -1, v7")
    E("  s_nop 1")
    E("  s_cmp_eq_u64 vcc, 0")
    E("  s_cbranch_scc1 L_poll1_done")
    E("  s_add_u32 s83, s83, 1")
    E("  s_cmp_gt_u32 s83, 0x40000")
    E("  s_cbranch_scc1 L_poll1_done")
    E("  s_sleep 1")
    E("  s_branch L_poll1")
    E("L_poll1_done:")
    stamp()
    E("  v_max3_f32 v7, v40, v42, v44")
    E("  v_max3_f32 v7, v7, v46, v48")
    E("  v_max3_f32 v7, v7, v50, v52")
    E("  v_max_f32 v7, v7, v54")
    for s in range(8):
        E(f"  v_sub_f32 v{40+2*s}, v{40+2*s}, v7")
    E("  v_sub_f32 v56, v56, v7")
    E("  v_sub_f32 v58, v58, v7")
    for s in range(8):
        E(f"  v_exp_f32 v{40+2*s}, v{40+2*s}")
    E("  v_exp_f32 v56, v56")
    E("  v_exp_f32 v58, v58")
    E("  v_mul_f32 v7, v40, v41")
    for s in range(1, 8):
        E(f"  v_fmac_f32 v7, v{40+2*s}, v{41+2*s}")
    E("  v_rcp_f32 v7, v7")
    E("  s_nop 0")
    E("  v_mul_f32 v7, v7, v4")
    E("  v_mul_f32 v56, v56, v7")
    E("  v_mul_f32 v58, v58, v7")
    for i in range(16):
        E(f"  v_mul_f32 v{8+i}, v{8+i}, v56")
    for i in range(16):
        E(f"  v_fmac_f32 v{8+i}, v{24+i}, v58")
    for r in (4, 8):
        for i in range(16):
            E(f"  v_add_f32_dpp v{8+i}, v{8+i}, v{8+i} row_ror:{r} row_mask:0xf bank_mask:0xf")
    for i in range(8):
        E(f"  v_cvt_pk_bf16_f32 v{40+i}, v{8+2*i}, v{9+2*i}")
    E("  s_and_b32 s69, s62, 3")
    E(f"  s_mul_i32 s69, s69, {NT}")
    E("  s_lshl_b32 s68, s61, 3")
    E("  s_add_u32 s69, s69, s68")
    E("  s_lshr_b32 s68, s62, 2")
    E("  s_add_u32 s69, s69, s68")
    E("L_tail_mm:")
    E("  s_waitcnt vmcnt(0)")
    gemv_block(VR, 40, 96, 64, first=True)
    gemv_block(VR+32, 44, 96, 64, first=False)
    E("  s_lshl_b32 s69, s69, 11")
    E(f"  s_add_u32 s69, s69, {L2:#x}")
    E(f"  v_lshlrev_b32 v2, 7, v{n}")
    E(f"  v_cmp_gt_u32 vcc, 16, v{lane}")
    E("  s_nop 4")
    for i in range(32):
        E(f"  v_min_u32 v{64+i}, 0xfffffffe, v{64+i}")
    E("  s_and_saveexec_b64 s[70:71], vcc")
    for j in range(8):
        E(f"  buffer_store_dwordx4 v[{64+4*j}:{67+4*j}], v2, {S(SW)}, s69 offen offset:{16*j} sc1")
    E("  s_mov_b64 exec, s[70:71]")
    stamp()
    E("  s_branch L_exit")
    E("L_tail_fin:")
    E(f"  v_lshrrev_b32 v0, 1, v{lane}")
    E(f"  v_and_b32 v1, 1, v{lane}")
    E("  s_lshr_b32 s68, s2, 6")
    E(f"  s_mul_i32 s68, s68, {NT*2048}")
    E("  s_and_b32 s69, s2, 63")
    E("  s_lshl_b32 s69, s69, 5")
    E("  s_add_u32 s68, s68, s69")
    E(f"  s_add_u32 s68, s68, {L2:#x}")
    E("  v_lshlrev_b32 v2, 11, v0")
    E("  v_lshl_add_u32 v2, v1, 4, v2")
    E("  s_add_u32 s69, s68, 65536")
    E("  v_cmp_gt_u32 vcc, 28, v0")
    E("  v_add_u32 v3, 0x20000, v2")
    E("  s_nop 0")
    E("  v_cndmask_b32 v3, v2, v3, vcc")
    E("L_poll2:")
    E(f"  buffer_load_dwordx4 v[8:11], v2, {S(SW)}, s68 offen sc1")
    E(f"  buffer_load_dwordx4 v[12:15], v2, {S(SW)}, s69 offen sc1")
    E(f"  buffer_load_dwordx4 v[16:19], v3, {S(SW)}, s68 offen sc1")
    E("  s_waitcnt vmcnt(0)")
    E("  v_max3_u32 v7, v8, v9, v10")
    E("  v_max3_u32 v7, v7, v11, v12")
    E("  v_max3_u32 v7, v7, v13, v14")
    E("  v_max3_u32 v7, v7, v15, v16")
    E("  v_max3_u32 v7, v7, v17, v18")
    E("  v_max_u32 v7, v7, v19")
    E("  v_cmp_eq_u32 vcc, -1, v7")
    E("  s_nop 1")
    E("  s_cmp_eq_u64 vcc, 0")
    E("  s_cbranch_scc1 L_poll2_done")
    E("  s_add_u32 s83, s83, 1")
    E("  s_cmp_gt_u32 s83, 0x40000")
    E("  s_cbranch_scc1 L_poll2_done")
    E("  s_sleep 1")
    E("  s_branch L_poll2")
    E("L_poll2_done:")
    stamp()
    E("  v_cmp_gt_u32 vcc, 28, v0")
    E("  s_nop 1")
    for i in range(4):
        E(f"  v_cndmask_b32 v{16+i}, 0, v{16+i}, vcc")
    for i in range(4):
        E(f"  v_add_f32 v{8+i}, v{8+i}, v{12+i}")
    for i in range(4):
        E(f"  v_add_f32 v{8+i}, v{8+i}, v{16+i}")
    for r in (2, 4, 8):
        E("  s_nop 1")
        for i in range(4):
            E(f"  v_add_f32_dpp v{8+i}, v{8+i}, v{8+i} row_ror:{r} row_mask:0xf bank_mask:0xf")
    for i in range(4): E(f"  v_mov_b32 v{12+i}, v{8+i}")
    E("  s_nop 1")
    for i in range(4): E(f"  v_permlane16_swap_b32 v{8+i}, v{12+i}")
    for i in range(4): E(f"  v_add_f32 v{8+i}, v{8+i}, v{12+i}")
    for i in range(4): E(f"  v_mov_b32 v{12+i}, v{8+i}")
    E("  s_nop 1")
    for i in range(4): E(f"  v_permlane32_swap_b32 v{8+i}, v{12+i}")
    for i in range(4): E(f"  v_add_f32 v{8+i}, v{8+i}, v{12+i}")
    E("  s_nop 1")
    for i in range(4):
        E(f"  v_mov_b32_dpp v{12+i}, v{8+i} quad_perm:[1,0,3,2] row_mask:0xf bank_mask:0xf")
    for i in range(4):
        E(f"  v_cvt_pk_bf16_f32 v{8+i}, v{8+i}, v{12+i}")
    E("  s_lshl_b32 s68, s2, 2")
    E("  v_mov_b32 v2, 0")
    E(f"  v_cmp_eq_u32 vcc, 0, v{lane}")
    E("  s_nop 1")
    E("  s_and_saveexec_b64 s[70:71], vcc")
    for i in range(4):
        E(f"  buffer_store_dword v{8+i}, v2, {S(SO)}, s68 offen offset:{1024*i}")
    E("  s_mov_b64 exec, s[70:71]")
    E("L_exit:")
    if DIAG:
        E("  s_memrealtime s[100:101]")
        E("  s_waitcnt lgkmcnt(0)")
        E("  s_lshl_b32 s68, s2, 3")
        E("  s_add_u32 s68, s68, s60")
        E("  s_lshl_b32 s68, s68, 6")
        E(f"  s_add_u32 s68, s68, {DIAGOFF:#x}")
        for i in range(9):
            E(f"  v_mov_b32 v{8+i}, s{84+2*i}")
        E("  v_mov_b32 v2, 0")
        E(f"  v_cmp_eq_u32 vcc, 0, v{lane}")
        E("  s_nop 1")
        E("  s_and_saveexec_b64 s[70:71], vcc")
        E(f"  buffer_store_dwordx4 v[8:11], v2, {S(SW)}, s68 offen")
        E(f"  buffer_store_dwordx4 v[12:15], v2, {S(SW)}, s68 offen offset:16")
        E(f"  buffer_store_dword v16, v2, {S(SW)}, s68 offen offset:32")
    E("L_end:")
    E("  s_endpgm")

    E("L_stage1:")
    E("  s_setprio 3")
    for i in range(4): E(f"  v_mov_b32 v{160+i}, -1")
    E("  s_lshl_b32 s67, s65, 5")
    E("  s_add_u32 s67, s67, s64")
    E("  s_lshl_b32 s68, s67, 9")
    E(f"  s_add_u32 s68, s68, {AO:#x}")
    E(f"  v_lshlrev_b32 v164, 12, v{g}")
    E(f"  v_lshl_add_u32 v164, v{n}, 5, v164")
    E(f"  buffer_store_dwordx4 v[160:163], v164, {S(SW)}, s68 offen sc1")
    E(f"  buffer_store_dwordx4 v[160:163], v164, {S(SW)}, s68 offen offset:16 sc1")
    E("  s_lshl_b32 s68, s67, 3")
    E(f"  s_add_u32 s68, s68, {AML:#x}")
    E(f"  v_lshlrev_b32 v164, 6, v{g}")
    E(f"  buffer_store_dwordx2 v[160:161], v164, {S(SW)}, s68 offen sc1")
    E("  s_and_b32 s69, s62, 3")
    E(f"  s_mul_i32 s69, s69, {NT}")
    E("  s_lshl_b32 s68, s61, 3")
    E("  s_add_u32 s69, s69, s68")
    E("  s_lshr_b32 s68, s62, 2")
    E("  s_add_u32 s69, s69, s68")
    E("  s_lshl_b32 s69, s69, 11")
    E(f"  s_add_u32 s69, s69, {L2:#x}")
    E(f"  v_lshlrev_b32 v164, 5, v{lane}")
    E(f"  buffer_store_dwordx4 v[160:163], v164, {S(SW)}, s69 offen sc1")
    E(f"  buffer_store_dwordx4 v[160:163], v164, {S(SW)}, s69 offen offset:16 sc1")
    E("  s_cmp_ge_u32 s2, 112")
    E("  s_cbranch_scc1 L_s1_noffnclr")
    E("  s_and_b32 s69, s2, 3")
    E(f"  s_mul_i32 s69, s69, {NT}")
    E("  s_lshr_b32 s68, s2, 2")
    E("  s_add_u32 s69, s69, s68")
    E("  s_add_u32 s69, s69, 64")
    E("  s_lshl_b32 s69, s69, 11")
    E(f"  s_add_u32 s69, s69, {L2:#x}")
    E(f"  buffer_store_dwordx4 v[160:163], v164, {S(SW)}, s69 offen sc1")
    E(f"  buffer_store_dwordx4 v[160:163], v164, {S(SW)}, s69 offen offset:16 sc1")
    E("L_s1_noffnclr:")
    E("  s_cmp_ge_u32 s62, 30")
    E("  s_cbranch_scc1 L_s1_gate")
    E("  s_cmp_ge_u32 s62, 16")
    E("  s_cbranch_scc1 L_s1_ffn")
    srd(ST, 10, 0x400000)
    E("  s_movk_i32 s72, 8192")
    E("  s_lshl_b32 s68, s61, 2")
    E("  s_lshr_b32 s69, s62, 2")
    E("  s_add_u32 s68, s68, s69")
    E("  s_and_b32 s73, s62, 3")
    E("  s_lshl_b32 s74, s68, 8")
    E("  s_lshl_b32 s75, s68, 9")
    E("  s_branch L_s1_go")
    E("L_s1_ffn:")
    E("  s_mul_i32 s68, s61, 14")
    E("  s_add_u32 s68, s68, s62")
    E("  s_sub_u32 s68, s68, 16")
    E("  s_and_b32 s73, s68, 3")
    E("  s_lshr_b32 s68, s68, 2")
    E("  s_movk_i32 s72, 3584")
    E("  s_lshl_b32 s75, s68, 9")
    E("  s_add_u32 s75, s75, 16384")
    E("  s_cmp_ge_u32 s68, 14")
    E(f"  s_cselect_b32 s{ST}, s18, s16")
    E(f"  s_cselect_b32 s{ST+1}, s19, s17")
    E("  s_cselect_b32 s69, 14, 0")
    E(f"  s_and_b32 s{ST+1}, s{ST+1}, 0xffff")
    E(f"  s_mov_b32 s{ST+2}, 0x1c0000")
    E(f"  s_mov_b32 s{ST+3}, 0x00020000")
    E("  s_sub_u32 s68, s68, s69")
    E("  s_lshl_b32 s74, s68, 8")
    E("L_s1_go:")
    E("  s_lshl_b32 s68, s73, 7")
    E(f"  v_lshlrev_b32 v164, 3, v{g}")
    E("  v_add_u32 v164, s68, v164")
    E(f"  v_and_b32 v165, 3, v{n}")
    E("  v_lshlrev_b32 v165, 10, v165")
    E("  v_lshl_add_u32 v165, v164, 1, v165")
    for blk in range(4):
        E(f"  buffer_load_dwordx4 v[{128+4*blk}:{131+4*blk}], v165, {S(SX)}, 0 offen offset:{64*blk}")
    E("  v_mul_lo_u32 v166, v164, s72")
    E(f"  v_lshl_add_u32 v166, v{n}, 4, v166")
    E("  v_add_u32 v166, s74, v166")
    E("  s_mov_b32 s69, 0")
    E("  s_mul_i32 s76, s72, 24")
    for blk in range(4):
        for kk in range(8):
            r = 32*blk + 4*kk
            E(f"  buffer_load_dwordx4 v[{r}:{r+3}], v166, {S(ST)}, s69 offen")
            E("  s_add_u32 s69, s69, s72")
        if blk < 3: E("  s_add_u32 s69, s69, s76")
    for blk in range(4):
        E(f"  s_waitcnt vmcnt({8*(3-blk)})")
        gemv_block(32*blk, 128+4*blk, 144, 192, first=(blk == 0))
    E("  s_nop 7")
    for b in range(4):
        for j in range(8):
            E(f"  v_mov_b32 v{8*b+j}, v{192+4*j+b}")
    E("  s_mul_i32 s68, s73, 122880")
    E("  s_add_u32 s68, s68, s75")
    E(f"  v_lshlrev_b32 v164, 5, v{n}")
    E(f"  v_cmp_gt_u32 vcc, 16, v{lane}")
    E("  s_nop 1")
    E("  s_and_saveexec_b64 s[70:71], vcc")
    for b in range(4):
        E(f"  buffer_store_dwordx4 v[{8*b}:{8*b+3}], v164, {S(SW)}, s68 offen sc1")
        E(f"  buffer_store_dwordx4 v[{8*b+4}:{8*b+7}], v164, {S(SW)}, s68 offen offset:16 sc1")
        if b < 3: E("  s_add_u32 s68, s68, 30720")
    E("  s_mov_b64 exec, s[70:71]")
    E("  s_branch L_s1_signal")
    E("L_s1_gate:")
    E("  s_cmp_lg_u32 s2, 240")
    E("  s_cbranch_scc1 L_s1_signal")
    srd(ST, 22, 1024)
    E(f"  v_lshlrev_b32 v164, 4, v{lane}")
    E(f"  buffer_load_dwordx4 v[16:19], v164, {S(ST)}, 0 offen")
    for b in range(4):
        E(f"  buffer_load_dwordx4 v[{4*b}:{4*b+3}], v164, {S(SX)}, 0 offen offset:{1024*b}")
    E("  s_waitcnt vmcnt(0)")
    for b in range(4):
        E(f"  v_mov_b32 v{24+b}, 0")
    for c in range(4):
        E(f"  v_lshlrev_b32 v20, 16, v{16+c}")
        E(f"  v_and_b32 v21, 0xffff0000, v{16+c}")
        for b in range(4):
            E(f"  v_lshlrev_b32 v22, 16, v{4*b+c}")
            E(f"  v_and_b32 v23, 0xffff0000, v{4*b+c}")
            E(f"  v_fmac_f32 v{24+b}, v20, v22")
            E(f"  v_fmac_f32 v{24+b}, v21, v23")
    for r in (8, 4, 2, 1):
        E("  s_nop 1")
        for b in range(4):
            E(f"  v_add_f32_dpp v{24+b}, v{24+b}, v{24+b} row_ror:{r} row_mask:0xf bank_mask:0xf")
    for i in range(4): E(f"  v_mov_b32 v{28+i}, v{24+i}")
    E("  s_nop 1")
    for i in range(4): E(f"  v_permlane16_swap_b32 v{24+i}, v{28+i}")
    for i in range(4): E(f"  v_add_f32 v{24+i}, v{24+i}, v{28+i}")
    for i in range(4): E(f"  v_mov_b32 v{28+i}, v{24+i}")
    E("  s_nop 1")
    for i in range(4): E(f"  v_permlane32_swap_b32 v{24+i}, v{28+i}")
    for i in range(4): E(f"  v_add_f32 v{24+i}, v{24+i}, v{28+i}")
    for i in range(4): E(f"  v_mul_f32 v{24+i}, 0xbfb8aa3b, v{24+i}")
    for i in range(4): E(f"  v_exp_f32 v{24+i}, v{24+i}")
    E("  s_nop 0")
    for i in range(4): E(f"  v_add_f32 v{24+i}, 1.0, v{24+i}")
    for i in range(4): E(f"  v_rcp_f32 v{24+i}, v{24+i}")
    E(f"  s_mov_b32 s68, {GOFF:#x}")
    E("  v_mov_b32 v164, 0")
    E(f"  v_cmp_eq_u32 vcc, 0, v{lane}")
    E("  s_nop 1")
    E("  s_and_saveexec_b64 s[70:71], vcc")
    E(f"  buffer_store_dwordx4 v[24:27], v164, {S(SW)}, s68 offen sc1")
    E("  s_mov_b64 exec, s[70:71]")
    E("L_s1_signal:")
    E("  s_waitcnt vmcnt(0)")
    E("  s_lshl_b32 s68, s61, 5")
    E("  v_mov_b32 v164, 0")
    E("  v_mov_b32 v165, 1")
    E(f"  v_cmp_eq_u32 vcc, 0, v{lane}")
    E("  s_nop 1")
    E("  s_and_saveexec_b64 s[70:71], vcc")
    E(f"  buffer_atomic_add v165, v164, {S(SD)}, s68 offen sc1")
    E("  s_mov_b64 exec, s[70:71]")
    E(f"  v_and_b32 v164, 7, v{lane}")
    E("  v_lshlrev_b32 v164, 5, v164")
    E("L_poll0:")
    E(f"  buffer_load_dword v165, v164, {S(SD)}, 0 offen sc1")
    E("  s_waitcnt vmcnt(0)")
    E("  v_cmp_ne_u32 vcc, 32, v165")
    E("  s_nop 1")
    E("  s_cmp_eq_u64 vcc, 0")
    E("  s_cbranch_scc1 L_poll0_done")
    E("  s_add_u32 s83, s83, 1")
    E("  s_cmp_gt_u32 s83, 0x40000")
    E("  s_cbranch_scc1 L_poll0_done")
    E("  s_sleep 1")
    E("  s_branch L_poll0")
    E("L_poll0_done:")
    E("  s_mul_i32 s68, s63, 30720")
    E("  s_lshl_b32 s69, s61, 11")
    E("  s_add_u32 s68, s68, s69")
    E(f"  v_lshlrev_b32 v164, 5, v{lane}")
    for kq in range(4):
        E(f"  buffer_load_dwordx4 v[{8*kq}:{8*kq+3}], v164, {S(SW)}, s68 offen sc1")
        E(f"  buffer_load_dwordx4 v[{8*kq+4}:{8*kq+7}], v164, {S(SW)}, s68 offen offset:16 sc1")
        if kq < 3: E("  s_add_u32 s68, s68, 122880")
    E("  s_waitcnt vmcnt(0)")
    for i in range(8):
        E(f"  v_add_f32 v{i}, v{i}, v{8+i}")
        E(f"  v_add_f32 v{16+i}, v{16+i}, v{24+i}")
    for i in range(8):
        E(f"  v_add_f32 v{i}, v{i}, v{16+i}")
    for i in range(4):
        E(f"  v_cvt_pk_bf16_f32 v{32+i}, v{2*i}, v{2*i+1}")
    E(f"  v_lshlrev_b32 v164, 4, v{lane}")
    E("  ds_write_b128 v164, v[32:35]")
    E("  s_waitcnt lgkmcnt(0)")
    E("  s_barrier")
    E("  s_setprio 0")
    E("  s_branch L_loads")

    E(".section .rodata,\"a\"")
    E(".p2align 6")
    E(f".amdhsa_kernel {name}")
    E("  .amdhsa_next_free_vgpr 256")
    E("  .amdhsa_next_free_sgpr 102")
    E("  .amdhsa_accum_offset 256")
    E("  .amdhsa_group_segment_fixed_size 0")
    E("  .amdhsa_kernarg_size 104")
    E("  .amdhsa_user_sgpr_count 2")
    E("  .amdhsa_user_sgpr_kernarg_segment_ptr 1")
    E("  .amdhsa_system_sgpr_workgroup_id_x 1")
    E(".end_amdhsa_kernel")

E(HEADER.rstrip())
E("; @launch grid=(256,1,1) block=(512,1,1) lds=17664")
E('.amdgcn_target "amdgcn-amd-amdhsa--gfx950"')
E(".text")
kernel()
open(sys.argv[1], "w").write("\n".join(out) + "\n")
```

```python
import sys, os, math, struct
NAME = "gated_mix__gqa_block_cached__glu_gated_glu__decode"
KVF = os.environ.get("KVF", "nt")
DIAG = int(os.environ.get("DIAG", "0"))
S1F = os.environ.get("S1F", "")
FW = int(os.environ.get("FW", "0"))
DRY = int(os.environ.get("DRY", "1"))
PLN = os.environ.get("PLN", "")
PACE = int(os.environ.get("PACE", "6"))
SLP = int(os.environ.get("SLP", "4"))
out = []
def E(s=""): out.append(s)

P1 = 0x0
GOFF = 0x80000
AO = 0x100000
AML = 0x180000
L2 = 0x200000
DIAGOFF = 0x400000
FL = 0x300000
WS_BYTES = 0x10000000
NT = 92
NSEC = 12

HEADER = open("cdna_kernels/" + NAME + ".s.ref").read().split("; Override launch")[0]

def srd(d, b, nbytes):
    E(f"  s_mov_b32 s{d}, s{b}")
    E(f"  s_and_b32 s{d+1}, s{b+1}, 0xffff")
    E(f"  s_mov_b32 s{d+2}, {nbytes:#x}")
    E(f"  s_mov_b32 s{d+3}, 0x00020000")

SELLO, SELHI = 80, 81
def gemv_block(W, A, T, ACC, first=True):
    def perms(j):
        c = j >> 1
        sel = SELHI if (j & 1) else SELLO
        t = T + 4 * (j & 1)
        for i in range(4):
            E(f"  v_perm_b32 v{t+i}, v{W+4*(2*i+1)+c}, v{W+4*(2*i)+c}, s{sel}")
    def mfma(j):
        t = T + 4 * (j & 1)
        a = ACC + 4 * j
        c = "0" if first else f"v[{a}:{a+3}]"
        E(f"  v_mfma_f32_16x16x32_bf16 v[{a}:{a+3}], v[{A}:{A+3}], v[{t}:{t+3}], {c}")
    perms(0)
    for j in range(8):
        if j + 1 < 8:
            perms(j + 1)
        else:
            E("  s_nop 1")
        mfma(j)

def dstart(i):
    if DRY: E(f"L_sec{i}:")
def dend():
    if DRY: E("  s_cbranch_execz L_dry_done")
nstamp = [0]
def stamp(lvl=1):
    if (1 if DIAG == 9 else DIAG) != lvl and lvl != 0: return
    if not DIAG: return
    i = nstamp[0]; nstamp[0] += 1
    assert i < 8
    E(f"  s_memrealtime s[{84+2*i}:{85+2*i}]")

KR, VR, SR, QR, M = 0, 128, 192, 224, 240
tid, lane, g, n = M, M+1, M+2, M+3
vk, vv = M+6, M+7
SK, SV, SW, SD, ST, SX, SO = 32, 36, 40, 44, 48, 52, 56
def S(x): return f"s[{x}:{x+3}]"

def kernel():
    name = NAME + "_kernel"
    E(f".globl {name}")
    E(".p2align 8")
    E(f".type {name},@function")
    E(f"{name}:")
    E("  s_cmp_ge_u32 s2, 256")
    E("  s_cbranch_scc1 L_end")
    E("  s_load_dwordx16 s[4:19], s[0:1], 0")
    E("  s_load_dwordx8 s[20:27], s[0:1], 64")
    E("  s_load_dwordx2 s[28:29], s[0:1], 96")
    if DIAG:
        for i in range(18): E(f"  s_mov_b32 s{84+i}, 0")
    stamp(0)
    E(f"  v_mov_b32 v{tid}, v0")
    E(f"  v_and_b32 v{lane}, 63, v0")
    E(f"  v_lshrrev_b32 v{M+4}, 6, v0")
    E(f"  v_lshrrev_b32 v{g}, 4, v{lane}")
    E(f"  v_readfirstlane_b32 s60, v{M+4}")
    E(f"  v_and_b32 v{n}, 15, v{lane}")
    E("  s_mov_b32 s83, 0")
    E(f"  s_mov_b32 s{SELLO}, 0x05040100")
    E(f"  s_mov_b32 s{SELHI}, 0x07060302")
    E("  s_and_b32 s61, s2, 7")
    E("  s_lshr_b32 s62, s2, 3")
    E("  s_lshr_b32 s63, s62, 3")
    E("  s_and_b32 s64, s62, 7")
    E("  s_lshl_b32 s65, s63, 3")
    E("  s_add_u32 s65, s65, s61")
    E("  s_lshl_b32 s66, s65, 21")
    E("  s_lshl_b32 s67, s64, 18")
    E("  s_add_u32 s66, s66, s67")
    E("  s_lshl_b32 s67, s60, 15")
    E("  s_add_u32 s66, s66, s67")
    E("  s_lshl_b32 s77, s60, 14")
    E("  s_add_u32 s77, s77, 18432")
    E(f"  v_lshlrev_b32 v{vk}, 8, v{n}")
    E(f"  v_lshl_add_u32 v{vk}, v{g}, 4, v{vk}")
    E(f"  v_lshlrev_b32 v{vv}, 10, v{g}")
    E(f"  v_lshl_add_u32 v{vv}, v{n}, 4, v{vv}")
    E(f"  v_mov_b32 v{M+8}, 0")
    E(f"  v_mov_b32 v{M+9}, 17664")
    E(f"  ds_write_b32 v{M+9}, v{M+8}")
    E("  s_waitcnt lgkmcnt(0)")
    E("  s_barrier")
    srd(SK, 6, 0x4000000)
    srd(SV, 8, 0x4000000)
    srd(SW, 28, WS_BYTES)
    srd(SD, 26, 256)
    srd(SX, 4, 4096)
    srd(SO, 24, 4096)
    srd(ST, 28, WS_BYTES)
    E("  s_cmp_eq_u32 s60, 0")
    E("  s_cbranch_scc1 L_stage1")
    E("  s_lshl_b32 s67, s2, 3")
    E("  s_add_u32 s67, s67, s60")
    E("  s_cmp_lg_u32 s67, 1")
    E("  s_cbranch_scc1 L_nopub")
    E("  s_memrealtime s[78:79]")
    E("  s_waitcnt lgkmcnt(0)")
    E("  s_or_b32 s78, s78, 1")
    E("  s_or_b32 s79, s79, 0x80000000")
    E("  v_mov_b32 v8, s78")
    E("  v_mov_b32 v9, s79")
    E("  v_mov_b32 v10, 0")
    E("  s_mov_b64 exec, 1")
    E(f"  buffer_store_dwordx2 v[8:9], v10, {S(SD)}, 0 offen sc1")
    E("  s_mov_b64 exec, -1")
    E("L_nopub:")
    if DRY:
        E("  s_mov_b64 exec, 0")
        E("  s_sub_u32 s77, s60, 7")
        E("L_dry_done:")
        E("  s_add_u32 s77, s77, 7")
        for i in range(1, NSEC+1):
            E(f"  s_cmp_eq_u32 s77, {i}")
            E(f"  s_cbranch_scc1 L_sec{i}")
        E("  s_mov_b64 exec, -1")
    E("L_loads:")
    if FW:
        E(f"  v_mov_b32 v{M+9}, 17664")
        E("L_fwait:")
        E(f"  ds_read_b32 v{M+8}, v{M+9}")
        E("  s_waitcnt lgkmcnt(0)")
        E(f"  v_readfirstlane_b32 s67, v{M+8}")
        E(f"  s_cmp_ge_u32 s67, {FW}")
        E("  s_cbranch_scc1 L_fwait_done")
        E("  s_add_u32 s83, s83, 1")
        E("  s_cmp_gt_u32 s83, 0x400000")
        E("  s_cbranch_scc1 L_fwait_done")
        E("  s_sleep 1")
        E("  s_branch L_fwait")
        E("L_fwait_done:")
    q = []
    paced = [False]
    def ld(nm): q.append(nm)
    def pace():
        if paced[0] and len(q) >= PACE:
            E(f"  s_waitcnt vmcnt({PACE-1})")
    def wait_for(nm):
        idx = max(i for i, x in enumerate(q) if x == nm)
        E(f"  s_waitcnt vmcnt({len(q)-1-idx})")
        del q[:idx+1]
    def kload(t):
        E(f"  s_add_u32 s67, s66, {t*4096}")
        for j in range(4):
            r = KR + 16*t + 4*j
            pace()
            E(f"  buffer_load_dwordx4 v[{r}:{r+3}], v{vk}, {S(SK)}, s67 offen offset:{64*j} {KVF}")
            ld(f"k{t}")
    def vload(t, base):
        for half in range(2):
            E(f"  s_add_u32 s67, s66, {t*8192+half*4096}")
            for k4 in range(4):
                r = base + 4*(half*4+k4)
                pace()
                E(f"  buffer_load_dwordx4 v[{r}:{r+3}], v{vv}, {S(SV)}, s67 offen offset:{256*k4} {KVF}")
                ld(f"v{t}")
    def vload_lds(t):
        for half in range(2):
            E(f"  s_add_u32 s67, s66, {t*8192+half*4096}")
            for k4 in range(4):
                i = (t-2)*8 + half*4 + k4
                pace()
                E(f"  s_add_u32 m0, s77, {i*1024 - 256*k4}")
                E("  s_nop 0")
                E(f"  buffer_load_dwordx4 v{vv}, {S(SV)}, s67 offen offset:{256*k4} {KVF} lds")
                ld(f"v{t}")
    paced[0] = True
    for t in range(8): kload(t)
    vload(0, VR); vload(1, VR+32)
    vload_lds(2); vload_lds(3)
    paced[0] = False
    E(f"  v_mov_b32 v{M+9}, 17664")
    E("L_qwait:")
    E(f"  ds_read_b32 v{M+8}, v{M+9}")
    E("  s_waitcnt lgkmcnt(0)")
    E(f"  v_readfirstlane_b32 s67, v{M+8}")
    E("  s_cmp_ge_u32 s67, 2")
    E("  s_cbranch_scc1 L_afterbar")
    E("  s_add_u32 s83, s83, 1")
    E("  s_cmp_gt_u32 s83, 0x400000")
    E("  s_cbranch_scc1 L_afterbar")
    E("  s_sleep 2")
    E("  s_branch L_qwait")
    E("L_loads0:")
    qsave = list(q); del q[:]
    for t in range(8): kload(t)
    vload(0, VR); vload(1, VR+32)
    vload_lds(2); vload_lds(3)
    assert q == qsave
    E("L_afterbar:")
    stamp()
    E(f"  v_and_b32 v{M+9}, 3, v{n}")
    E(f"  v_lshlrev_b32 v{M+9}, 8, v{M+9}")
    E(f"  v_lshl_add_u32 v{M+9}, v{g}, 4, v{M+9}")
    for j in range(4):
        E(f"  ds_read_b128 v[{QR+4*j}:{QR+4*j+3}], v{M+9} offset:{64*j}")
    E("  s_waitcnt lgkmcnt(0)")
    dstart(12)
    for t in range(8):
        wait_for(f"k{t}")
        s = SR + 4*t
        for j in range(4):
            r = KR + 16*t + 4*j
            c = "0" if j == 0 else f"v[{s}:{s+3}]"
            E(f"  v_mfma_f32_16x16x32_bf16 v[{s}:{s+3}], v[{r}:{r+3}], v[{QR+4*j}:{QR+4*j+3}], {c}")
    stamp()
    dend(); dstart(6)
    E("  s_nop 7")
    mx, t1, ls = M+8, M+9, M+10
    E(f"  v_max3_f32 v{mx}, v{SR}, v{SR+1}, v{SR+2}")
    i = 3
    while i < 32:
        if i + 1 < 32:
            E(f"  v_max3_f32 v{mx}, v{mx}, v{SR+i}, v{SR+i+1}"); i += 2
        else:
            E(f"  v_max_f32 v{mx}, v{mx}, v{SR+i}"); i += 1
    E(f"  v_mov_b32 v{t1}, v{mx}")
    E("  s_nop 1")
    E(f"  v_permlane16_swap_b32 v{mx}, v{t1}")
    E(f"  v_max_f32 v{mx}, v{mx}, v{t1}")
    E(f"  v_mov_b32 v{t1}, v{mx}")
    E("  s_nop 1")
    E(f"  v_permlane32_swap_b32 v{mx}, v{t1}")
    E(f"  v_max_f32 v{mx}, v{mx}, v{t1}")
    cval = (128 ** -0.5) * math.log2(math.e)
    cbits = struct.unpack("<I", struct.pack("<f", cval))[0]
    E(f"  s_mov_b32 s82, {cbits:#x}")
    E(f"  v_mul_f32 v{mx}, s82, v{mx}")
    for i in range(32):
        E(f"  v_fma_f32 v{SR+i}, v{SR+i}, s82, -v{mx}")
    for i in range(32):
        E(f"  v_exp_f32 v{SR+i}, v{SR+i}")
    E("  s_nop 0")
    E(f"  v_add_f32 v{ls}, v{SR}, v{SR+1}")
    for i in range(2, 32):
        E(f"  v_add_f32 v{ls}, v{ls}, v{SR+i}")
    for t in range(4):
        for h in range(4):
            a = SR + 8*t + 2*h
            E(f"  v_cvt_pk_bf16_f32 v{QR+4*t+h}, v{a}, v{a+1}")
    E(f"  v_mov_b32 v{t1}, v{ls}")
    E("  s_nop 1")
    E(f"  v_permlane16_swap_b32 v{ls}, v{t1}")
    E(f"  v_add_f32 v{ls}, v{ls}, v{t1}")
    E(f"  v_mov_b32 v{t1}, v{ls}")
    E("  s_nop 1")
    E(f"  v_permlane32_swap_b32 v{ls}, v{t1}")
    E(f"  v_add_f32 v{ls}, v{ls}, v{t1}")
    ACC = SR; T = KR + 96
    vbase = [VR, VR+32, KR, KR+32]
    dend(); dstart(7)
    for t in range(4):
        wait_for(f"v{t}")
        if t >= 2:
            if t == 2:
                E(f"  v_lshlrev_b32 v{M+11}, 4, v{lane}")
                E(f"  v_add_u32 v{M+11}, s77, v{M+11}")
            for i in range(8):
                r = vbase[t] + 4*i
                E(f"  ds_read_b128 v[{r}:{r+3}], v{M+11} offset:{((t-2)*8+i)*1024}")
            E("  s_waitcnt lgkmcnt(0)")
        if t == 3:
            stamp()
            E("  s_cmp_eq_u32 s60, 1")
            E("  s_cbranch_scc1 L_pf_wo")
            E("  s_cmp_eq_u32 s60, 2")
            E("  s_cbranch_scc0 L_pf_done")
            E("  s_cmp_ge_u32 s2, 112")
            E("  s_cbranch_scc1 L_pf_done")
            srd(ST, 20, 0x1c0000)
            E("  s_lshr_b32 s68, s2, 2")
            E("  s_lshl_b32 s68, s68, 16")
            E("  s_and_b32 s69, s2, 3")
            E("  s_branch L_pf_go")
            E("L_pf_wo:")
            srd(ST, 12, 0x400000)
            E("  s_lshl_b32 s68, s61, 3")
            E("  s_lshr_b32 s69, s62, 2")
            E("  s_add_u32 s68, s68, s69")
            E("  s_lshl_b32 s68, s68, 16")
            E("  s_and_b32 s69, s62, 3")
            E("L_pf_go:")
            E("  s_lshl_b32 s69, s69, 8")
            E("  s_add_u32 s68, s68, s69")
            E(f"  v_lshlrev_b32 v{M+11}, 13, v{g}")
            E(f"  v_lshl_add_u32 v{M+11}, v{n}, 4, v{M+11}")
            for blk in range(2):
                for half in range(2):
                    E(f"  s_add_u32 s69, s68, {blk*32768+half*4096}")
                    for k4 in range(4):
                        r = VR + 32*blk + 4*(half*4+k4)
                        E(f"  buffer_load_dwordx4 v[{r}:{r+3}], v{M+11}, {S(ST)}, s69 offen offset:{1024*k4}")
            E("L_pf_done:")
        gemv_block(vbase[t], QR+4*t, T, ACC, first=(t == 0))
    E("  s_lshl_b32 s67, s60, 11")
    E(f"  v_lshlrev_b32 v{M+11}, 5, v{n}")
    E(f"  v_add_u32 v{M+11}, s67, v{M+11}")
    E(f"  v_cmp_gt_u32 vcc, 16, v{lane}")
    E("  s_nop 4")
    for h in range(4):
        for j in range(8):
            E(f"  v_mov_b32 v{8*h+j}, v{ACC+4*j+h}")
    E("  s_and_saveexec_b64 s[70:71], vcc")
    for h in range(4):
        E(f"  ds_write_b128 v{M+11}, v[{8*h}:{8*h+3}] offset:{1024+512*h}")
        E(f"  ds_write_b128 v{M+11}, v[{8*h+4}:{8*h+7}] offset:{1024+512*h+16}")
    E("  s_mov_b64 exec, s[70:71]")
    E("  s_lshl_b32 s67, s60, 5")
    E(f"  v_lshlrev_b32 v{M+11}, 3, v{lane}")
    E(f"  v_add_u32 v{M+11}, s67, v{M+11}")
    E(f"  v_mov_b32 v{M+12}, v{mx}")
    E(f"  v_mov_b32 v{M+13}, v{ls}")
    E(f"  v_cmp_gt_u32 vcc, 4, v{lane}")
    E("  s_nop 1")
    E("  s_and_saveexec_b64 s[70:71], vcc")
    E(f"  ds_write_b64 v{M+11}, v[{M+12}:{M+13}] offset:17408")
    E("  s_mov_b64 exec, s[70:71]")
    E("  s_waitcnt lgkmcnt(0)")
    dend()
    E("  s_cmp_eq_u32 s60, 3")
    E("  s_cbranch_scc0 L_noall")
    E("  v_mov_b32 v0, 17672")
    E("  ds_read_b64 v[2:3], v0")
    E(f"  v_lshlrev_b32 v1, 7, v{lane}")
    E(f"  s_mov_b32 s68, {FL:#x}")
    E("  s_waitcnt lgkmcnt(0)")
    E("L_pollA:")
    for i in range(4):
        if i: E(f"  s_add_u32 s69, s68, {8192*i}")
        E(f"  buffer_load_dwordx2 v[{8+2*i}:{9+2*i}], v1, {S(SW)}, {'s69' if i else 's68'} offen sc1")
    E("  s_waitcnt vmcnt(0)")
    E("  v_xor_b32 v4, v8, v2")
    E("  v_xor_b32 v5, v9, v3")
    E("  v_or_b32 v4, v4, v5")
    for i in range(1, 4):
        E(f"  v_xor_b32 v5, v{8+2*i}, v2")
        E("  v_or_b32 v4, v4, v5")
        E(f"  v_xor_b32 v5, v{9+2*i}, v3")
        E("  v_or_b32 v4, v4, v5")
    E("  v_cmp_ne_u32 vcc, 0, v4")
    E("  s_nop 1")
    E("  s_cmp_eq_u64 vcc, 0")
    E("  s_cbranch_scc1 L_noall")
    E("  s_add_u32 s83, s83, 1")
    E("  s_cmp_gt_u32 s83, 0x40000")
    E("  s_cbranch_scc1 L_noall")
    E("  s_sleep 4")
    E("  s_branch L_pollA")
    E("L_noall:")
    E("  s_barrier")
    E("  s_sub_u32 s67, s60, 4")
    E("  s_cmp_ge_u32 s67, 2")
    E("  s_cbranch_scc1 L_nocomb")
    dstart(8)
    E(f"  v_subrev_u32 v1, 256, v{tid}")
    E("  v_lshrrev_b32 v0, 5, v1")
    E("  v_lshlrev_b32 v2, 3, v0")
    E("  v_lshlrev_b32 v3, 4, v1")
    for w in range(8):
        E(f"  ds_read_b64 v[{8+2*w}:{9+2*w}], v2 offset:{17408+32*w}")
    for w in range(8):
        E(f"  ds_read_b128 v[{24+4*w}:{27+4*w}], v3 offset:{1024+2048*w}")
    E("  s_waitcnt lgkmcnt(8)")
    E("  v_max3_f32 v4, v8, v10, v12")
    E("  v_max3_f32 v4, v4, v14, v16")
    E("  v_max3_f32 v4, v4, v18, v20")
    E("  v_max_f32 v4, v4, v22")
    for w in range(8):
        E(f"  v_sub_f32 v{8+2*w}, v{8+2*w}, v4")
    for w in range(8):
        E(f"  v_exp_f32 v{8+2*w}, v{8+2*w}")
    E("  s_waitcnt lgkmcnt(0)")
    E("  v_mul_f32 v5, v8, v9")
    for e in range(4):
        E(f"  v_mul_f32 v{60+e}, v8, v{24+e}")
    for w in range(1, 8):
        E(f"  v_fmac_f32 v5, v{8+2*w}, v{9+2*w}")
        for e in range(4):
            E(f"  v_fmac_f32 v{60+e}, v{8+2*w}, v{24+4*w+e}")
    E("  v_min_u32 v4, 0xfffffffe, v4")
    E("  v_min_u32 v5, 0xfffffffe, v5")
    for e in range(4):
        E(f"  v_min_u32 v{60+e}, 0xfffffffe, v{60+e}")
    E("  s_lshl_b32 s67, s65, 5")
    E("  s_add_u32 s67, s67, s64")
    E("  s_lshl_b32 s68, s67, 9")
    E(f"  s_add_u32 s68, s68, {AO:#x}")
    E("  v_and_b32 v1, 31, v1")
    E("  v_lshlrev_b32 v7, 12, v0")
    E("  v_lshl_add_u32 v7, v1, 4, v7")
    E(f"  buffer_store_dwordx4 v[60:63], v7, {S(SW)}, s68 offen sc1")
    E("  s_lshl_b32 s68, s67, 3")
    E(f"  s_add_u32 s68, s68, {AML:#x}")
    E("  v_lshlrev_b32 v7, 6, v0")
    E("  v_cmp_eq_u32 vcc, 0, v1")
    E("  s_nop 1")
    E("  s_and_saveexec_b64 s[70:71], vcc")
    E(f"  buffer_store_dwordx2 v[4:5], v7, {S(SW)}, s68 offen sc1")
    E("  s_mov_b64 exec, s[70:71]")
    dend()
    E("L_nocomb:")
    stamp()
    E("  s_cmp_eq_u32 s60, 1")
    E("  s_cbranch_scc1 L_tail_wo")
    E("  s_cmp_eq_u32 s60, 3")
    E("  s_cbranch_scc1 L_tail_fin")
    E("  s_cmp_eq_u32 s60, 2")
    E("  s_cbranch_scc0 L_exit")
    E("  s_cmp_ge_u32 s2, 112")
    E("  s_cbranch_scc1 L_exit")
    dstart(9)
    if DIAG == 3:
        stamp(3)
        E("  s_waitcnt vmcnt(0)")
        stamp(3)
    E(f"  v_and_b32 v0, 3, v{n}")
    E(f"  v_lshrrev_b32 v1, 2, v{n}")
    E("  v_lshl_add_u32 v2, v1, 2, v0")
    E("  s_movk_i32 s67, 30720")
    E("  v_mul_lo_u32 v2, v2, s67")
    E(f"  v_lshl_add_u32 v2, v{g}, 5, v2")
    E("  s_lshr_b32 s68, s2, 2")
    E("  s_lshl_b32 s69, s68, 8")
    E("  s_add_u32 s69, s69, 16384")
    E("  s_add_u32 s72, s69, 7168")
    for blk in range(2):
        E(f"  buffer_load_dwordx4 v[{8+8*blk}:{11+8*blk}], v2, {S(SW)}, s69 offen offset:{128*blk} {PLN}")
        E(f"  buffer_load_dwordx4 v[{12+8*blk}:{15+8*blk}], v2, {S(SW)}, s69 offen offset:{128*blk+16} {PLN}")
        E(f"  buffer_load_dwordx4 v[{24+8*blk}:{27+8*blk}], v2, {S(SW)}, s72 offen offset:{128*blk} {PLN}")
        E(f"  buffer_load_dwordx4 v[{28+8*blk}:{31+8*blk}], v2, {S(SW)}, s72 offen offset:{128*blk+16} {PLN}")
    E("  v_lshlrev_b32 v3, 2, v0")
    E(f"  s_mov_b32 s73, {GOFF:#x}")
    E(f"  buffer_load_dword v4, v3, {S(SW)}, s73 offen {PLN}")
    E("  s_waitcnt vmcnt(0)")
    stamp(3)
    for r in (4, 8):
        for i in range(32):
            E(f"  v_add_f32_dpp v{8+i}, v{8+i}, v{8+i} row_ror:{r} row_mask:0xf bank_mask:0xf")
    E("  v_sub_f32 v4, 1.0, v4")
    for i in range(16):
        E(f"  v_mul_f32 v{8+i}, 0xbfb8aa3b, v{8+i}")
    for i in range(16):
        E(f"  v_exp_f32 v{8+i}, v{8+i}")
    for i in range(16):
        E(f"  v_mul_f32 v{24+i}, v{24+i}, v4")
    for i in range(16):
        E(f"  v_add_f32 v{8+i}, 1.0, v{8+i}")
    for i in range(16):
        E(f"  v_rcp_f32 v{8+i}, v{8+i}")
    E("  s_nop 0")
    for i in range(16):
        E(f"  v_mul_f32 v{8+i}, v{8+i}, v{24+i}")
    for i in range(8):
        E(f"  v_cvt_pk_bf16_f32 v{40+i}, v{8+2*i}, v{9+2*i}")
    E("  s_and_b32 s69, s2, 3")
    E(f"  s_mul_i32 s69, s69, {NT}")
    E("  s_add_u32 s69, s69, s68")
    E("  s_add_u32 s69, s69, 64")
    dend()
    E("  s_branch L_tail_mm")
    E("L_tail_wo:")
    dstart(10)
    E(f"  v_and_b32 v0, 3, v{n}")
    E(f"  v_lshrrev_b32 v1, 2, v{n}")
    E("  s_lshr_b32 s68, s62, 3")
    E("  s_lshl_b32 s69, s61, 2")
    E("  s_add_u32 s69, s69, s68")
    E("  v_lshlrev_b32 v2, 17, v0")
    E("  v_lshl_add_u32 v2, v1, 10, v2")
    E(f"  v_lshl_add_u32 v2, v{g}, 5, v2")
    E("  s_lshl_b32 s72, s69, 12")
    E("  s_lshr_b32 s73, s62, 2")
    E("  s_and_b32 s73, s73, 1")
    E("  s_lshl_b32 s73, s73, 8")
    E("  s_add_u32 s72, s72, s73")
    E(f"  s_add_u32 s72, s72, {AO:#x}")
    E("  v_lshlrev_b32 v3, 11, v0")
    E("  v_lshl_add_u32 v5, v1, 4, v3")
    E("  s_lshl_b32 s73, s69, 6")
    E(f"  s_add_u32 s73, s73, {AML:#x}")
    E("  v_lshlrev_b32 v6, 2, v0")
    E(f"  s_mov_b32 s74, {GOFF:#x}")
    E(f"  buffer_load_dword v4, v6, {S(SW)}, s74 offen {PLN}")
    E("  s_mov_b64 s[70:71], exec")
    E("  s_and_b64 exec, exec, 0xffff")
    E("L_poll1a:")
    E(f"  buffer_load_dwordx4 v[56:59], v5, {S(SW)}, s73 offen sc1")
    E("  s_waitcnt vmcnt(0)")
    E("  v_max3_u32 v7, v56, v57, v58")
    E("  v_max_u32 v7, v7, v59")
    E("  v_cmp_eq_u32 vcc, -1, v7")
    E("  s_nop 1")
    E("  s_cmp_eq_u64 vcc, 0")
    E("  s_cbranch_scc1 L_poll1a_done")
    E("  s_add_u32 s83, s83, 1")
    E("  s_cmp_gt_u32 s83, 0x40000")
    E("  s_cbranch_scc1 L_poll1a_done")
    E(f"  s_sleep {SLP}")
    E("  s_branch L_poll1a")
    E("L_poll1a_done:")
    E("  s_mov_b64 exec, s[70:71]")
    E("L_poll1:")
    for s in range(2):
        for blk in range(2):
            r = 8 + 16*s + 8*blk
            E(f"  buffer_load_dwordx4 v[{r}:{r+3}], v2, {S(SW)}, s72 offen offset:{512*s+128*blk} sc1")
            E(f"  buffer_load_dwordx4 v[{r+4}:{r+7}], v2, {S(SW)}, s72 offen offset:{512*s+128*blk+16} sc1")
    for i in range(4):
        E(f"  buffer_load_dwordx4 v[{40+4*i}:{43+4*i}], v3, {S(SW)}, s73 offen offset:{16*i} sc1")
    E(f"  buffer_load_dwordx4 v[56:59], v5, {S(SW)}, s73 offen sc1")
    E("  s_waitcnt vmcnt(0)")
    E("  v_max3_u32 v7, v8, v9, v10")
    i = 11
    while i < 60:
        if i + 1 < 60:
            E(f"  v_max3_u32 v7, v7, v{i}, v{i+1}"); i += 2
        else:
            E(f"  v_max_u32 v7, v7, v{i}"); i += 1
    E("  v_cmp_eq_u32 vcc, -1, v7")
    E("  s_nop 1")
    E("  s_cmp_eq_u64 vcc, 0")
    E("  s_cbranch_scc1 L_poll1_done")
    E("  s_add_u32 s83, s83, 1")
    E("  s_cmp_gt_u32 s83, 0x40000")
    E("  s_cbranch_scc1 L_poll1_done")
    E(f"  s_sleep {SLP}")
    E("  s_branch L_poll1")
    E("L_poll1_done:")
    stamp()
    E("  v_max3_f32 v7, v40, v42, v44")
    E("  v_max3_f32 v7, v7, v46, v48")
    E("  v_max3_f32 v7, v7, v50, v52")
    E("  v_max_f32 v7, v7, v54")
    for s in range(8):
        E(f"  v_sub_f32 v{40+2*s}, v{40+2*s}, v7")
    E("  v_sub_f32 v56, v56, v7")
    E("  v_sub_f32 v58, v58, v7")
    for s in range(8):
        E(f"  v_exp_f32 v{40+2*s}, v{40+2*s}")
    E("  v_exp_f32 v56, v56")
    E("  v_exp_f32 v58, v58")
    E("  v_mul_f32 v7, v40, v41")
    for s in range(1, 8):
        E(f"  v_fmac_f32 v7, v{40+2*s}, v{41+2*s}")
    E("  v_rcp_f32 v7, v7")
    E("  s_nop 0")
    E("  v_mul_f32 v7, v7, v4")
    E("  v_mul_f32 v56, v56, v7")
    E("  v_mul_f32 v58, v58, v7")
    for i in range(16):
        E(f"  v_mul_f32 v{8+i}, v{8+i}, v56")
    for i in range(16):
        E(f"  v_fmac_f32 v{8+i}, v{24+i}, v58")
    for r in (4, 8):
        for i in range(16):
            E(f"  v_add_f32_dpp v{8+i}, v{8+i}, v{8+i} row_ror:{r} row_mask:0xf bank_mask:0xf")
    for i in range(8):
        E(f"  v_cvt_pk_bf16_f32 v{40+i}, v{8+2*i}, v{9+2*i}")
    E("  s_and_b32 s69, s62, 3")
    E(f"  s_mul_i32 s69, s69, {NT}")
    E("  s_lshl_b32 s68, s61, 3")
    E("  s_add_u32 s69, s69, s68")
    E("  s_lshr_b32 s68, s62, 2")
    E("  s_add_u32 s69, s69, s68")
    dend()
    E("L_tail_mm:")
    dstart(11)
    stamp(3)
    E("  s_waitcnt vmcnt(0)")
    gemv_block(VR, 40, 96, SR, first=True)
    gemv_block(VR+32, 44, 96, SR, first=False)
    E("  s_lshl_b32 s69, s69, 11")
    E(f"  s_add_u32 s69, s69, {L2:#x}")
    E(f"  v_lshlrev_b32 v2, 7, v{n}")
    E(f"  v_cmp_gt_u32 vcc, 16, v{lane}")
    E("  s_nop 4")
    for i in range(32):
        E(f"  v_min_u32 v{SR+i}, 0xfffffffe, v{SR+i}")
    stamp(3)
    E("  s_and_saveexec_b64 s[70:71], vcc")
    for j in range(8):
        E(f"  buffer_store_dwordx4 v[{SR+4*j}:{SR+3+4*j}], v2, {S(SW)}, s69 offen offset:{16*j} sc1")
    E("  s_mov_b64 exec, s[70:71]")
    dend()
    E("  s_cmp_eq_u32 s60, 1")
    E("  s_cbranch_scc0 L_noflag3")
    E("  v_mov_b32 v2, 17664")
    E("  v_mov_b32 v3, 3")
    E("  ds_write_b32 v2, v3")
    E("L_noflag3:")
    stamp()
    if DIAG == 3:
        stamp(3)
        E("  s_waitcnt vmcnt(0)")
        stamp(3)
    E("  s_branch L_exit")
    E("L_tail_fin:")
    dstart(5)
    E(f"  v_lshrrev_b32 v0, 1, v{lane}")
    E(f"  v_and_b32 v1, 1, v{lane}")
    E("  s_lshr_b32 s68, s2, 6")
    E(f"  s_mul_i32 s68, s68, {NT*2048}")
    E("  s_and_b32 s69, s2, 63")
    E("  s_lshl_b32 s69, s69, 5")
    E("  s_add_u32 s68, s68, s69")
    E(f"  s_add_u32 s68, s68, {L2:#x}")
    E("  v_lshlrev_b32 v2, 11, v0")
    E("  v_lshl_add_u32 v2, v1, 4, v2")
    E("  s_add_u32 s69, s68, 65536")
    E("  v_cmp_gt_u32 vcc, 28, v0")
    E("  v_add_u32 v3, 0x20000, v2")
    E("  s_nop 0")
    E("  v_cndmask_b32 v3, v2, v3, vcc")
    E("  s_cbranch_execz L_poll2")
    E("  v_mov_b32 v20, 17664")
    E("L_fin_wait:")
    E("  ds_read_b32 v21, v20")
    E("  s_waitcnt lgkmcnt(0)")
    E("  v_readfirstlane_b32 s67, v21")
    E("  s_cmp_ge_u32 s67, 3")
    E("  s_cbranch_scc1 L_poll2")
    E("  s_add_u32 s83, s83, 1")
    E("  s_cmp_gt_u32 s83, 0x400000")
    E("  s_cbranch_scc1 L_poll2")
    E("  s_sleep 1")
    E("  s_branch L_fin_wait")
    E("L_poll2:")
    E(f"  buffer_load_dwordx4 v[8:11], v2, {S(SW)}, s68 offen sc1")
    E(f"  buffer_load_dwordx4 v[12:15], v2, {S(SW)}, s69 offen sc1")
    E(f"  buffer_load_dwordx4 v[16:19], v3, {S(SW)}, s68 offen sc1")
    E("  s_waitcnt vmcnt(0)")
    E("  v_max3_u32 v7, v8, v9, v10")
    E("  v_max3_u32 v7, v7, v11, v12")
    E("  v_max3_u32 v7, v7, v13, v14")
    E("  v_max3_u32 v7, v7, v15, v16")
    E("  v_max3_u32 v7, v7, v17, v18")
    E("  v_max_u32 v7, v7, v19")
    E("  v_cmp_eq_u32 vcc, -1, v7")
    E("  s_nop 1")
    E("  s_cmp_eq_u64 vcc, 0")
    E("  s_cbranch_scc1 L_poll2_done")
    E("  s_add_u32 s83, s83, 1")
    E("  s_cmp_gt_u32 s83, 0x40000")
    E("  s_cbranch_scc1 L_poll2_done")
    E(f"  s_sleep {SLP}")
    E("  s_branch L_poll2")
    E("L_poll2_done:")
    stamp()
    E("  v_cmp_gt_u32 vcc, 28, v0")
    E("  s_nop 1")
    for i in range(4):
        E(f"  v_cndmask_b32 v{16+i}, 0, v{16+i}, vcc")
    for i in range(4):
        E(f"  v_add_f32 v{8+i}, v{8+i}, v{12+i}")
    for i in range(4):
        E(f"  v_add_f32 v{8+i}, v{8+i}, v{16+i}")
    for r in (2, 4, 8):
        E("  s_nop 1")
        for i in range(4):
            E(f"  v_add_f32_dpp v{8+i}, v{8+i}, v{8+i} row_ror:{r} row_mask:0xf bank_mask:0xf")
    for i in range(4): E(f"  v_mov_b32 v{12+i}, v{8+i}")
    E("  s_nop 1")
    for i in range(4): E(f"  v_permlane16_swap_b32 v{8+i}, v{12+i}")
    for i in range(4): E(f"  v_add_f32 v{8+i}, v{8+i}, v{12+i}")
    for i in range(4): E(f"  v_mov_b32 v{12+i}, v{8+i}")
    E("  s_nop 1")
    for i in range(4): E(f"  v_permlane32_swap_b32 v{8+i}, v{12+i}")
    for i in range(4): E(f"  v_add_f32 v{8+i}, v{8+i}, v{12+i}")
    E("  s_nop 1")
    for i in range(4):
        E(f"  v_mov_b32_dpp v{12+i}, v{8+i} quad_perm:[1,0,3,2] row_mask:0xf bank_mask:0xf")
    for i in range(4):
        E(f"  v_cvt_pk_bf16_f32 v{8+i}, v{8+i}, v{12+i}")
    E("  s_lshl_b32 s68, s2, 2")
    E("  v_mov_b32 v2, 0")
    E(f"  v_cmp_eq_u32 vcc, 0, v{lane}")
    E("  s_nop 1")
    E("  s_and_saveexec_b64 s[70:71], vcc")
    for i in range(4):
        E(f"  buffer_store_dword v{8+i}, v2, {S(SO)}, s68 offen offset:{1024*i}")
    E("  s_mov_b64 exec, s[70:71]")
    dend()
    E("L_exit:")
    if DIAG == 9:
        E("  s_cmp_eq_u32 s60, 3")
        E("  s_cbranch_scc0 L_end")
        E("  s_memrealtime s[100:101]")
        E("  s_waitcnt lgkmcnt(0)")
        E("  s_not_b32 s84, s84")
        E("  v_mov_b32 v2, 0")
        E("  s_mov_b64 exec, 1")
        for i in (0, 1, 3, 4, 7, 8):
            E(f"  v_mov_b32 v{8+i}, s{84+2*i}")
            E(f"  buffer_atomic_umax v{8+i}, v2, {S(SD)}, 0 offen offset:{16+4*i} sc1")
    elif DIAG:
        E("  s_memrealtime s[100:101]")
        E("  s_waitcnt lgkmcnt(0)")
        E("  s_lshl_b32 s68, s2, 3")
        E("  s_add_u32 s68, s68, s60")
        E("  s_lshl_b32 s68, s68, 6")
        E(f"  s_add_u32 s68, s68, {DIAGOFF:#x}")
        for i in range(9):
            E(f"  v_mov_b32 v{8+i}, s{84+2*i}")
        E("  v_mov_b32 v2, 0")
        E(f"  v_cmp_eq_u32 vcc, 0, v{lane}")
        E("  s_nop 1")
        E("  s_and_saveexec_b64 s[70:71], vcc")
        E(f"  buffer_store_dwordx4 v[8:11], v2, {S(SW)}, s68 offen")
        E(f"  buffer_store_dwordx4 v[12:15], v2, {S(SW)}, s68 offen offset:16")
        E(f"  buffer_store_dword v16, v2, {S(SW)}, s68 offen offset:32")
    E("L_end:")
    E("  s_endpgm")

    E("L_stage1:")
    E("  s_setprio 3")
    dstart(1)
    for i in range(4): E(f"  v_mov_b32 v{160+i}, -1")
    E("  s_lshl_b32 s67, s65, 5")
    E("  s_add_u32 s67, s67, s64")
    E("  s_lshl_b32 s68, s67, 9")
    E(f"  s_add_u32 s68, s68, {AO:#x}")
    E(f"  v_lshlrev_b32 v164, 12, v{g}")
    E(f"  v_lshl_add_u32 v164, v{n}, 5, v164")
    E(f"  buffer_store_dwordx4 v[160:163], v164, {S(SW)}, s68 offen sc1")
    E(f"  buffer_store_dwordx4 v[160:163], v164, {S(SW)}, s68 offen offset:16 sc1")
    E("  s_lshl_b32 s68, s67, 3")
    E(f"  s_add_u32 s68, s68, {AML:#x}")
    E(f"  v_lshlrev_b32 v164, 6, v{g}")
    E(f"  buffer_store_dwordx2 v[160:161], v164, {S(SW)}, s68 offen sc1")
    E("  s_and_b32 s69, s62, 3")
    E(f"  s_mul_i32 s69, s69, {NT}")
    E("  s_lshl_b32 s68, s61, 3")
    E("  s_add_u32 s69, s69, s68")
    E("  s_lshr_b32 s68, s62, 2")
    E("  s_add_u32 s69, s69, s68")
    E("  s_lshl_b32 s69, s69, 11")
    E(f"  s_add_u32 s69, s69, {L2:#x}")
    E(f"  v_lshlrev_b32 v164, 5, v{lane}")
    E(f"  buffer_store_dwordx4 v[160:163], v164, {S(SW)}, s69 offen sc1")
    E(f"  buffer_store_dwordx4 v[160:163], v164, {S(SW)}, s69 offen offset:16 sc1")
    E("  s_cmp_ge_u32 s2, 112")
    E("  s_cbranch_scc1 L_s1_noffnclr")
    E("  s_and_b32 s69, s2, 3")
    E(f"  s_mul_i32 s69, s69, {NT}")
    E("  s_lshr_b32 s68, s2, 2")
    E("  s_add_u32 s69, s69, s68")
    E("  s_add_u32 s69, s69, 64")
    E("  s_lshl_b32 s69, s69, 11")
    E(f"  s_add_u32 s69, s69, {L2:#x}")
    E(f"  buffer_store_dwordx4 v[160:163], v164, {S(SW)}, s69 offen sc1")
    E(f"  buffer_store_dwordx4 v[160:163], v164, {S(SW)}, s69 offen offset:16 sc1")
    E("L_s1_noffnclr:")
    E("  s_cmp_ge_u32 s62, 30")
    E("  s_cbranch_scc1 L_s1_gate")
    E("  s_cmp_ge_u32 s62, 16")
    E("  s_cbranch_scc1 L_s1_ffn")
    srd(ST, 10, 0x400000)
    E("  s_movk_i32 s72, 8192")
    E("  s_lshl_b32 s68, s61, 2")
    E("  s_lshr_b32 s69, s62, 2")
    E("  s_add_u32 s68, s68, s69")
    E("  s_and_b32 s73, s62, 3")
    E("  s_lshl_b32 s74, s68, 8")
    E("  s_lshl_b32 s75, s68, 9")
    E("  s_branch L_s1_go")
    E("L_s1_ffn:")
    E("  s_mul_i32 s68, s61, 14")
    E("  s_add_u32 s68, s68, s62")
    E("  s_sub_u32 s68, s68, 16")
    E("  s_and_b32 s73, s68, 3")
    E("  s_lshr_b32 s68, s68, 2")
    E("  s_movk_i32 s72, 3584")
    E("  s_lshl_b32 s75, s68, 9")
    E("  s_add_u32 s75, s75, 16384")
    E("  s_cmp_ge_u32 s68, 14")
    E(f"  s_cselect_b32 s{ST}, s18, s16")
    E(f"  s_cselect_b32 s{ST+1}, s19, s17")
    E("  s_cselect_b32 s69, 14, 0")
    E(f"  s_and_b32 s{ST+1}, s{ST+1}, 0xffff")
    E(f"  s_mov_b32 s{ST+2}, 0x1c0000")
    E(f"  s_mov_b32 s{ST+3}, 0x00020000")
    E("  s_sub_u32 s68, s68, s69")
    E("  s_lshl_b32 s74, s68, 8")
    E("L_s1_go:")
    E("  s_lshl_b32 s68, s73, 7")
    E(f"  v_lshlrev_b32 v164, 3, v{g}")
    E("  v_add_u32 v164, s68, v164")
    E(f"  v_and_b32 v165, 3, v{n}")
    E("  v_lshlrev_b32 v165, 10, v165")
    E("  v_lshl_add_u32 v165, v164, 1, v165")
    for blk in range(4):
        E(f"  buffer_load_dwordx4 v[{128+4*blk}:{131+4*blk}], v165, {S(SX)}, 0 offen offset:{64*blk}")
    E("  v_mul_lo_u32 v166, v164, s72")
    E(f"  v_lshl_add_u32 v166, v{n}, 4, v166")
    E("  v_add_u32 v166, s74, v166")
    E("  s_mov_b32 s69, 0")
    E("  s_mul_i32 s76, s72, 24")
    for blk in range(4):
        for kk in range(8):
            r = 32*blk + 4*kk
            E(f"  buffer_load_dwordx4 v[{r}:{r+3}], v166, {S(ST)}, s69 offen {S1F}")
            E("  s_add_u32 s69, s69, s72")
        if blk < 3: E("  s_add_u32 s69, s69, s76")
    E("  v_mov_b32 v170, 17664")
    E("  v_mov_b32 v171, 1")
    E("  ds_write_b32 v170, v171")
    for blk in range(4):
        if blk == 0: dend(); dstart(2)
        if blk == 2: dend(); dstart(3)
        E(f"  s_waitcnt vmcnt({8*(3-blk)})")
        gemv_block(32*blk, 128+4*blk, 144, 192, first=(blk == 0))
    dend(); dstart(4)
    stamp(2)
    E("  s_nop 7")
    for b in range(4):
        for j in range(8):
            E(f"  v_mov_b32 v{8*b+j}, v{192+4*j+b}")
    E("  s_mul_i32 s68, s73, 122880")
    E("  s_add_u32 s68, s68, s75")
    E(f"  v_lshlrev_b32 v164, 5, v{n}")
    E(f"  v_cmp_gt_u32 vcc, 16, v{lane}")
    E("  s_nop 1")
    E("  s_and_saveexec_b64 s[70:71], vcc")
    for b in range(4):
        E(f"  buffer_store_dwordx4 v[{8*b}:{8*b+3}], v164, {S(SW)}, s68 offen sc1")
        E(f"  buffer_store_dwordx4 v[{8*b+4}:{8*b+7}], v164, {S(SW)}, s68 offen offset:16 sc1")
        if b < 3: E("  s_add_u32 s68, s68, 30720")
    E("  s_mov_b64 exec, s[70:71]")
    E("  s_branch L_s1_signal")
    E("L_s1_gate:")
    dend()
    E("  v_mov_b32 v170, 17664")
    E("  v_mov_b32 v171, 1")
    E("  ds_write_b32 v170, v171")
    E("  s_cmp_lg_u32 s2, 240")
    E("  s_cbranch_scc1 L_s1_signal")
    srd(ST, 22, 1024)
    E(f"  v_lshlrev_b32 v164, 4, v{lane}")
    E(f"  buffer_load_dwordx4 v[16:19], v164, {S(ST)}, 0 offen")
    for b in range(4):
        E(f"  buffer_load_dwordx4 v[{4*b}:{4*b+3}], v164, {S(SX)}, 0 offen offset:{1024*b}")
    E("  s_waitcnt vmcnt(0)")
    for b in range(4):
        E(f"  v_mov_b32 v{24+b}, 0")
    for c in range(4):
        E(f"  v_lshlrev_b32 v20, 16, v{16+c}")
        E(f"  v_and_b32 v21, 0xffff0000, v{16+c}")
        for b in range(4):
            E(f"  v_lshlrev_b32 v22, 16, v{4*b+c}")
            E(f"  v_and_b32 v23, 0xffff0000, v{4*b+c}")
            E(f"  v_fmac_f32 v{24+b}, v20, v22")
            E(f"  v_fmac_f32 v{24+b}, v21, v23")
    for r in (8, 4, 2, 1):
        E("  s_nop 1")
        for b in range(4):
            E(f"  v_add_f32_dpp v{24+b}, v{24+b}, v{24+b} row_ror:{r} row_mask:0xf bank_mask:0xf")
    for i in range(4): E(f"  v_mov_b32 v{28+i}, v{24+i}")
    E("  s_nop 1")
    for i in range(4): E(f"  v_permlane16_swap_b32 v{24+i}, v{28+i}")
    for i in range(4): E(f"  v_add_f32 v{24+i}, v{24+i}, v{28+i}")
    for i in range(4): E(f"  v_mov_b32 v{28+i}, v{24+i}")
    E("  s_nop 1")
    for i in range(4): E(f"  v_permlane32_swap_b32 v{24+i}, v{28+i}")
    for i in range(4): E(f"  v_add_f32 v{24+i}, v{24+i}, v{28+i}")
    for i in range(4): E(f"  v_mul_f32 v{24+i}, 0xbfb8aa3b, v{24+i}")
    for i in range(4): E(f"  v_exp_f32 v{24+i}, v{24+i}")
    E("  s_nop 0")
    for i in range(4): E(f"  v_add_f32 v{24+i}, 1.0, v{24+i}")
    for i in range(4): E(f"  v_rcp_f32 v{24+i}, v{24+i}")
    E(f"  s_mov_b32 s68, {GOFF:#x}")
    E("  v_mov_b32 v164, 0")
    E(f"  v_cmp_eq_u32 vcc, 0, v{lane}")
    E("  s_nop 1")
    E("  s_and_saveexec_b64 s[70:71], vcc")
    E(f"  buffer_store_dwordx4 v[24:27], v164, {S(SW)}, s68 offen sc1")
    E("  s_mov_b64 exec, s[70:71]")
    E("L_s1_signal:")
    E("  v_mov_b32 v164, 17664")
    E("  v_mov_b32 v165, 1")
    E("  ds_write_b32 v164, v165")
    E("  s_waitcnt vmcnt(0)")
    stamp(2)
    E("  v_mov_b32 v164, 0")
    E("  s_mov_b64 s[70:71], exec")
    E("  s_and_b64 exec, exec, 1")
    E("L_pollN:")
    E(f"  buffer_load_dwordx2 v[168:169], v164, {S(SD)}, 0 offen sc1")
    E("  s_waitcnt vmcnt(0)")
    E("  v_readfirstlane_b32 s78, v168")
    E("  v_readfirstlane_b32 s79, v169")
    E("  s_cbranch_execz L_pollN_done")
    E("  s_and_b32 s68, s78, 1")
    E("  s_lshr_b32 s69, s79, 31")
    E("  s_and_b32 s68, s68, s69")
    E("  s_cmp_eq_u32 s68, 1")
    E("  s_cbranch_scc1 L_pollN_done")
    E("  s_add_u32 s83, s83, 1")
    E("  s_cmp_gt_u32 s83, 0x40000")
    E("  s_cbranch_scc1 L_pollN_done")
    E("  s_sleep 1")
    E("  s_branch L_pollN")
    E("L_pollN_done:")
    E("  s_lshl_b32 s68, s2, 7")
    E(f"  s_add_u32 s68, s68, {FL:#x}")
    E(f"  buffer_store_dwordx2 v[168:169], v164, {S(SW)}, s68 offen sc1")
    E("  s_mov_b64 exec, s[70:71]")
    E(f"  v_lshlrev_b32 v164, 10, v{lane}")
    E("  s_lshl_b32 s68, s61, 7")
    E(f"  s_add_u32 s68, s68, {FL:#x}")
    E("  s_and_b64 exec, exec, 0xffff")
    E("L_poll0:")
    E(f"  buffer_load_dwordx2 v[166:167], v164, {S(SW)}, s68 offen sc1")
    E("  s_waitcnt vmcnt(0)")
    E("  v_cmp_ne_u32 vcc, s78, v166")
    E("  v_cmp_ne_u32 s[72:73], s79, v167")
    E("  s_nop 1")
    E("  s_or_b64 vcc, vcc, s[72:73]")
    E("  s_cmp_eq_u64 vcc, 0")
    E("  s_cbranch_scc1 L_poll0_done")
    E("  s_add_u32 s83, s83, 1")
    E("  s_cmp_gt_u32 s83, 0x40000")
    E("  s_cbranch_scc1 L_poll0_done")
    E("  s_sleep 1")
    E("  s_branch L_poll0")
    E("L_poll0_done:")
    E("  s_mov_b64 exec, s[70:71]")
    stamp(2)
    E("  s_mul_i32 s68, s63, 30720")
    E("  s_lshl_b32 s69, s61, 11")
    E("  s_add_u32 s68, s68, s69")
    E(f"  v_lshlrev_b32 v164, 5, v{lane}")
    for kq in range(4):
        E(f"  buffer_load_dwordx4 v[{8*kq}:{8*kq+3}], v164, {S(SW)}, s68 offen {PLN}")
        E(f"  buffer_load_dwordx4 v[{8*kq+4}:{8*kq+7}], v164, {S(SW)}, s68 offen offset:16 {PLN}")
        if kq < 3: E("  s_add_u32 s68, s68, 122880")
    E("  s_waitcnt vmcnt(0)")
    stamp(2)
    for i in range(8):
        E(f"  v_add_f32 v{i}, v{i}, v{8+i}")
        E(f"  v_add_f32 v{16+i}, v{16+i}, v{24+i}")
    for i in range(8):
        E(f"  v_add_f32 v{i}, v{i}, v{16+i}")
    for i in range(4):
        E(f"  v_cvt_pk_bf16_f32 v{32+i}, v{2*i}, v{2*i+1}")
    E(f"  v_lshlrev_b32 v164, 4, v{lane}")
    E("  ds_write_b128 v164, v[32:35]")
    E("  v_mov_b32 v164, 17672")
    E("  v_mov_b32 v166, s78")
    E("  v_mov_b32 v167, s79")
    E("  ds_write_b64 v164, v[166:167]")
    E("  s_waitcnt lgkmcnt(0)")
    dend()
    E("  v_mov_b32 v164, 17664")
    E("  v_mov_b32 v165, 2")
    E("  ds_write_b32 v164, v165")
    E("  s_setprio 0")
    E("  s_branch L_loads0")

    E(".section .rodata,\"a\"")
    E(".p2align 6")
    E(f".amdhsa_kernel {name}")
    E("  .amdhsa_next_free_vgpr 256")
    E("  .amdhsa_next_free_sgpr 102")
    E("  .amdhsa_accum_offset 256")
    E("  .amdhsa_group_segment_fixed_size 0")
    E("  .amdhsa_kernarg_size 104")
    E("  .amdhsa_user_sgpr_count 2")
    E("  .amdhsa_user_sgpr_kernarg_segment_ptr 1")
    E("  .amdhsa_system_sgpr_workgroup_id_x 1")
    E(".end_amdhsa_kernel")

E(HEADER.rstrip())
E("; @launch grid=(256,1,1) block=(512,1,1) lds=149504")
E('.amdgcn_target "amdgcn-amd-amdhsa--gfx950"')
E(".text")
kernel()
open(sys.argv[1], "w").write("\n".join(out) + "\n")
```

```python
import sys, os, math, struct
NAME = "gated_mix__gqa_block_cached__glu_gated_glu__decode"
KVF = os.environ.get("KVF", "nt")
S1F = os.environ.get("S1F", "nt")
DIAG = int(os.environ.get("DIAG", "0"))
PT = int(os.environ.get("PT", "16"))
SLP = int(os.environ.get("SLP", "2"))
NCL = int(os.environ.get("NCL", "2"))
out = []
def E(s=""): out.append(s)

P1 = 0x0
GOFF = 0x80000
AO = 0x100000
AML = 0x180000
L2 = 0x200000
FL = 0x300000
CNT = 0x310000
DIAGOFF = 0x400000
WS_BYTES = 0x10000000
NT = 92
LQ, LP, LML, LFLAG, LNONCE, LPROG, VST = 0, 1024, 17408, 17664, 17672, 17680, 18432
LDS_BYTES = VST + 8 * 16384
W_WO, W_FFN, W_FIN, W_CMB, W_ALL = 5, 6, 7, 2, 3

HEADER = open("cdna_kernels/" + NAME + ".s.ref").read().split("; Override launch")[0]

def srd(d, b, nbytes):
    E(f"  s_mov_b32 s{d}, s{b}")
    E(f"  s_and_b32 s{d+1}, s{b+1}, 0xffff")
    E(f"  s_mov_b32 s{d+2}, {nbytes:#x}")
    E(f"  s_mov_b32 s{d+3}, 0x00020000")

SELLO, SELHI = 80, 81
def gemv_block(W, A, T, ACC, first=True):
    def perms(j):
        c = j >> 1
        sel = SELHI if (j & 1) else SELLO
        t = T + 4 * (j & 1)
        for i in range(4):
            E(f"  v_perm_b32 v{t+i}, v{W+4*(2*i+1)+c}, v{W+4*(2*i)+c}, s{sel}")
    def mfma(j):
        t = T + 4 * (j & 1)
        a = ACC + 4 * j
        c = "0" if first else f"v[{a}:{a+3}]"
        E(f"  v_mfma_f32_16x16x32_bf16 v[{a}:{a+3}], v[{A}:{A+3}], v[{t}:{t+3}], {c}")
    perms(0)
    for j in range(8):
        if j + 1 < 8: perms(j + 1)
        else: E("  s_nop 1")
        mfma(j)

def stamp(i, lvl=1):
    if DIAG != lvl: return
    E(f"  s_memrealtime s[{84+2*i}:{85+2*i}]")

def spin_guard(label, lim="0x40000"):
    E("  s_add_u32 s83, s83, 1")
    E(f"  s_cmp_gt_u32 s83, {lim}")
    E(f"  s_cbranch_scc1 {label}")

def lds_wait(name, off, val, vtmp):
    E(f"  v_mov_b32 v{vtmp}, {off}")
    E(f"L_{name}:")
    E(f"  ds_read_b32 v{vtmp+1}, v{vtmp}")
    E("  s_waitcnt lgkmcnt(0)")
    E(f"  v_readfirstlane_b32 s67, v{vtmp+1}")
    E(f"  s_cmp_ge_u32 s67, {val}")
    E(f"  s_cbranch_scc1 L_{name}_done")
    spin_guard(f"L_{name}_done", "0x400000")
    E("  s_sleep 1")
    E(f"  s_branch L_{name}")
    E(f"L_{name}_done:")

KR, VR, SR, QR, M = 0, 128, 192, 224, 240
tid, lane, g, n = M, M+1, M+2, M+3
vk, vv = M+6, M+7
mx, t1, ls = M+8, M+9, M+10
SK, SV, SW, SD, ST, SX, SO = 32, 36, 40, 44, 48, 52, 56
def S(x): return f"s[{x}:{x+3}]"
cbits = struct.unpack("<I", struct.pack("<f", (128 ** -0.5) * math.log2(math.e)))[0]

class Q:
    def __init__(s): s.q = []
    def ld(s, nm): s.q.append(nm)
    def wait(s, nm):
        idx = max(i for i, x in enumerate(s.q) if x == nm)
        E(f"  s_waitcnt vmcnt({len(s.q)-1-idx})")
        del s.q[:idx+1]

def kload(q, t):
    E(f"  s_add_u32 s67, s66, {t*4096}")
    for j in range(4):
        r = KR + 16*t + 4*j
        E(f"  buffer_load_dwordx4 v[{r}:{r+3}], v{vk}, {S(SK)}, s67 offen offset:{64*j} {KVF}")
        q.ld(f"k{t}")
def vload(q, t, base):
    for half in range(2):
        E(f"  s_add_u32 s67, s66, {t*8192+half*4096}")
        for k4 in range(4):
            r = base + 4*(half*4+k4)
            E(f"  buffer_load_dwordx4 v[{r}:{r+3}], v{vv}, {S(SV)}, s67 offen offset:{256*k4} {KVF}")
            q.ld(f"v{t}")
def vload_lds(q, t):
    for half in range(2):
        E(f"  s_add_u32 s67, s66, {t*8192+half*4096}")
        for k4 in range(4):
            i = (t-2)*8 + half*4 + k4
            E(f"  s_add_u32 m0, s77, {i*1024 - 256*k4}")
            E("  s_nop 0")
            E(f"  buffer_load_dwordx4 v{vv}, {S(SV)}, s67 offen offset:{256*k4} {KVF} lds")
            q.ld(f"v{t}")

def body(q, nt, vbase, pre_pv3=None, post_s=None):
    E(f"  v_and_b32 v{M+9}, 3, v{n}")
    E(f"  v_lshlrev_b32 v{M+9}, 8, v{M+9}")
    E(f"  v_lshl_add_u32 v{M+9}, v{g}, 4, v{M+9}")
    for j in range(4):
        E(f"  ds_read_b128 v[{QR+4*j}:{QR+4*j+3}], v{M+9} offset:{LQ+64*j}")
    E("  s_waitcnt lgkmcnt(0)")
    for t in range(nt):
        q.wait(f"k{t}")
        s = SR + 4*t
        for j in range(4):
            r = KR + 16*t + 4*j
            c = "0" if j == 0 else f"v[{s}:{s+3}]"
            E(f"  v_mfma_f32_16x16x32_bf16 v[{s}:{s+3}], v[{r}:{r+3}], v[{QR+4*j}:{QR+4*j+3}], {c}")
    if post_s: post_s()
    E("  s_nop 7")
    ns = 4*nt
    E(f"  v_max3_f32 v{mx}, v{SR}, v{SR+1}, v{SR+2}")
    i = 3
    while i < ns:
        if i + 1 < ns:
            E(f"  v_max3_f32 v{mx}, v{mx}, v{SR+i}, v{SR+i+1}"); i += 2
        else:
            E(f"  v_max_f32 v{mx}, v{mx}, v{SR+i}"); i += 1
    for op in ("v_permlane16_swap_b32", "v_permlane32_swap_b32"):
        E(f"  v_mov_b32 v{t1}, v{mx}")
        E("  s_nop 1")
        E(f"  {op} v{mx}, v{t1}")
        E(f"  v_max_f32 v{mx}, v{mx}, v{t1}")
    E(f"  v_mul_f32 v{mx}, s82, v{mx}")
    for i in range(ns): E(f"  v_fma_f32 v{SR+i}, v{SR+i}, s82, -v{mx}")
    for i in range(ns): E(f"  v_exp_f32 v{SR+i}, v{SR+i}")
    E("  s_nop 0")
    E(f"  v_add_f32 v{ls}, v{SR}, v{SR+1}")
    for i in range(2, ns): E(f"  v_add_f32 v{ls}, v{ls}, v{SR+i}")
    for t in range(nt//2):
        for h in range(4):
            a = SR + 8*t + 2*h
            E(f"  v_cvt_pk_bf16_f32 v{QR+4*t+h}, v{a}, v{a+1}")
    for op in ("v_permlane16_swap_b32", "v_permlane32_swap_b32"):
        E(f"  v_mov_b32 v{t1}, v{ls}")
        E("  s_nop 1")
        E(f"  {op} v{ls}, v{t1}")
        E(f"  v_add_f32 v{ls}, v{ls}, v{t1}")
    ACC = SR; T = KR + 96
    for t in range(nt//2):
        q.wait(f"v{t}")
        if t >= 2:
            if t == 2:
                E(f"  v_lshlrev_b32 v{M+11}, 4, v{lane}")
                E(f"  v_add_u32 v{M+11}, s77, v{M+11}")
            for i in range(8):
                r = vbase[t] + 4*i
                E(f"  ds_read_b128 v[{r}:{r+3}], v{M+11} offset:{((t-2)*8+i)*1024}")
            E("  s_waitcnt lgkmcnt(0)")
        if t == 3 and pre_pv3: pre_pv3()
        gemv_block(vbase[t], QR+4*t, T, ACC, first=(t == 0))
    E("  s_lshl_b32 s67, s60, 11")
    E(f"  v_lshlrev_b32 v{M+11}, 5, v{n}")
    E(f"  v_add_u32 v{M+11}, s67, v{M+11}")
    E("  s_nop 5")
    for h in range(4):
        for j in range(8):
            E(f"  v_mov_b32 v{8*h+j}, v{ACC+4*j+h}")

def write_partial():
    E(f"  v_cmp_gt_u32 vcc, 16, v{lane}")
    E("  s_nop 1")
    E("  s_and_saveexec_b64 s[70:71], vcc")
    for h in range(4):
        E(f"  ds_write_b128 v{M+11}, v[{8*h}:{8*h+3}] offset:{LP+512*h}")
        E(f"  ds_write_b128 v{M+11}, v[{8*h+4}:{8*h+7}] offset:{LP+512*h+16}")
    E("  s_mov_b64 exec, s[70:71]")
    E("  s_lshl_b32 s67, s60, 5")
    E(f"  v_lshlrev_b32 v{M+11}, 3, v{lane}")
    E(f"  v_add_u32 v{M+11}, s67, v{M+11}")
    E(f"  v_mov_b32 v{M+12}, v{mx}")
    E(f"  v_mov_b32 v{M+13}, v{ls}")
    E(f"  v_cmp_gt_u32 vcc, 4, v{lane}")
    E("  s_nop 1")
    E("  s_and_saveexec_b64 s[70:71], vcc")
    E(f"  ds_write_b64 v{M+11}, v[{M+12}:{M+13}] offset:{LML}")
    E("  s_mov_b64 exec, s[70:71]")
    E("  s_waitcnt lgkmcnt(0)")

def merge_old():
    E("  s_lshl_b32 s67, s60, 5")
    E("  v_mov_b32 v32, s67")
    for h in range(4):
        E(f"  ds_read_b64 v[{34+2*h}:{35+2*h}], v32 offset:{LML+8*h}")
    for h in range(4):
        E(f"  ds_read_b128 v[{64+8*h}:{67+8*h}], v{M+11} offset:{LP+512*h}")
        E(f"  ds_read_b128 v[{68+8*h}:{71+8*h}], v{M+11} offset:{LP+512*h+16}")
    for h in range(4):
        E(f"  v_readlane_b32 s{68+h}, v{mx}, {h}")
        E(f"  v_readlane_b32 s{72+h}, v{ls}, {h}")
    E("  s_waitcnt lgkmcnt(0)")
    for h in range(4):
        mo, lo = 34+2*h, 35+2*h
        E(f"  v_max_f32 v44, s{68+h}, v{mo}")
        E(f"  v_sub_f32 v45, v{mo}, v44")
        E(f"  v_sub_f32 v46, s{68+h}, v44")
        E("  v_exp_f32 v45, v45")
        E("  v_exp_f32 v46, v46")
        E("  s_nop 0")
        E(f"  v_mul_f32 v{lo}, v{lo}, v45")
        E(f"  v_fma_f32 v{lo}, v46, s{72+h}, v{lo}")
        E(f"  v_mov_b32 v{mo}, v44")
        for j in range(8):
            E(f"  v_mul_f32 v{8*h+j}, v{8*h+j}, v46")
            E(f"  v_fmac_f32 v{8*h+j}, v{64+8*h+j}, v45")
    for h in range(4):
        E(f"  v_readfirstlane_b32 s{68+h}, v{34+2*h}")
        E(f"  v_readfirstlane_b32 s{72+h}, v{35+2*h}")
    E("  s_nop 3")
    for h in range(4):
        E(f"  v_writelane_b32 v{mx}, s{68+h}, {h}")
        E(f"  v_writelane_b32 v{ls}, s{72+h}, {h}")

def claim():
    E(f"  v_mov_b32 v{M+14}, 1")
    E(f"  v_mov_b32 v{M+15}, 0")
    E("  s_mov_b64 exec, 1")
    E(f"  buffer_atomic_add v{M+14}, v{M+15}, {S(SW)}, s76 offen sc0 sc1")
    E("  s_mov_b64 exec, -1")

def wo_slot(dst):
    E(f"  s_and_b32 s{dst}, s62, 3")
    E(f"  s_mul_i32 s{dst}, s{dst}, {NT}")
    E("  s_lshl_b32 s68, s61, 3")
    E(f"  s_add_u32 s{dst}, s{dst}, s68")
    E("  s_lshr_b32 s68, s62, 2")
    E(f"  s_add_u32 s{dst}, s{dst}, s68")
def ffn_slot(dst):
    E(f"  s_and_b32 s{dst}, s2, 3")
    E(f"  s_mul_i32 s{dst}, s{dst}, {NT}")
    E("  s_lshr_b32 s68, s2, 2")
    E(f"  s_add_u32 s{dst}, s{dst}, s68")
    E(f"  s_add_u32 s{dst}, s{dst}, 64")

def kernel():
    name = NAME + "_kernel"
    E(f".globl {name}\n.p2align 8\n.type {name},@function\n{name}:")
    E("  s_cmp_ge_u32 s2, 256")
    E("  s_cbranch_scc1 L_end")
    E("  s_load_dwordx16 s[4:19], s[0:1], 0")
    E("  s_load_dwordx8 s[20:27], s[0:1], 64")
    E("  s_load_dwordx2 s[28:29], s[0:1], 96")
    if DIAG:
        for i in range(18): E(f"  s_mov_b32 s{84+i}, 0")
        E("  s_memrealtime s[84:85]")
    E(f"  v_mov_b32 v{tid}, v0")
    E(f"  v_and_b32 v{lane}, 63, v0")
    E(f"  v_lshrrev_b32 v{M+4}, 6, v0")
    E(f"  v_lshrrev_b32 v{g}, 4, v{lane}")
    E(f"  v_readfirstlane_b32 s60, v{M+4}")
    E(f"  v_and_b32 v{n}, 15, v{lane}")
    E("  s_mov_b32 s83, 0")
    E(f"  s_mov_b32 s{SELLO}, 0x05040100")
    E(f"  s_mov_b32 s{SELHI}, 0x07060302")
    E(f"  s_mov_b32 s82, {cbits:#x}")
    E("  s_lshr_b32 s61, s2, 3")
    E("  s_and_b32 s61, s61, 7")
    E("  s_lshr_b32 s63, s2, 6")
    E("  s_and_b32 s64, s2, 7")
    E("  s_lshl_b32 s62, s63, 3")
    E("  s_add_u32 s62, s62, s64")
    E("  s_lshl_b32 s65, s63, 3")
    E("  s_add_u32 s65, s65, s61")
    E("  s_lshl_b32 s66, s65, 21")
    E("  s_lshl_b32 s67, s64, 18")
    E("  s_add_u32 s66, s66, s67")
    E("  s_lshl_b32 s67, s60, 15")
    E("  s_add_u32 s66, s66, s67")
    E("  s_lshl_b32 s77, s60, 14")
    E(f"  s_add_u32 s77, s77, {VST}")
    E("  s_lshl_b32 s76, s65, 7")
    E(f"  s_add_u32 s76, s76, {CNT:#x}")
    E(f"  v_lshlrev_b32 v{vk}, 8, v{n}")
    E(f"  v_lshl_add_u32 v{vk}, v{g}, 4, v{vk}")
    E(f"  v_lshlrev_b32 v{vv}, 10, v{g}")
    E(f"  v_lshl_add_u32 v{vv}, v{n}, 4, v{vv}")
    E(f"  v_mov_b32 v{M+8}, 0")
    E(f"  v_mov_b32 v{M+9}, {LFLAG}")
    E(f"  ds_write_b32 v{M+9}, v{M+8}")
    E(f"  ds_write_b32 v{M+9}, v{M+8} offset:16")
    E("  s_waitcnt lgkmcnt(0)")
    E("  s_barrier")
    srd(SK, 6, 0x4000000); srd(SV, 8, 0x4000000); srd(SW, 28, WS_BYTES)
    srd(SD, 26, 256); srd(SX, 4, 4096); srd(SO, 24, 4096)
    E("  s_cmp_eq_u32 s60, 0")
    E("  s_cbranch_scc1 L_stage1")
    E("  s_lshl_b32 s67, s2, 3")
    E("  s_add_u32 s67, s67, s60")
    E("  s_cmp_lg_u32 s67, 1")
    E("  s_cbranch_scc1 L_nopub")
    E("  s_memrealtime s[78:79]")
    E("  s_waitcnt lgkmcnt(0)")
    E("  s_or_b32 s78, s78, 1")
    E("  s_or_b32 s79, s79, 0x80000000")
    E("  v_mov_b32 v8, s78")
    E("  v_mov_b32 v9, s79")
    E("  v_mov_b32 v10, 0")
    E("  s_mov_b64 exec, 1")
    E(f"  buffer_store_dwordx2 v[8:9], v10, {S(SD)}, 0 offen sc1")
    E("  s_mov_b64 exec, -1")
    E("L_nopub:")
    lds_wait("fwait", LFLAG, 1, M+8)
    q = Q()
    for t in range(8): kload(q, t)
    vload(q, 0, VR); vload(q, 1, VR+32)
    vload_lds(q, 2); vload_lds(q, 3)
    E(f"  s_waitcnt vmcnt({PT})")
    E(f"  v_mov_b32 v{M+9}, {LPROG}")
    E(f"  v_mov_b32 v{M+8}, 1")
    E("  s_mov_b64 exec, 1")
    E(f"  ds_add_u32 v{M+9}, v{M+8}")
    E("  s_mov_b64 exec, -1")
    lds_wait("qwait", LFLAG, 2, M+8)
    stamp(1)
    def prefetch():
        stamp(3)
        E(f"  s_cmp_eq_u32 s60, {W_WO}")
        E("  s_cbranch_scc1 L_pf_wo")
        E(f"  s_cmp_eq_u32 s60, {W_FFN}")
        E("  s_cbranch_scc0 L_pf_done")
        E("  s_cmp_ge_u32 s2, 112")
        E("  s_cbranch_scc1 L_pf_done")
        srd(ST, 20, 0x1c0000)
        E("  s_lshr_b32 s68, s2, 2")
        E("  s_lshl_b32 s68, s68, 16")
        E("  s_and_b32 s69, s2, 3")
        E("  s_branch L_pf_go")
        E("L_pf_wo:")
        srd(ST, 12, 0x400000)
        E("  s_lshl_b32 s68, s61, 3")
        E("  s_lshr_b32 s69, s62, 2")
        E("  s_add_u32 s68, s68, s69")
        E("  s_lshl_b32 s68, s68, 16")
        E("  s_and_b32 s69, s62, 3")
        E("L_pf_go:")
        E("  s_lshl_b32 s69, s69, 8")
        E("  s_add_u32 s68, s68, s69")
        E(f"  v_lshlrev_b32 v{M+11}, 13, v{g}")
        E(f"  v_lshl_add_u32 v{M+11}, v{n}, 4, v{M+11}")
        for blk in range(2):
            for half in range(2):
                E(f"  s_add_u32 s69, s68, {blk*32768+half*4096}")
                for k4 in range(4):
                    r = VR + 32*blk + 4*(half*4+k4)
                    E(f"  buffer_load_dwordx4 v[{r}:{r+3}], v{M+11}, {S(ST)}, s69 offen offset:{1024*k4} {S1F}")
        E("L_pf_done:")
    body(q, 8, [VR, VR+32, KR, KR+32], pre_pv3=prefetch)
    write_partial()
    E(f"  s_cmp_lt_u32 s60, {NCL}")
    E("  s_cbranch_scc1 L_pool")
    E("L_w0done:")
    E(f"  s_cmp_eq_u32 s60, {W_ALL}")
    E("  s_cbranch_scc0 L_noall")
    E(f"  v_mov_b32 v0, {LNONCE}")
    E("  ds_read_b64 v[2:3], v0")
    E(f"  v_lshlrev_b32 v1, 7, v{lane}")
    E(f"  s_mov_b32 s68, {FL:#x}")
    E("  s_waitcnt lgkmcnt(0)")
    E("L_pollA:")
    for i in range(4):
        if i: E(f"  s_add_u32 s69, s68, {8192*i}")
        E(f"  buffer_load_dwordx2 v[{8+2*i}:{9+2*i}], v1, {S(SW)}, {'s69' if i else 's68'} offen sc1")
    E("  s_waitcnt vmcnt(0)")
    E("  v_xor_b32 v4, v8, v2")
    E("  v_xor_b32 v5, v9, v3")
    E("  v_or_b32 v4, v4, v5")
    for i in range(1, 4):
        E(f"  v_xor_b32 v5, v{8+2*i}, v2")
        E("  v_or_b32 v4, v4, v5")
        E(f"  v_xor_b32 v5, v{9+2*i}, v3")
        E("  v_or_b32 v4, v4, v5")
    E("  v_cmp_ne_u32 vcc, 0, v4")
    E("  s_nop 1")
    E("  s_cmp_eq_u64 vcc, 0")
    E("  s_cbranch_scc1 L_noall")
    spin_guard("L_noall")
    E("  s_sleep 4")
    E("  s_branch L_pollA")
    E("L_noall:")
    E("  s_barrier")
    E(f"  s_sub_u32 s67, s60, {W_CMB}")
    E("  s_cmp_ge_u32 s67, 2")
    E("  s_cbranch_scc1 L_nocomb")
    E(f"  v_subrev_u32 v1, {64*W_CMB}, v{tid}")
    E("  v_lshrrev_b32 v0, 5, v1")
    E("  v_lshlrev_b32 v2, 3, v0")
    E("  v_lshlrev_b32 v3, 4, v1")
    for w in range(8):
        E(f"  ds_read_b64 v[{8+2*w}:{9+2*w}], v2 offset:{LML+32*w}")
    for w in range(8):
        E(f"  ds_read_b128 v[{24+4*w}:{27+4*w}], v3 offset:{LP+2048*w}")
    E("  s_waitcnt lgkmcnt(8)")
    E("  v_max3_f32 v4, v8, v10, v12")
    E("  v_max3_f32 v4, v4, v14, v16")
    E("  v_max3_f32 v4, v4, v18, v20")
    E("  v_max_f32 v4, v4, v22")
    for w in range(8): E(f"  v_sub_f32 v{8+2*w}, v{8+2*w}, v4")
    for w in range(8): E(f"  v_exp_f32 v{8+2*w}, v{8+2*w}")
    E("  s_waitcnt lgkmcnt(0)")
    E("  v_mul_f32 v5, v8, v9")
    for e in range(4): E(f"  v_mul_f32 v{60+e}, v8, v{24+e}")
    for w in range(1, 8):
        E(f"  v_fmac_f32 v5, v{8+2*w}, v{9+2*w}")
        for e in range(4): E(f"  v_fmac_f32 v{60+e}, v{8+2*w}, v{24+4*w+e}")
    E("  v_min_u32 v4, 0xfffffffe, v4")
    E("  v_min_u32 v5, 0xfffffffe, v5")
    for e in range(4): E(f"  v_min_u32 v{60+e}, 0xfffffffe, v{60+e}")
    E("  s_lshl_b32 s67, s65, 5")
    E("  s_add_u32 s67, s67, s64")
    E("  s_lshl_b32 s68, s67, 9")
    E(f"  s_add_u32 s68, s68, {AO:#x}")
    E("  v_and_b32 v1, 31, v1")
    E("  v_lshlrev_b32 v7, 12, v0")
    E("  v_lshl_add_u32 v7, v1, 4, v7")
    E(f"  buffer_store_dwordx4 v[60:63], v7, {S(SW)}, s68 offen sc1")
    E("  s_lshl_b32 s68, s67, 3")
    E(f"  s_add_u32 s68, s68, {AML:#x}")
    E("  v_lshlrev_b32 v7, 6, v0")
    E("  v_cmp_eq_u32 vcc, 0, v1")
    E("  s_nop 1")
    E("  s_and_saveexec_b64 s[70:71], vcc")
    E(f"  buffer_store_dwordx2 v[4:5], v7, {S(SW)}, s68 offen sc1")
    E("  s_mov_b64 exec, s[70:71]")
    E("L_nocomb:")
    stamp(4)
    E(f"  s_cmp_eq_u32 s60, {W_WO}")
    E("  s_cbranch_scc1 L_tail_wo")
    E(f"  s_cmp_eq_u32 s60, {W_FIN}")
    E("  s_cbranch_scc1 L_tail_fin")
    E(f"  s_cmp_eq_u32 s60, {W_FFN}")
    E("  s_cbranch_scc0 L_exit")
    E("  s_cmp_ge_u32 s2, 112")
    E("  s_cbranch_scc1 L_exit")
    E(f"  v_and_b32 v0, 3, v{n}")
    E(f"  v_lshrrev_b32 v1, 2, v{n}")
    E("  v_lshl_add_u32 v2, v1, 2, v0")
    E("  s_movk_i32 s67, 30720")
    E("  v_mul_lo_u32 v2, v2, s67")
    E(f"  v_lshl_add_u32 v2, v{g}, 5, v2")
    E("  s_lshr_b32 s68, s2, 2")
    E("  s_lshl_b32 s69, s68, 8")
    E("  s_add_u32 s69, s69, 16384")
    E("  s_add_u32 s72, s69, 7168")
    for blk in range(2):
        E(f"  buffer_load_dwordx4 v[{8+8*blk}:{11+8*blk}], v2, {S(SW)}, s69 offen offset:{128*blk}")
        E(f"  buffer_load_dwordx4 v[{12+8*blk}:{15+8*blk}], v2, {S(SW)}, s69 offen offset:{128*blk+16}")
        E(f"  buffer_load_dwordx4 v[{24+8*blk}:{27+8*blk}], v2, {S(SW)}, s72 offen offset:{128*blk}")
        E(f"  buffer_load_dwordx4 v[{28+8*blk}:{31+8*blk}], v2, {S(SW)}, s72 offen offset:{128*blk+16}")
    E("  v_lshlrev_b32 v3, 2, v0")
    E(f"  s_mov_b32 s73, {GOFF:#x}")
    E(f"  buffer_load_dword v4, v3, {S(SW)}, s73 offen")
    E("  s_waitcnt vmcnt(0)")
    for r in (4, 8):
        for i in range(32):
            E(f"  v_add_f32_dpp v{8+i}, v{8+i}, v{8+i} row_ror:{r} row_mask:0xf bank_mask:0xf")
    E("  v_sub_f32 v4, 1.0, v4")
    for i in range(16): E(f"  v_mul_f32 v{8+i}, 0xbfb8aa3b, v{8+i}")
    for i in range(16): E(f"  v_exp_f32 v{8+i}, v{8+i}")
    for i in range(16): E(f"  v_mul_f32 v{24+i}, v{24+i}, v4")
    for i in range(16): E(f"  v_add_f32 v{8+i}, 1.0, v{8+i}")
    for i in range(16): E(f"  v_rcp_f32 v{8+i}, v{8+i}")
    E("  s_nop 0")
    for i in range(16): E(f"  v_mul_f32 v{8+i}, v{8+i}, v{24+i}")
    for i in range(8): E(f"  v_cvt_pk_bf16_f32 v{40+i}, v{8+2*i}, v{9+2*i}")
    ffn_slot(69)
    E("  s_branch L_tail_mm")
    E("L_tail_wo:")
    E(f"  v_and_b32 v0, 3, v{n}")
    E(f"  v_lshrrev_b32 v1, 2, v{n}")
    E("  s_lshr_b32 s68, s62, 3")
    E("  s_lshl_b32 s69, s61, 2")
    E("  s_add_u32 s69, s69, s68")
    E("  v_lshlrev_b32 v2, 17, v0")
    E("  v_lshl_add_u32 v2, v1, 10, v2")
    E(f"  v_lshl_add_u32 v2, v{g}, 5, v2")
    E("  s_lshl_b32 s72, s69, 12")
    E("  s_lshr_b32 s73, s62, 2")
    E("  s_and_b32 s73, s73, 1")
    E("  s_lshl_b32 s73, s73, 8")
    E("  s_add_u32 s72, s72, s73")
    E(f"  s_add_u32 s72, s72, {AO:#x}")
    E("  v_lshlrev_b32 v3, 11, v0")
    E("  v_lshl_add_u32 v5, v1, 4, v3")
    E("  s_lshl_b32 s73, s69, 6")
    E(f"  s_add_u32 s73, s73, {AML:#x}")
    E("  v_lshlrev_b32 v6, 2, v0")
    E(f"  s_mov_b32 s74, {GOFF:#x}")
    E(f"  buffer_load_dword v4, v6, {S(SW)}, s74 offen")
    E("  s_mov_b64 exec, 0xffff")
    E("L_poll1a:")
    E(f"  buffer_load_dwordx4 v[56:59], v5, {S(SW)}, s73 offen sc1")
    E("  s_waitcnt vmcnt(0)")
    E("  v_max3_u32 v7, v56, v57, v58")
    E("  v_max_u32 v7, v7, v59")
    E("  v_cmp_eq_u32 vcc, -1, v7")
    E("  s_nop 1")
    E("  s_cmp_eq_u64 vcc, 0")
    E("  s_cbranch_scc1 L_poll1a_done")
    spin_guard("L_poll1a_done")
    E(f"  s_sleep {SLP}")
    E("  s_branch L_poll1a")
    E("L_poll1a_done:")
    E("  s_mov_b64 exec, -1")
    E("L_poll1:")
    for s_ in range(2):
        for blk in range(2):
            r = 8 + 16*s_ + 8*blk
            E(f"  buffer_load_dwordx4 v[{r}:{r+3}], v2, {S(SW)}, s72 offen offset:{512*s_+128*blk} sc1")
            E(f"  buffer_load_dwordx4 v[{r+4}:{r+7}], v2, {S(SW)}, s72 offen offset:{512*s_+128*blk+16} sc1")
    for i in range(4):
        E(f"  buffer_load_dwordx4 v[{40+4*i}:{43+4*i}], v3, {S(SW)}, s73 offen offset:{16*i} sc1")
    E(f"  buffer_load_dwordx4 v[56:59], v5, {S(SW)}, s73 offen sc1")
    E("  s_waitcnt vmcnt(0)")
    E("  v_max3_u32 v7, v8, v9, v10")
    i = 11
    while i < 60:
        if i + 1 < 60:
            E(f"  v_max3_u32 v7, v7, v{i}, v{i+1}"); i += 2
        else:
            E(f"  v_max_u32 v7, v7, v{i}"); i += 1
    E("  v_cmp_eq_u32 vcc, -1, v7")
    E("  s_nop 1")
    E("  s_cmp_eq_u64 vcc, 0")
    E("  s_cbranch_scc1 L_poll1_done")
    spin_guard("L_poll1_done")
    E(f"  s_sleep {SLP}")
    E("  s_branch L_poll1")
    E("L_poll1_done:")
    stamp(5)
    E("  v_max3_f32 v7, v40, v42, v44")
    E("  v_max3_f32 v7, v7, v46, v48")
    E("  v_max3_f32 v7, v7, v50, v52")
    E("  v_max_f32 v7, v7, v54")
    for s_ in range(8): E(f"  v_sub_f32 v{40+2*s_}, v{40+2*s_}, v7")
    E("  v_sub_f32 v56, v56, v7")
    E("  v_sub_f32 v58, v58, v7")
    for s_ in range(8): E(f"  v_exp_f32 v{40+2*s_}, v{40+2*s_}")
    E("  v_exp_f32 v56, v56")
    E("  v_exp_f32 v58, v58")
    E("  v_mul_f32 v7, v40, v41")
    for s_ in range(1, 8): E(f"  v_fmac_f32 v7, v{40+2*s_}, v{41+2*s_}")
    E("  v_rcp_f32 v7, v7")
    E("  s_nop 0")
    E("  v_mul_f32 v7, v7, v4")
    E("  v_mul_f32 v56, v56, v7")
    E("  v_mul_f32 v58, v58, v7")
    for i in range(16): E(f"  v_mul_f32 v{8+i}, v{8+i}, v56")
    for i in range(16): E(f"  v_fmac_f32 v{8+i}, v{24+i}, v58")
    for r in (4, 8):
        for i in range(16):
            E(f"  v_add_f32_dpp v{8+i}, v{8+i}, v{8+i} row_ror:{r} row_mask:0xf bank_mask:0xf")
    for i in range(8): E(f"  v_cvt_pk_bf16_f32 v{40+i}, v{8+2*i}, v{9+2*i}")
    wo_slot(69)
    E("L_tail_mm:")
    E("  s_waitcnt vmcnt(0)")
    gemv_block(VR, 40, 96, SR, first=True)
    gemv_block(VR+32, 44, 96, SR, first=False)
    E("  s_lshl_b32 s69, s69, 11")
    E(f"  s_add_u32 s69, s69, {L2:#x}")
    E(f"  v_lshlrev_b32 v2, 7, v{n}")
    E(f"  v_cmp_gt_u32 vcc, 16, v{lane}")
    E("  s_nop 4")
    for i in range(32): E(f"  v_min_u32 v{SR+i}, 0xfffffffe, v{SR+i}")
    E("  s_and_saveexec_b64 s[70:71], vcc")
    for j in range(8):
        E(f"  buffer_store_dwordx4 v[{SR+4*j}:{SR+3+4*j}], v2, {S(SW)}, s69 offen offset:{16*j} sc1")
    E("  s_mov_b64 exec, s[70:71]")
    E(f"  s_cmp_eq_u32 s60, {W_WO}")
    E("  s_cbranch_scc0 L_noflag3")
    E(f"  v_mov_b32 v2, {LFLAG}")
    E("  v_mov_b32 v3, 3")
    E("  ds_write_b32 v2, v3")
    E("L_noflag3:")
    stamp(6)
    E("  s_branch L_exit")
    E("L_tail_fin:")
    E(f"  v_lshrrev_b32 v0, 1, v{lane}")
    E(f"  v_and_b32 v1, 1, v{lane}")
    E("  s_lshr_b32 s68, s2, 6")
    E(f"  s_mul_i32 s68, s68, {NT*2048}")
    E("  s_and_b32 s69, s2, 63")
    E("  s_lshl_b32 s69, s69, 5")
    E("  s_add_u32 s68, s68, s69")
    E(f"  s_add_u32 s68, s68, {L2:#x}")
    E("  v_lshlrev_b32 v2, 11, v0")
    E("  v_lshl_add_u32 v2, v1, 4, v2")
    E("  s_add_u32 s69, s68, 65536")
    E("  v_cmp_gt_u32 vcc, 28, v0")
    E("  v_add_u32 v3, 0x20000, v2")
    E("  s_nop 0")
    E("  v_cndmask_b32 v3, v2, v3, vcc")
    lds_wait("finwait", LFLAG, 3, 20)
    E("L_poll2:")
    E(f"  buffer_load_dwordx4 v[8:11], v2, {S(SW)}, s68 offen sc1")
    E(f"  buffer_load_dwordx4 v[12:15], v2, {S(SW)}, s69 offen sc1")
    E(f"  buffer_load_dwordx4 v[16:19], v3, {S(SW)}, s68 offen sc1")
    E("  s_waitcnt vmcnt(0)")
    E("  v_max3_u32 v7, v8, v9, v10")
    E("  v_max3_u32 v7, v7, v11, v12")
    E("  v_max3_u32 v7, v7, v13, v14")
    E("  v_max3_u32 v7, v7, v15, v16")
    E("  v_max3_u32 v7, v7, v17, v18")
    E("  v_max_u32 v7, v7, v19")
    E("  v_cmp_eq_u32 vcc, -1, v7")
    E("  s_nop 1")
    E("  s_cmp_eq_u64 vcc, 0")
    E("  s_cbranch_scc1 L_poll2_done")
    spin_guard("L_poll2_done")
    E(f"  s_sleep {SLP}")
    E("  s_branch L_poll2")
    E("L_poll2_done:")
    stamp(7)
    E("  v_cmp_gt_u32 vcc, 28, v0")
    E("  s_nop 1")
    for i in range(4): E(f"  v_cndmask_b32 v{16+i}, 0, v{16+i}, vcc")
    for i in range(4): E(f"  v_add_f32 v{8+i}, v{8+i}, v{12+i}")
    for i in range(4): E(f"  v_add_f32 v{8+i}, v{8+i}, v{16+i}")
    for r in (2, 4, 8):
        E("  s_nop 1")
        for i in range(4):
            E(f"  v_add_f32_dpp v{8+i}, v{8+i}, v{8+i} row_ror:{r} row_mask:0xf bank_mask:0xf")
    for op in ("v_permlane16_swap_b32", "v_permlane32_swap_b32"):
        for i in range(4): E(f"  v_mov_b32 v{12+i}, v{8+i}")
        E("  s_nop 1")
        for i in range(4): E(f"  {op} v{8+i}, v{12+i}")
        for i in range(4): E(f"  v_add_f32 v{8+i}, v{8+i}, v{12+i}")
    E("  s_nop 1")
    for i in range(4):
        E(f"  v_mov_b32_dpp v{12+i}, v{8+i} quad_perm:[1,0,3,2] row_mask:0xf bank_mask:0xf")
    for i in range(4): E(f"  v_cvt_pk_bf16_f32 v{8+i}, v{8+i}, v{12+i}")
    E("  s_lshl_b32 s68, s2, 2")
    E("  v_mov_b32 v2, 0")
    E("  s_mov_b64 exec, 1")
    for i in range(4):
        E(f"  buffer_store_dword v{8+i}, v2, {S(SO)}, s68 offen offset:{1024*i}")
    E("  s_mov_b64 exec, -1")
    E("L_exit:")
    if DIAG:
        E("  s_memrealtime s[100:101]")
        E("  s_waitcnt lgkmcnt(0)")
        E("  s_lshl_b32 s68, s2, 3")
        E("  s_add_u32 s68, s68, s60")
        E("  s_lshl_b32 s68, s68, 6")
        E(f"  s_add_u32 s68, s68, {DIAGOFF:#x}")
        for i in range(9): E(f"  v_mov_b32 v{8+i}, s{84+2*i}")
        E("  v_mov_b32 v2, 0")
        E("  s_mov_b64 exec, 1")
        E(f"  buffer_store_dwordx4 v[8:11], v2, {S(SW)}, s68 offen")
        E(f"  buffer_store_dwordx4 v[12:15], v2, {S(SW)}, s68 offen offset:16")
        E(f"  buffer_store_dword v16, v2, {S(SW)}, s68 offen offset:32")
    E("L_end:")
    E("  s_endpgm")

    E("L_pool:")
    lds_wait("pwait", LPROG, 7, M+8)
    claim()
    E("  s_waitcnt vmcnt(0)")
    E("L_claimed:")
    E(f"  v_readfirstlane_b32 s67, v{M+14}")
    E("  s_cmp_ge_u32 s67, 16")
    E("  s_cbranch_scc1 L_w0done")
    stamp(2)
    E("  s_lshl_b32 s66, s65, 21")
    E("  s_lshr_b32 s68, s67, 1")
    E("  s_lshl_b32 s68, s68, 18")
    E("  s_add_u32 s66, s66, s68")
    E("  s_and_b32 s68, s67, 1")
    E("  s_lshl_b32 s68, s68, 14")
    E("  s_add_u32 s66, s66, s68")
    q = Q()
    for t in range(4): kload(q, t)
    vload(q, 0, VR); vload(q, 1, VR+32)
    body(q, 4, [VR, VR+32], post_s=claim)
    E("  s_waitcnt vmcnt(0)")
    merge_old()
    write_partial()
    E("  s_branch L_claimed")

    E("L_stage1:")
    E("  s_setprio 3")
    E("  s_cmp_ge_u32 s62, 30")
    E("  s_cbranch_scc1 L_s1_clr")
    E("  s_cmp_ge_u32 s62, 16")
    E("  s_cbranch_scc1 L_s1_ffn")
    srd(ST, 10, 0x400000)
    E("  s_movk_i32 s72, 8192")
    E("  s_lshl_b32 s68, s61, 2")
    E("  s_lshr_b32 s69, s62, 2")
    E("  s_add_u32 s68, s68, s69")
    E("  s_and_b32 s73, s62, 3")
    E("  s_lshl_b32 s74, s68, 8")
    E("  s_lshl_b32 s75, s68, 9")
    E("  s_branch L_s1_go")
    E("L_s1_ffn:")
    E("  s_mul_i32 s68, s61, 14")
    E("  s_add_u32 s68, s68, s62")
    E("  s_sub_u32 s68, s68, 16")
    E("  s_and_b32 s73, s68, 3")
    E("  s_lshr_b32 s68, s68, 2")
    E("  s_movk_i32 s72, 3584")
    E("  s_lshl_b32 s75, s68, 9")
    E("  s_add_u32 s75, s75, 16384")
    E("  s_cmp_ge_u32 s68, 14")
    E(f"  s_cselect_b32 s{ST}, s18, s16")
    E(f"  s_cselect_b32 s{ST+1}, s19, s17")
    E("  s_cselect_b32 s69, 14, 0")
    E(f"  s_and_b32 s{ST+1}, s{ST+1}, 0xffff")
    E(f"  s_mov_b32 s{ST+2}, 0x1c0000")
    E(f"  s_mov_b32 s{ST+3}, 0x00020000")
    E("  s_sub_u32 s68, s68, s69")
    E("  s_lshl_b32 s74, s68, 8")
    E("L_s1_go:")
    E("  s_lshl_b32 s68, s73, 7")
    E(f"  v_lshlrev_b32 v164, 3, v{g}")
    E("  v_add_u32 v164, s68, v164")
    E(f"  v_and_b32 v165, 3, v{n}")
    E("  v_lshlrev_b32 v165, 10, v165")
    E("  v_lshl_add_u32 v165, v164, 1, v165")
    E("  v_mul_lo_u32 v166, v164, s72")
    E(f"  v_lshl_add_u32 v166, v{n}, 4, v166")
    E("  v_add_u32 v166, s74, v166")
    E("  s_mov_b32 s69, 0")
    E("  s_mul_i32 s67, s72, 24")
    for blk in range(4):
        E(f"  buffer_load_dwordx4 v[{128+4*blk}:{131+4*blk}], v165, {S(SX)}, 0 offen offset:{64*blk}")
        for kk in range(8):
            r = 32*blk + 4*kk
            E(f"  buffer_load_dwordx4 v[{r}:{r+3}], v166, {S(ST)}, s69 offen {S1F}")
            E("  s_add_u32 s69, s69, s72")
        if blk < 3: E("  s_add_u32 s69, s69, s67")
    E("L_s1_clr:")
    E(f"  v_mov_b32 v170, {LFLAG}")
    E("  v_mov_b32 v171, 1")
    E("  ds_write_b32 v170, v171")
    for i in range(4): E(f"  v_mov_b32 v{160+i}, -1")
    E("  s_lshl_b32 s67, s65, 5")
    E("  s_add_u32 s67, s67, s64")
    E("  s_lshl_b32 s68, s67, 9")
    E(f"  s_add_u32 s68, s68, {AO:#x}")
    E(f"  v_lshlrev_b32 v172, 12, v{g}")
    E(f"  v_lshl_add_u32 v172, v{n}, 5, v172")
    E(f"  buffer_store_dwordx4 v[160:163], v172, {S(SW)}, s68 offen sc1")
    E(f"  buffer_store_dwordx4 v[160:163], v172, {S(SW)}, s68 offen offset:16 sc1")
    E("  s_lshl_b32 s68, s67, 3")
    E(f"  s_add_u32 s68, s68, {AML:#x}")
    E(f"  v_lshlrev_b32 v172, 6, v{g}")
    E("  s_mov_b32 exec_lo, 0x00010001")
    E("  s_mov_b32 exec_hi, 0x00010001")
    E(f"  buffer_store_dwordx2 v[160:161], v172, {S(SW)}, s68 offen sc1")
    E("  s_mov_b64 exec, -1")
    wo_slot(69)
    E("  s_lshl_b32 s69, s69, 11")
    E(f"  s_add_u32 s69, s69, {L2:#x}")
    E(f"  v_lshlrev_b32 v172, 5, v{lane}")
    E(f"  buffer_store_dwordx4 v[160:163], v172, {S(SW)}, s69 offen sc1")
    E(f"  buffer_store_dwordx4 v[160:163], v172, {S(SW)}, s69 offen offset:16 sc1")
    NCLR = 5
    E("  s_cmp_ge_u32 s2, 112")
    E("  s_cbranch_scc1 L_s1_noffnclr")
    ffn_slot(69)
    E("  s_lshl_b32 s69, s69, 11")
    E(f"  s_add_u32 s69, s69, {L2:#x}")
    E(f"  buffer_store_dwordx4 v[160:163], v172, {S(SW)}, s69 offen sc1")
    E(f"  buffer_store_dwordx4 v[160:163], v172, {S(SW)}, s69 offen offset:16 sc1")
    E("L_s1_noffnclr:")
    E("  s_cmp_ge_u32 s62, 4")
    E("  s_cbranch_scc1 L_s1_nocnt")
    E("  s_lshl_b32 s68, s62, 3")
    E("  s_add_u32 s68, s68, s61")
    E("  s_lshl_b32 s68, s68, 7")
    E(f"  s_add_u32 s68, s68, {CNT:#x}")
    E("  v_mov_b32 v172, 0")
    E("  s_mov_b64 exec, 1")
    E(f"  buffer_store_dword v172, v172, {S(SW)}, s68 offen sc1")
    E("  s_mov_b64 exec, -1")
    E("L_s1_nocnt:")
    E("  v_mov_b32 v172, 0")
    E("  s_mov_b64 exec, 1")
    E(f"  buffer_load_dwordx2 v[168:169], v172, {S(SD)}, 0 offen sc1")
    E("  s_mov_b64 exec, -1")
    E("  s_cmp_ge_u32 s62, 30")
    E("  s_cbranch_scc1 L_s1_gate")
    for blk in range(4):
        E(f"  s_waitcnt vmcnt({9*(3-blk)+6})")
        gemv_block(32*blk, 128+4*blk, 144, 192, first=(blk == 0))
    stamp(1, 2)
    E("  s_nop 7")
    for b in range(4):
        for j in range(8):
            E(f"  v_mov_b32 v{8*b+j}, v{192+4*j+b}")
    E("  s_mul_i32 s68, s73, 122880")
    E("  s_add_u32 s68, s68, s75")
    E(f"  v_lshlrev_b32 v164, 5, v{n}")
    E("  s_mov_b64 exec, 0xffff")
    for b in range(4):
        E(f"  buffer_store_dwordx4 v[{8*b}:{8*b+3}], v164, {S(SW)}, s68 offen sc1")
        E(f"  buffer_store_dwordx4 v[{8*b+4}:{8*b+7}], v164, {S(SW)}, s68 offen offset:16 sc1")
        if b < 3: E("  s_add_u32 s68, s68, 30720")
    E("  s_mov_b64 exec, -1")
    E("  s_branch L_s1_signal")
    E("L_s1_gate:")
    E("  s_cmp_lg_u32 s2, 198")
    E("  s_cbranch_scc1 L_s1_signal")
    srd(ST, 22, 1024)
    E(f"  v_lshlrev_b32 v164, 4, v{lane}")
    E(f"  buffer_load_dwordx4 v[16:19], v164, {S(ST)}, 0 offen")
    for b in range(4):
        E(f"  buffer_load_dwordx4 v[{4*b}:{4*b+3}], v164, {S(SX)}, 0 offen offset:{1024*b}")
    E("  s_waitcnt vmcnt(0)")
    for b in range(4): E(f"  v_mov_b32 v{24+b}, 0")
    for c in range(4):
        E(f"  v_lshlrev_b32 v20, 16, v{16+c}")
        E(f"  v_and_b32 v21, 0xffff0000, v{16+c}")
        for b in range(4):
            E(f"  v_lshlrev_b32 v22, 16, v{4*b+c}")
            E(f"  v_and_b32 v23, 0xffff0000, v{4*b+c}")
            E(f"  v_fmac_f32 v{24+b}, v20, v22")
            E(f"  v_fmac_f32 v{24+b}, v21, v23")
    for r in (8, 4, 2, 1):
        E("  s_nop 1")
        for b in range(4):
            E(f"  v_add_f32_dpp v{24+b}, v{24+b}, v{24+b} row_ror:{r} row_mask:0xf bank_mask:0xf")
    for op in ("v_permlane16_swap_b32", "v_permlane32_swap_b32"):
        for i in range(4): E(f"  v_mov_b32 v{28+i}, v{24+i}")
        E("  s_nop 1")
        for i in range(4): E(f"  {op} v{24+i}, v{28+i}")
        for i in range(4): E(f"  v_add_f32 v{24+i}, v{24+i}, v{28+i}")
    for i in range(4): E(f"  v_mul_f32 v{24+i}, 0xbfb8aa3b, v{24+i}")
    for i in range(4): E(f"  v_exp_f32 v{24+i}, v{24+i}")
    E("  s_nop 0")
    for i in range(4): E(f"  v_add_f32 v{24+i}, 1.0, v{24+i}")
    for i in range(4): E(f"  v_rcp_f32 v{24+i}, v{24+i}")
    E(f"  s_mov_b32 s68, {GOFF:#x}")
    E("  v_mov_b32 v164, 0")
    E("  s_mov_b64 exec, 1")
    E(f"  buffer_store_dwordx4 v[24:27], v164, {S(SW)}, s68 offen sc1")
    E("  s_mov_b64 exec, -1")
    E("L_s1_signal:")
    E("  s_waitcnt vmcnt(0)")
    stamp(2, 2)
    E("  v_mov_b32 v164, 0")
    E("  s_mov_b64 exec, 1")
    E("L_pollN:")
    E("  v_readfirstlane_b32 s78, v168")
    E("  v_readfirstlane_b32 s79, v169")
    E("  s_and_b32 s68, s78, 1")
    E("  s_lshr_b32 s69, s79, 31")
    E("  s_and_b32 s68, s68, s69")
    E("  s_cmp_eq_u32 s68, 1")
    E("  s_cbranch_scc1 L_pollN_done")
    spin_guard("L_pollN_done")
    E(f"  buffer_load_dwordx2 v[168:169], v164, {S(SD)}, 0 offen sc1")
    E("  s_waitcnt vmcnt(0)")
    E("  s_branch L_pollN")
    E("L_pollN_done:")
    E("  s_lshl_b32 s68, s2, 7")
    E(f"  s_add_u32 s68, s68, {FL:#x}")
    E(f"  buffer_store_dwordx2 v[168:169], v164, {S(SW)}, s68 offen sc1")
    E("  s_mov_b64 exec, -1")
    E(f"  v_lshrrev_b32 v164, 3, v{lane}")
    E("  v_lshlrev_b32 v164, 6, v164")
    E(f"  v_and_b32 v165, 7, v{lane}")
    E("  v_add_u32 v164, v164, v165")
    E("  v_lshlrev_b32 v164, 7, v164")
    E("  s_lshl_b32 s68, s61, 10")
    E(f"  s_add_u32 s68, s68, {FL:#x}")
    E("  s_mov_b64 exec, 0xffff")
    E("L_poll0:")
    E(f"  buffer_load_dwordx2 v[166:167], v164, {S(SW)}, s68 offen sc1")
    E("  s_waitcnt vmcnt(0)")
    E("  v_cmp_ne_u32 vcc, s78, v166")
    E("  v_cmp_ne_u32 s[72:73], s79, v167")
    E("  s_nop 1")
    E("  s_or_b64 vcc, vcc, s[72:73]")
    E("  s_cmp_eq_u64 vcc, 0")
    E("  s_cbranch_scc1 L_poll0_done")
    spin_guard("L_poll0_done")
    E("  s_sleep 1")
    E("  s_branch L_poll0")
    E("L_poll0_done:")
    E("  s_mov_b64 exec, -1")
    stamp(3, 2)
    E("  s_mul_i32 s68, s63, 30720")
    E("  s_lshl_b32 s69, s61, 11")
    E("  s_add_u32 s68, s68, s69")
    E(f"  v_lshlrev_b32 v164, 5, v{lane}")
    for kq in range(4):
        E(f"  buffer_load_dwordx4 v[{8*kq}:{8*kq+3}], v164, {S(SW)}, s68 offen")
        E(f"  buffer_load_dwordx4 v[{8*kq+4}:{8*kq+7}], v164, {S(SW)}, s68 offen offset:16")
        if kq < 3: E("  s_add_u32 s68, s68, 122880")
    E("  s_waitcnt vmcnt(0)")
    stamp(4, 2)
    for i in range(8):
        E(f"  v_add_f32 v{i}, v{i}, v{8+i}")
        E(f"  v_add_f32 v{16+i}, v{16+i}, v{24+i}")
    for i in range(8): E(f"  v_add_f32 v{i}, v{i}, v{16+i}")
    for i in range(4): E(f"  v_cvt_pk_bf16_f32 v{32+i}, v{2*i}, v{2*i+1}")
    E(f"  v_lshlrev_b32 v164, 4, v{lane}")
    E(f"  ds_write_b128 v164, v[32:35] offset:{LQ}")
    E(f"  v_mov_b32 v164, {LNONCE}")
    E("  v_mov_b32 v166, s78")
    E("  v_mov_b32 v167, s79")
    E("  ds_write_b64 v164, v[166:167]")
    E("  s_waitcnt lgkmcnt(0)")
    E(f"  v_mov_b32 v164, {LFLAG}")
    E("  v_mov_b32 v165, 2")
    E("  ds_write_b32 v164, v165")
    E("  s_setprio 0")
    for i in range(4): E(f"  v_mov_b32 v{i}, 0")
    E(f"  v_lshlrev_b32 v164, 5, v{lane}")
    E(f"  ds_write_b128 v164, v[0:3] offset:{LP}")
    E(f"  ds_write_b128 v164, v[0:3] offset:{LP+16}")
    E("  v_mov_b32 v0, 0xf149f2ca")
    E(f"  v_and_b32 v164, 3, v{lane}")
    E("  v_lshlrev_b32 v164, 3, v164")
    E(f"  ds_write_b64 v164, v[0:1] offset:{LML}")
    E("  s_branch L_pool")

    E(f""".section .rodata,"a"
.p2align 6
.amdhsa_kernel {name}
  .amdhsa_next_free_vgpr 256
  .amdhsa_next_free_sgpr 102
  .amdhsa_accum_offset 256
  .amdhsa_group_segment_fixed_size 0
  .amdhsa_kernarg_size 104
  .amdhsa_user_sgpr_count 2
  .amdhsa_user_sgpr_kernarg_segment_ptr 1
  .amdhsa_system_sgpr_workgroup_id_x 1
.end_amdhsa_kernel""")

E(HEADER.rstrip())
E(f"; @launch grid=(256,1,1) block=(512,1,1) lds={LDS_BYTES}")
E('.amdgcn_target "amdgcn-amd-amdhsa--gfx950"')
E(".text")
kernel()
open(sys.argv[1], "w").write("\n".join(out) + "\n")
```

```python
import sys, os, math, struct
NAME = "gated_mix__gqa_block_cached__glu_gated_glu__decode"
KVF = os.environ.get("KVF", "nt")
S1F = os.environ.get("S1F", "nt")
DIAG = int(os.environ.get("DIAG", "0"))
PT = int(os.environ.get("PT", "16"))
SLP = int(os.environ.get("SLP", "2"))
NCL = int(os.environ.get("NCL", "2"))
out = []
def E(s=""): out.append(s)

P1 = 0x0
GOFF = 0x80000
AO = 0x100000
AML = 0x180000
L2 = 0x200000
FL = 0x300000
CNT = 0x310000
DIAGOFF = 0x400000
WS_BYTES = 0x10000000
NT = 92
LQ, LP, LML, LFLAG, LNONCE, LPROG, VST = 0, 1024, 17408, 17664, 17672, 17680, 18432
LDS_BYTES = VST + 8 * 16384
W_WO, W_FFN, W_FIN, W_CMB, W_ALL = 5, 6, 7, 2, 3

HEADER = open("cdna_kernels/" + NAME + ".s.ref").read().split("; Override launch")[0]

def srd(d, b, nbytes):
    E(f"  s_mov_b32 s{d}, s{b}")
    E(f"  s_and_b32 s{d+1}, s{b+1}, 0xffff")
    E(f"  s_mov_b32 s{d+2}, {nbytes:#x}")
    E(f"  s_mov_b32 s{d+3}, 0x00020000")

SELLO, SELHI = 80, 81
def gemv_block(W, A, T, ACC, first=True):
    def perms(j):
        c = j >> 1
        sel = SELHI if (j & 1) else SELLO
        t = T + 4 * (j & 1)
        for i in range(4):
            E(f"  v_perm_b32 v{t+i}, v{W+4*(2*i+1)+c}, v{W+4*(2*i)+c}, s{sel}")
    def mfma(j):
        t = T + 4 * (j & 1)
        a = ACC + 4 * j
        c = "0" if first else f"v[{a}:{a+3}]"
        E(f"  v_mfma_f32_16x16x32_bf16 v[{a}:{a+3}], v[{A}:{A+3}], v[{t}:{t+3}], {c}")
    perms(0)
    for j in range(8):
        if j + 1 < 8: perms(j + 1)
        else: E("  s_nop 1")
        mfma(j)

def stamp(i, lvl=1):
    if (1 if DIAG == 9 else DIAG) != lvl: return
    E(f"  s_memrealtime s[{84+2*i}:{85+2*i}]")

def spin_guard(label, lim="0x40000"):
    E("  s_add_u32 s83, s83, 1")
    E(f"  s_cmp_gt_u32 s83, {lim}")
    E(f"  s_cbranch_scc1 {label}")

def lds_wait(name, off, val, vtmp):
    E(f"  v_mov_b32 v{vtmp}, {off}")
    E(f"L_{name}:")
    E(f"  ds_read_b32 v{vtmp+1}, v{vtmp}")
    E("  s_waitcnt lgkmcnt(0)")
    E(f"  v_readfirstlane_b32 s67, v{vtmp+1}")
    E(f"  s_cmp_ge_u32 s67, {val}")
    E(f"  s_cbranch_scc1 L_{name}_done")
    spin_guard(f"L_{name}_done", "0x400000")
    E("  s_sleep 1")
    E(f"  s_branch L_{name}")
    E(f"L_{name}_done:")

KR, VR, SR, QR, M = 0, 128, 192, 224, 240
tid, lane, g, n = M, M+1, M+2, M+3
vk, vv = M+6, M+7
mx, t1, ls = M+8, M+9, M+10
SK, SV, SW, SD, ST, SX, SO = 32, 36, 40, 44, 48, 52, 56
def S(x): return f"s[{x}:{x+3}]"
cbits = struct.unpack("<I", struct.pack("<f", (128 ** -0.5) * math.log2(math.e)))[0]

class Q:
    def __init__(s): s.q = []
    def ld(s, nm): s.q.append(nm)
    def wait(s, nm):
        idx = max(i for i, x in enumerate(s.q) if x == nm)
        E(f"  s_waitcnt vmcnt({len(s.q)-1-idx})")
        del s.q[:idx+1]

def kload(q, t):
    E(f"  s_add_u32 s67, s66, {t*4096}")
    for j in range(4):
        r = KR + 16*t + 4*j
        E(f"  buffer_load_dwordx4 v[{r}:{r+3}], v{vk}, {S(SK)}, s67 offen offset:{64*j} {KVF}")
        q.ld(f"k{t}")
def vload(q, t, base):
    for half in range(2):
        E(f"  s_add_u32 s67, s66, {t*8192+half*4096}")
        for k4 in range(4):
            r = base + 4*(half*4+k4)
            E(f"  buffer_load_dwordx4 v[{r}:{r+3}], v{vv}, {S(SV)}, s67 offen offset:{256*k4} {KVF}")
            q.ld(f"v{t}")
def vload_lds(q, t):
    for half in range(2):
        E(f"  s_add_u32 s67, s66, {t*8192+half*4096}")
        for k4 in range(4):
            i = (t-2)*8 + half*4 + k4
            E(f"  s_add_u32 m0, s77, {i*1024 - 256*k4}")
            E("  s_nop 0")
            E(f"  buffer_load_dwordx4 v{vv}, {S(SV)}, s67 offen offset:{256*k4} {KVF} lds")
            q.ld(f"v{t}")

def body(q, nt, vbase, pre_pv3=None, post_s=None):
    E(f"  v_and_b32 v{M+9}, 3, v{n}")
    E(f"  v_lshlrev_b32 v{M+9}, 8, v{M+9}")
    E(f"  v_lshl_add_u32 v{M+9}, v{g}, 4, v{M+9}")
    for j in range(4):
        E(f"  ds_read_b128 v[{QR+4*j}:{QR+4*j+3}], v{M+9} offset:{LQ+64*j}")
    E("  s_waitcnt lgkmcnt(0)")
    for t in range(nt):
        q.wait(f"k{t}")
        s = SR + 4*t
        for j in range(4):
            r = KR + 16*t + 4*j
            c = "0" if j == 0 else f"v[{s}:{s+3}]"
            E(f"  v_mfma_f32_16x16x32_bf16 v[{s}:{s+3}], v[{r}:{r+3}], v[{QR+4*j}:{QR+4*j+3}], {c}")
    if post_s: post_s()
    E("  s_nop 7")
    ns = 4*nt
    E(f"  v_max3_f32 v{mx}, v{SR}, v{SR+1}, v{SR+2}")
    i = 3
    while i < ns:
        if i + 1 < ns:
            E(f"  v_max3_f32 v{mx}, v{mx}, v{SR+i}, v{SR+i+1}"); i += 2
        else:
            E(f"  v_max_f32 v{mx}, v{mx}, v{SR+i}"); i += 1
    for op in ("v_permlane16_swap_b32", "v_permlane32_swap_b32"):
        E(f"  v_mov_b32 v{t1}, v{mx}")
        E("  s_nop 1")
        E(f"  {op} v{mx}, v{t1}")
        E(f"  v_max_f32 v{mx}, v{mx}, v{t1}")
    E(f"  v_mul_f32 v{mx}, s82, v{mx}")
    for i in range(ns): E(f"  v_fma_f32 v{SR+i}, v{SR+i}, s82, -v{mx}")
    for i in range(ns): E(f"  v_exp_f32 v{SR+i}, v{SR+i}")
    E("  s_nop 0")
    E(f"  v_add_f32 v{ls}, v{SR}, v{SR+1}")
    for i in range(2, ns): E(f"  v_add_f32 v{ls}, v{ls}, v{SR+i}")
    for t in range(nt//2):
        for h in range(4):
            a = SR + 8*t + 2*h
            E(f"  v_cvt_pk_bf16_f32 v{QR+4*t+h}, v{a}, v{a+1}")
    for op in ("v_permlane16_swap_b32", "v_permlane32_swap_b32"):
        E(f"  v_mov_b32 v{t1}, v{ls}")
        E("  s_nop 1")
        E(f"  {op} v{ls}, v{t1}")
        E(f"  v_add_f32 v{ls}, v{ls}, v{t1}")
    ACC = SR; T = KR + 96
    for t in range(nt//2):
        q.wait(f"v{t}")
        if t >= 2:
            if t == 2:
                E(f"  v_lshlrev_b32 v{M+11}, 4, v{lane}")
                E(f"  v_add_u32 v{M+11}, s77, v{M+11}")
            for i in range(8):
                r = vbase[t] + 4*i
                E(f"  ds_read_b128 v[{r}:{r+3}], v{M+11} offset:{((t-2)*8+i)*1024}")
            E("  s_waitcnt lgkmcnt(0)")
        if t == 3 and pre_pv3: pre_pv3()
        gemv_block(vbase[t], QR+4*t, T, ACC, first=(t == 0))
    E("  s_lshl_b32 s67, s60, 11")
    E(f"  v_lshlrev_b32 v{M+11}, 5, v{n}")
    E(f"  v_add_u32 v{M+11}, s67, v{M+11}")
    E("  s_nop 5")
    for h in range(4):
        for j in range(8):
            E(f"  v_mov_b32 v{8*h+j}, v{ACC+4*j+h}")

def write_partial():
    E(f"  v_cmp_gt_u32 vcc, 16, v{lane}")
    E("  s_nop 1")
    E("  s_and_saveexec_b64 s[70:71], vcc")
    for h in range(4):
        E(f"  ds_write_b128 v{M+11}, v[{8*h}:{8*h+3}] offset:{LP+512*h}")
        E(f"  ds_write_b128 v{M+11}, v[{8*h+4}:{8*h+7}] offset:{LP+512*h+16}")
    E("  s_mov_b64 exec, s[70:71]")
    E("  s_lshl_b32 s67, s60, 5")
    E(f"  v_lshlrev_b32 v{M+11}, 3, v{lane}")
    E(f"  v_add_u32 v{M+11}, s67, v{M+11}")
    E(f"  v_mov_b32 v{M+12}, v{mx}")
    E(f"  v_mov_b32 v{M+13}, v{ls}")
    E(f"  v_cmp_gt_u32 vcc, 4, v{lane}")
    E("  s_nop 1")
    E("  s_and_saveexec_b64 s[70:71], vcc")
    E(f"  ds_write_b64 v{M+11}, v[{M+12}:{M+13}] offset:{LML}")
    E("  s_mov_b64 exec, s[70:71]")
    E("  s_waitcnt lgkmcnt(0)")

def merge_old():
    E("  s_lshl_b32 s67, s60, 5")
    E("  v_mov_b32 v32, s67")
    for h in range(4):
        E(f"  ds_read_b64 v[{34+2*h}:{35+2*h}], v32 offset:{LML+8*h}")
    for h in range(4):
        E(f"  ds_read_b128 v[{64+8*h}:{67+8*h}], v{M+11} offset:{LP+512*h}")
        E(f"  ds_read_b128 v[{68+8*h}:{71+8*h}], v{M+11} offset:{LP+512*h+16}")
    for h in range(4):
        E(f"  v_readlane_b32 s{68+h}, v{mx}, {h}")
        E(f"  v_readlane_b32 s{72+h}, v{ls}, {h}")
    E("  s_waitcnt lgkmcnt(0)")
    for h in range(4):
        mo, lo = 34+2*h, 35+2*h
        E(f"  v_max_f32 v44, s{68+h}, v{mo}")
        E(f"  v_sub_f32 v45, v{mo}, v44")
        E(f"  v_sub_f32 v46, s{68+h}, v44")
        E("  v_exp_f32 v45, v45")
        E("  v_exp_f32 v46, v46")
        E("  s_nop 0")
        E(f"  v_mul_f32 v{lo}, v{lo}, v45")
        E(f"  v_fma_f32 v{lo}, v46, s{72+h}, v{lo}")
        E(f"  v_mov_b32 v{mo}, v44")
        for j in range(8):
            E(f"  v_mul_f32 v{8*h+j}, v{8*h+j}, v46")
            E(f"  v_fmac_f32 v{8*h+j}, v{64+8*h+j}, v45")
    for h in range(4):
        E(f"  v_readfirstlane_b32 s{68+h}, v{34+2*h}")
        E(f"  v_readfirstlane_b32 s{72+h}, v{35+2*h}")
    E("  s_nop 3")
    for h in range(4):
        E(f"  v_writelane_b32 v{mx}, s{68+h}, {h}")
        E(f"  v_writelane_b32 v{ls}, s{72+h}, {h}")

def claim():
    E(f"  v_mov_b32 v{M+14}, 1")
    E(f"  v_mov_b32 v{M+15}, 0")
    E("  s_mov_b64 exec, 1")
    E(f"  buffer_atomic_add v{M+14}, v{M+15}, {S(SW)}, s76 offen sc0 sc1")
    E("  s_mov_b64 exec, -1")

def wo_slot(dst):
    E(f"  s_and_b32 s{dst}, s62, 3")
    E(f"  s_mul_i32 s{dst}, s{dst}, {NT}")
    E("  s_lshl_b32 s68, s61, 3")
    E(f"  s_add_u32 s{dst}, s{dst}, s68")
    E("  s_lshr_b32 s68, s62, 2")
    E(f"  s_add_u32 s{dst}, s{dst}, s68")
def ffn_slot(dst):
    E(f"  s_and_b32 s{dst}, s2, 3")
    E(f"  s_mul_i32 s{dst}, s{dst}, {NT}")
    E("  s_lshr_b32 s68, s2, 2")
    E(f"  s_add_u32 s{dst}, s{dst}, s68")
    E(f"  s_add_u32 s{dst}, s{dst}, 64")

def kernel():
    name = NAME + "_kernel"
    E(f".globl {name}\n.p2align 8\n.type {name},@function\n{name}:")
    E("  s_cmp_ge_u32 s2, 256")
    E("  s_cbranch_scc1 L_end")
    E("  s_load_dwordx16 s[4:19], s[0:1], 0")
    E("  s_load_dwordx8 s[20:27], s[0:1], 64")
    E("  s_load_dwordx2 s[28:29], s[0:1], 96")
    if DIAG:
        for i in range(18): E(f"  s_mov_b32 s{84+i}, 0")
        E("  s_memrealtime s[84:85]")
    E(f"  v_mov_b32 v{tid}, v0")
    E(f"  v_and_b32 v{lane}, 63, v0")
    E(f"  v_lshrrev_b32 v{M+4}, 6, v0")
    E(f"  v_lshrrev_b32 v{g}, 4, v{lane}")
    E(f"  v_readfirstlane_b32 s60, v{M+4}")
    E(f"  v_and_b32 v{n}, 15, v{lane}")
    E("  s_mov_b32 s83, 0")
    E(f"  s_mov_b32 s{SELLO}, 0x05040100")
    E(f"  s_mov_b32 s{SELHI}, 0x07060302")
    E(f"  s_mov_b32 s82, {cbits:#x}")
    E("  s_lshr_b32 s61, s2, 3")
    E("  s_and_b32 s61, s61, 7")
    E("  s_lshr_b32 s63, s2, 6")
    E("  s_and_b32 s64, s2, 7")
    E("  s_lshl_b32 s62, s63, 3")
    E("  s_add_u32 s62, s62, s64")
    E("  s_lshl_b32 s65, s63, 3")
    E("  s_add_u32 s65, s65, s61")
    E("  s_lshl_b32 s66, s65, 21")
    E("  s_lshl_b32 s67, s64, 18")
    E("  s_add_u32 s66, s66, s67")
    E("  s_lshl_b32 s67, s60, 15")
    E("  s_add_u32 s66, s66, s67")
    E("  s_lshl_b32 s77, s60, 14")
    E(f"  s_add_u32 s77, s77, {VST}")
    E("  s_lshl_b32 s76, s65, 7")
    E(f"  s_add_u32 s76, s76, {CNT:#x}")
    E(f"  v_lshlrev_b32 v{vk}, 8, v{n}")
    E(f"  v_lshl_add_u32 v{vk}, v{g}, 4, v{vk}")
    E(f"  v_lshlrev_b32 v{vv}, 10, v{g}")
    E(f"  v_lshl_add_u32 v{vv}, v{n}, 4, v{vv}")
    E(f"  v_mov_b32 v{M+8}, 0")
    E(f"  v_mov_b32 v{M+9}, {LFLAG}")
    E(f"  ds_write_b32 v{M+9}, v{M+8}")
    E(f"  ds_write_b32 v{M+9}, v{M+8} offset:16")
    E("  s_waitcnt lgkmcnt(0)")
    E("  s_barrier")
    srd(SK, 6, 0x4000000); srd(SV, 8, 0x4000000); srd(SW, 28, WS_BYTES)
    srd(SD, 26, 256); srd(SX, 4, 4096); srd(SO, 24, 4096)
    E("  s_cmp_eq_u32 s60, 0")
    E("  s_cbranch_scc1 L_stage1")
    E("  s_lshl_b32 s67, s2, 3")
    E("  s_add_u32 s67, s67, s60")
    E("  s_cmp_lg_u32 s67, 1")
    E("  s_cbranch_scc1 L_nopub")
    E("  s_memrealtime s[78:79]")
    E("  s_waitcnt lgkmcnt(0)")
    E("  s_or_b32 s78, s78, 1")
    E("  s_or_b32 s79, s79, 0x80000000")
    E("  v_mov_b32 v8, s78")
    E("  v_mov_b32 v9, s79")
    E("  v_mov_b32 v10, 0")
    E("  s_mov_b64 exec, 1")
    E(f"  buffer_store_dwordx2 v[8:9], v10, {S(SD)}, 0 offen sc1")
    E("  s_mov_b64 exec, -1")
    E("L_nopub:")
    lds_wait("fwait", LFLAG, 1, M+8)
    q = Q()
    for t in range(8): kload(q, t)
    vload(q, 0, VR); vload(q, 1, VR+32)
    vload_lds(q, 2); vload_lds(q, 3)
    E(f"  s_waitcnt vmcnt({PT})")
    E(f"  v_mov_b32 v{M+9}, {LPROG}")
    E(f"  v_mov_b32 v{M+8}, 1")
    E("  s_mov_b64 exec, 1")
    E(f"  ds_add_u32 v{M+9}, v{M+8}")
    E("  s_mov_b64 exec, -1")
    lds_wait("qwait", LFLAG, 2, M+8)
    stamp(1)
    def prefetch():
        stamp(3)
        E(f"  s_cmp_eq_u32 s60, {W_WO}")
        E("  s_cbranch_scc1 L_pf_wo")
        E(f"  s_cmp_eq_u32 s60, {W_FFN}")
        E("  s_cbranch_scc0 L_pf_done")
        E("  s_cmp_ge_u32 s2, 112")
        E("  s_cbranch_scc1 L_pf_done")
        srd(ST, 20, 0x1c0000)
        E("  s_lshr_b32 s68, s2, 2")
        E("  s_lshl_b32 s68, s68, 16")
        E("  s_and_b32 s69, s2, 3")
        E("  s_branch L_pf_go")
        E("L_pf_wo:")
        srd(ST, 12, 0x400000)
        E("  s_lshl_b32 s68, s61, 3")
        E("  s_lshr_b32 s69, s62, 2")
        E("  s_add_u32 s68, s68, s69")
        E("  s_lshl_b32 s68, s68, 16")
        E("  s_and_b32 s69, s62, 3")
        E("L_pf_go:")
        E("  s_lshl_b32 s69, s69, 8")
        E("  s_add_u32 s68, s68, s69")
        E(f"  v_lshlrev_b32 v{M+11}, 13, v{g}")
        E(f"  v_lshl_add_u32 v{M+11}, v{n}, 4, v{M+11}")
        for blk in range(2):
            for half in range(2):
                E(f"  s_add_u32 s69, s68, {blk*32768+half*4096}")
                for k4 in range(4):
                    r = VR + 32*blk + 4*(half*4+k4)
                    E(f"  buffer_load_dwordx4 v[{r}:{r+3}], v{M+11}, {S(ST)}, s69 offen offset:{1024*k4} {S1F}")
        E("L_pf_done:")
    body(q, 8, [VR, VR+32, KR, KR+32], pre_pv3=prefetch)
    write_partial()
    E(f"  s_cmp_lt_u32 s60, {NCL}")
    E("  s_cbranch_scc1 L_pool")
    E("L_w0done:")
    E(f"  s_cmp_eq_u32 s60, {W_ALL}")
    E("  s_cbranch_scc0 L_noall")
    E(f"  v_mov_b32 v0, {LNONCE}")
    E("  ds_read_b64 v[2:3], v0")
    E(f"  v_lshlrev_b32 v1, 7, v{lane}")
    E(f"  s_mov_b32 s68, {FL:#x}")
    E("  s_waitcnt lgkmcnt(0)")
    E("L_pollA:")
    for i in range(4):
        if i: E(f"  s_add_u32 s69, s68, {8192*i}")
        E(f"  buffer_load_dwordx2 v[{8+2*i}:{9+2*i}], v1, {S(SW)}, {'s69' if i else 's68'} offen sc1")
    E("  s_waitcnt vmcnt(0)")
    E("  v_xor_b32 v4, v8, v2")
    E("  v_xor_b32 v5, v9, v3")
    E("  v_or_b32 v4, v4, v5")
    for i in range(1, 4):
        E(f"  v_xor_b32 v5, v{8+2*i}, v2")
        E("  v_or_b32 v4, v4, v5")
        E(f"  v_xor_b32 v5, v{9+2*i}, v3")
        E("  v_or_b32 v4, v4, v5")
    E("  v_cmp_ne_u32 vcc, 0, v4")
    E("  s_nop 1")
    E("  s_cmp_eq_u64 vcc, 0")
    E("  s_cbranch_scc1 L_noall")
    spin_guard("L_noall")
    E("  s_sleep 4")
    E("  s_branch L_pollA")
    E("L_noall:")
    E("  s_barrier")
    E(f"  s_sub_u32 s67, s60, {W_CMB}")
    E("  s_cmp_ge_u32 s67, 2")
    E("  s_cbranch_scc1 L_nocomb")
    E(f"  v_subrev_u32 v1, {64*W_CMB}, v{tid}")
    E("  v_lshrrev_b32 v0, 5, v1")
    E("  v_lshlrev_b32 v2, 3, v0")
    E("  v_lshlrev_b32 v3, 4, v1")
    for w in range(8):
        E(f"  ds_read_b64 v[{8+2*w}:{9+2*w}], v2 offset:{LML+32*w}")
    for w in range(8):
        E(f"  ds_read_b128 v[{24+4*w}:{27+4*w}], v3 offset:{LP+2048*w}")
    E("  s_waitcnt lgkmcnt(8)")
    E("  v_max3_f32 v4, v8, v10, v12")
    E("  v_max3_f32 v4, v4, v14, v16")
    E("  v_max3_f32 v4, v4, v18, v20")
    E("  v_max_f32 v4, v4, v22")
    for w in range(8): E(f"  v_sub_f32 v{8+2*w}, v{8+2*w}, v4")
    for w in range(8): E(f"  v_exp_f32 v{8+2*w}, v{8+2*w}")
    E("  s_waitcnt lgkmcnt(0)")
    E("  v_mul_f32 v5, v8, v9")
    for e in range(4): E(f"  v_mul_f32 v{60+e}, v8, v{24+e}")
    for w in range(1, 8):
        E(f"  v_fmac_f32 v5, v{8+2*w}, v{9+2*w}")
        for e in range(4): E(f"  v_fmac_f32 v{60+e}, v{8+2*w}, v{24+4*w+e}")
    E("  v_min_u32 v4, 0xfffffffe, v4")
    E("  v_min_u32 v5, 0xfffffffe, v5")
    for e in range(4): E(f"  v_min_u32 v{60+e}, 0xfffffffe, v{60+e}")
    E("  s_lshl_b32 s67, s65, 5")
    E("  s_add_u32 s67, s67, s64")
    E("  s_lshl_b32 s68, s67, 9")
    E(f"  s_add_u32 s68, s68, {AO:#x}")
    E("  v_and_b32 v1, 31, v1")
    E("  v_lshlrev_b32 v7, 12, v0")
    E("  v_lshl_add_u32 v7, v1, 4, v7")
    E(f"  buffer_store_dwordx4 v[60:63], v7, {S(SW)}, s68 offen sc1")
    E("  s_lshl_b32 s68, s67, 3")
    E(f"  s_add_u32 s68, s68, {AML:#x}")
    E("  v_lshlrev_b32 v7, 6, v0")
    E("  v_cmp_eq_u32 vcc, 0, v1")
    E("  s_nop 1")
    E("  s_and_saveexec_b64 s[70:71], vcc")
    E(f"  buffer_store_dwordx2 v[4:5], v7, {S(SW)}, s68 offen sc1")
    E("  s_mov_b64 exec, s[70:71]")
    E("L_nocomb:")
    stamp(4)
    E(f"  s_cmp_eq_u32 s60, {W_WO}")
    E("  s_cbranch_scc1 L_tail_wo")
    E(f"  s_cmp_eq_u32 s60, {W_FIN}")
    E("  s_cbranch_scc1 L_tail_fin")
    E(f"  s_cmp_eq_u32 s60, {W_FFN}")
    E("  s_cbranch_scc0 L_exit")
    E("  s_cmp_ge_u32 s2, 112")
    E("  s_cbranch_scc1 L_exit")
    E(f"  v_and_b32 v0, 3, v{n}")
    E(f"  v_lshrrev_b32 v1, 2, v{n}")
    E("  v_lshl_add_u32 v2, v1, 2, v0")
    E("  s_movk_i32 s67, 30720")
    E("  v_mul_lo_u32 v2, v2, s67")
    E(f"  v_lshl_add_u32 v2, v{g}, 5, v2")
    E("  s_lshr_b32 s68, s2, 2")
    E("  s_lshl_b32 s69, s68, 8")
    E("  s_add_u32 s69, s69, 16384")
    E("  s_add_u32 s72, s69, 7168")
    for blk in range(2):
        E(f"  buffer_load_dwordx4 v[{8+8*blk}:{11+8*blk}], v2, {S(SW)}, s69 offen offset:{128*blk}")
        E(f"  buffer_load_dwordx4 v[{12+8*blk}:{15+8*blk}], v2, {S(SW)}, s69 offen offset:{128*blk+16}")
        E(f"  buffer_load_dwordx4 v[{24+8*blk}:{27+8*blk}], v2, {S(SW)}, s72 offen offset:{128*blk}")
        E(f"  buffer_load_dwordx4 v[{28+8*blk}:{31+8*blk}], v2, {S(SW)}, s72 offen offset:{128*blk+16}")
    E("  v_lshlrev_b32 v3, 2, v0")
    E(f"  s_mov_b32 s73, {GOFF:#x}")
    E(f"  buffer_load_dword v4, v3, {S(SW)}, s73 offen")
    E("  s_waitcnt vmcnt(0)")
    for r in (4, 8):
        for i in range(32):
            E(f"  v_add_f32_dpp v{8+i}, v{8+i}, v{8+i} row_ror:{r} row_mask:0xf bank_mask:0xf")
    E("  v_sub_f32 v4, 1.0, v4")
    for i in range(16): E(f"  v_mul_f32 v{8+i}, 0xbfb8aa3b, v{8+i}")
    for i in range(16): E(f"  v_exp_f32 v{8+i}, v{8+i}")
    for i in range(16): E(f"  v_mul_f32 v{24+i}, v{24+i}, v4")
    for i in range(16): E(f"  v_add_f32 v{8+i}, 1.0, v{8+i}")
    for i in range(16): E(f"  v_rcp_f32 v{8+i}, v{8+i}")
    E("  s_nop 0")
    for i in range(16): E(f"  v_mul_f32 v{8+i}, v{8+i}, v{24+i}")
    for i in range(8): E(f"  v_cvt_pk_bf16_f32 v{40+i}, v{8+2*i}, v{9+2*i}")
    ffn_slot(69)
    E("  s_branch L_tail_mm")
    E("L_tail_wo:")
    E(f"  v_and_b32 v0, 3, v{n}")
    E(f"  v_lshrrev_b32 v1, 2, v{n}")
    E("  s_lshr_b32 s68, s62, 3")
    E("  s_lshl_b32 s69, s61, 2")
    E("  s_add_u32 s69, s69, s68")
    E("  v_lshlrev_b32 v2, 17, v0")
    E("  v_lshl_add_u32 v2, v1, 10, v2")
    E(f"  v_lshl_add_u32 v2, v{g}, 5, v2")
    E("  s_lshl_b32 s72, s69, 12")
    E("  s_lshr_b32 s73, s62, 2")
    E("  s_and_b32 s73, s73, 1")
    E("  s_lshl_b32 s73, s73, 8")
    E("  s_add_u32 s72, s72, s73")
    E(f"  s_add_u32 s72, s72, {AO:#x}")
    E("  v_lshlrev_b32 v3, 11, v0")
    E("  v_lshl_add_u32 v5, v1, 4, v3")
    E("  s_lshl_b32 s73, s69, 6")
    E(f"  s_add_u32 s73, s73, {AML:#x}")
    E("  v_lshlrev_b32 v6, 2, v0")
    E(f"  s_mov_b32 s74, {GOFF:#x}")
    E(f"  buffer_load_dword v4, v6, {S(SW)}, s74 offen")
    E("  s_mov_b64 exec, 0xffff")
    E("L_poll1a:")
    E(f"  buffer_load_dwordx4 v[56:59], v5, {S(SW)}, s73 offen sc1")
    E("  s_waitcnt vmcnt(0)")
    E("  v_max3_u32 v7, v56, v57, v58")
    E("  v_max_u32 v7, v7, v59")
    E("  v_cmp_eq_u32 vcc, -1, v7")
    E("  s_nop 1")
    E("  s_cmp_eq_u64 vcc, 0")
    E("  s_cbranch_scc1 L_poll1a_done")
    spin_guard("L_poll1a_done")
    E(f"  s_sleep {SLP}")
    E("  s_branch L_poll1a")
    E("L_poll1a_done:")
    E("  s_mov_b64 exec, -1")
    E("L_poll1:")
    for s_ in range(2):
        for blk in range(2):
            r = 8 + 16*s_ + 8*blk
            E(f"  buffer_load_dwordx4 v[{r}:{r+3}], v2, {S(SW)}, s72 offen offset:{512*s_+128*blk} sc1")
            E(f"  buffer_load_dwordx4 v[{r+4}:{r+7}], v2, {S(SW)}, s72 offen offset:{512*s_+128*blk+16} sc1")
    for i in range(4):
        E(f"  buffer_load_dwordx4 v[{40+4*i}:{43+4*i}], v3, {S(SW)}, s73 offen offset:{16*i} sc1")
    E(f"  buffer_load_dwordx4 v[56:59], v5, {S(SW)}, s73 offen sc1")
    E("  s_waitcnt vmcnt(0)")
    E("  v_max3_u32 v7, v8, v9, v10")
    i = 11
    while i < 60:
        if i + 1 < 60:
            E(f"  v_max3_u32 v7, v7, v{i}, v{i+1}"); i += 2
        else:
            E(f"  v_max_u32 v7, v7, v{i}"); i += 1
    E("  v_cmp_eq_u32 vcc, -1, v7")
    E("  s_nop 1")
    E("  s_cmp_eq_u64 vcc, 0")
    E("  s_cbranch_scc1 L_poll1_done")
    spin_guard("L_poll1_done")
    E(f"  s_sleep {SLP}")
    E("  s_branch L_poll1")
    E("L_poll1_done:")
    stamp(5)
    E("  v_max3_f32 v7, v40, v42, v44")
    E("  v_max3_f32 v7, v7, v46, v48")
    E("  v_max3_f32 v7, v7, v50, v52")
    E("  v_max_f32 v7, v7, v54")
    for s_ in range(8): E(f"  v_sub_f32 v{40+2*s_}, v{40+2*s_}, v7")
    E("  v_sub_f32 v56, v56, v7")
    E("  v_sub_f32 v58, v58, v7")
    for s_ in range(8): E(f"  v_exp_f32 v{40+2*s_}, v{40+2*s_}")
    E("  v_exp_f32 v56, v56")
    E("  v_exp_f32 v58, v58")
    E("  v_mul_f32 v7, v40, v41")
    for s_ in range(1, 8): E(f"  v_fmac_f32 v7, v{40+2*s_}, v{41+2*s_}")
    E("  v_rcp_f32 v7, v7")
    E("  s_nop 0")
    E("  v_mul_f32 v7, v7, v4")
    E("  v_mul_f32 v56, v56, v7")
    E("  v_mul_f32 v58, v58, v7")
    for i in range(16): E(f"  v_mul_f32 v{8+i}, v{8+i}, v56")
    for i in range(16): E(f"  v_fmac_f32 v{8+i}, v{24+i}, v58")
    for r in (4, 8):
        for i in range(16):
            E(f"  v_add_f32_dpp v{8+i}, v{8+i}, v{8+i} row_ror:{r} row_mask:0xf bank_mask:0xf")
    for i in range(8): E(f"  v_cvt_pk_bf16_f32 v{40+i}, v{8+2*i}, v{9+2*i}")
    wo_slot(69)
    E("L_tail_mm:")
    E("  s_waitcnt vmcnt(0)")
    gemv_block(VR, 40, 96, SR, first=True)
    gemv_block(VR+32, 44, 96, SR, first=False)
    E("  s_lshl_b32 s69, s69, 11")
    E(f"  s_add_u32 s69, s69, {L2:#x}")
    E(f"  v_lshlrev_b32 v2, 7, v{n}")
    E(f"  v_cmp_gt_u32 vcc, 16, v{lane}")
    E("  s_nop 4")
    for i in range(32): E(f"  v_min_u32 v{SR+i}, 0xfffffffe, v{SR+i}")
    E("  s_and_saveexec_b64 s[70:71], vcc")
    for j in range(8):
        E(f"  buffer_store_dwordx4 v[{SR+4*j}:{SR+3+4*j}], v2, {S(SW)}, s69 offen offset:{16*j} sc1")
    E("  s_mov_b64 exec, s[70:71]")
    E(f"  s_cmp_eq_u32 s60, {W_WO}")
    E("  s_cbranch_scc0 L_noflag3")
    E(f"  v_mov_b32 v2, {LFLAG}")
    E("  v_mov_b32 v3, 3")
    E("  ds_write_b32 v2, v3")
    E("L_noflag3:")
    stamp(6)
    E("  s_branch L_exit")
    E("L_tail_fin:")
    E(f"  v_lshrrev_b32 v0, 1, v{lane}")
    E(f"  v_and_b32 v1, 1, v{lane}")
    E("  s_lshr_b32 s68, s2, 6")
    E(f"  s_mul_i32 s68, s68, {NT*2048}")
    E("  s_and_b32 s69, s2, 63")
    E("  s_lshl_b32 s69, s69, 5")
    E("  s_add_u32 s68, s68, s69")
    E(f"  s_add_u32 s68, s68, {L2:#x}")
    E("  v_lshlrev_b32 v2, 11, v0")
    E("  v_lshl_add_u32 v2, v1, 4, v2")
    E("  s_add_u32 s69, s68, 65536")
    E("  v_cmp_gt_u32 vcc, 28, v0")
    E("  v_add_u32 v3, 0x20000, v2")
    E("  s_nop 0")
    E("  v_cndmask_b32 v3, v2, v3, vcc")
    lds_wait("finwait", LFLAG, 3, 20)
    E("L_poll2:")
    E(f"  buffer_load_dwordx4 v[8:11], v2, {S(SW)}, s68 offen sc1")
    E(f"  buffer_load_dwordx4 v[12:15], v2, {S(SW)}, s69 offen sc1")
    E(f"  buffer_load_dwordx4 v[16:19], v3, {S(SW)}, s68 offen sc1")
    E("  s_waitcnt vmcnt(0)")
    E("  v_max3_u32 v7, v8, v9, v10")
    E("  v_max3_u32 v7, v7, v11, v12")
    E("  v_max3_u32 v7, v7, v13, v14")
    E("  v_max3_u32 v7, v7, v15, v16")
    E("  v_max3_u32 v7, v7, v17, v18")
    E("  v_max_u32 v7, v7, v19")
    E("  v_cmp_eq_u32 vcc, -1, v7")
    E("  s_nop 1")
    E("  s_cmp_eq_u64 vcc, 0")
    E("  s_cbranch_scc1 L_poll2_done")
    spin_guard("L_poll2_done")
    E(f"  s_sleep {SLP}")
    E("  s_branch L_poll2")
    E("L_poll2_done:")
    stamp(7)
    E("  v_cmp_gt_u32 vcc, 28, v0")
    E("  s_nop 1")
    for i in range(4): E(f"  v_cndmask_b32 v{16+i}, 0, v{16+i}, vcc")
    for i in range(4): E(f"  v_add_f32 v{8+i}, v{8+i}, v{12+i}")
    for i in range(4): E(f"  v_add_f32 v{8+i}, v{8+i}, v{16+i}")
    for r in (2, 4, 8):
        E("  s_nop 1")
        for i in range(4):
            E(f"  v_add_f32_dpp v{8+i}, v{8+i}, v{8+i} row_ror:{r} row_mask:0xf bank_mask:0xf")
    for op in ("v_permlane16_swap_b32", "v_permlane32_swap_b32"):
        for i in range(4): E(f"  v_mov_b32 v{12+i}, v{8+i}")
        E("  s_nop 1")
        for i in range(4): E(f"  {op} v{8+i}, v{12+i}")
        for i in range(4): E(f"  v_add_f32 v{8+i}, v{8+i}, v{12+i}")
    E("  s_nop 1")
    for i in range(4):
        E(f"  v_mov_b32_dpp v{12+i}, v{8+i} quad_perm:[1,0,3,2] row_mask:0xf bank_mask:0xf")
    for i in range(4): E(f"  v_cvt_pk_bf16_f32 v{8+i}, v{8+i}, v{12+i}")
    E("  s_lshl_b32 s68, s2, 2")
    E("  v_mov_b32 v2, 0")
    E("  s_mov_b64 exec, 1")
    for i in range(4):
        E(f"  buffer_store_dword v{8+i}, v2, {S(SO)}, s68 offen offset:{1024*i}")
    E("  s_mov_b64 exec, -1")
    E("L_exit:")
    if DIAG == 9:
        E(f"  s_cmp_eq_u32 s60, {W_FIN}")
        E("  s_cbranch_scc0 L_end")
        E("  s_memrealtime s[100:101]")
        E("  s_waitcnt lgkmcnt(0)")
        E("  s_not_b32 s84, s84")
        E("  v_mov_b32 v2, 0")
        E("  s_mov_b64 exec, 1")
        for i in (0, 1, 3, 4, 7, 8):
            E(f"  v_mov_b32 v{8+i}, s{84+2*i}")
            E(f"  buffer_atomic_umax v{8+i}, v2, {S(SD)}, 0 offen offset:{16+4*i} sc1")
    elif DIAG:
        E("  s_memrealtime s[100:101]")
        E("  s_waitcnt lgkmcnt(0)")
        E("  s_lshl_b32 s68, s2, 3")
        E("  s_add_u32 s68, s68, s60")
        E("  s_lshl_b32 s68, s68, 6")
        E(f"  s_add_u32 s68, s68, {DIAGOFF:#x}")
        for i in range(9): E(f"  v_mov_b32 v{8+i}, s{84+2*i}")
        E("  v_mov_b32 v2, 0")
        E("  s_mov_b64 exec, 1")
        E(f"  buffer_store_dwordx4 v[8:11], v2, {S(SW)}, s68 offen")
        E(f"  buffer_store_dwordx4 v[12:15], v2, {S(SW)}, s68 offen offset:16")
        E(f"  buffer_store_dword v16, v2, {S(SW)}, s68 offen offset:32")
    E("L_end:")
    E("  s_endpgm")

    E("L_pool:")
    lds_wait("pwait", LPROG, 7, M+8)
    claim()
    E("  s_waitcnt vmcnt(0)")
    E("L_claimed:")
    E(f"  v_readfirstlane_b32 s67, v{M+14}")
    E("  s_cmp_ge_u32 s67, 16")
    E("  s_cbranch_scc1 L_w0done")
    stamp(2)
    E("  s_lshl_b32 s66, s65, 21")
    E("  s_lshr_b32 s68, s67, 1")
    E("  s_lshl_b32 s68, s68, 18")
    E("  s_add_u32 s66, s66, s68")
    E("  s_and_b32 s68, s67, 1")
    E("  s_lshl_b32 s68, s68, 14")
    E("  s_add_u32 s66, s66, s68")
    q = Q()
    for t in range(4): kload(q, t)
    vload(q, 0, VR); vload(q, 1, VR+32)
    body(q, 4, [VR, VR+32], post_s=claim)
    E("  s_waitcnt vmcnt(0)")
    merge_old()
    write_partial()
    E("  s_branch L_claimed")

    E("L_stage1:")
    E("  s_setprio 3")
    E("  s_cmp_ge_u32 s62, 30")
    E("  s_cbranch_scc1 L_s1_clr")
    E("  s_cmp_ge_u32 s62, 16")
    E("  s_cbranch_scc1 L_s1_ffn")
    srd(ST, 10, 0x400000)
    E("  s_movk_i32 s72, 8192")
    E("  s_lshl_b32 s68, s61, 2")
    E("  s_lshr_b32 s69, s62, 2")
    E("  s_add_u32 s68, s68, s69")
    E("  s_and_b32 s73, s62, 3")
    E("  s_lshl_b32 s74, s68, 8")
    E("  s_lshl_b32 s75, s68, 9")
    E("  s_branch L_s1_go")
    E("L_s1_ffn:")
    E("  s_mul_i32 s68, s61, 14")
    E("  s_add_u32 s68, s68, s62")
    E("  s_sub_u32 s68, s68, 16")
    E("  s_and_b32 s73, s68, 3")
    E("  s_lshr_b32 s68, s68, 2")
    E("  s_movk_i32 s72, 3584")
    E("  s_lshl_b32 s75, s68, 9")
    E("  s_add_u32 s75, s75, 16384")
    E("  s_cmp_ge_u32 s68, 14")
    E(f"  s_cselect_b32 s{ST}, s18, s16")
    E(f"  s_cselect_b32 s{ST+1}, s19, s17")
    E("  s_cselect_b32 s69, 14, 0")
    E(f"  s_and_b32 s{ST+1}, s{ST+1}, 0xffff")
    E(f"  s_mov_b32 s{ST+2}, 0x1c0000")
    E(f"  s_mov_b32 s{ST+3}, 0x00020000")
    E("  s_sub_u32 s68, s68, s69")
    E("  s_lshl_b32 s74, s68, 8")
    E("L_s1_go:")
    E("  s_lshl_b32 s68, s73, 7")
    E(f"  v_lshlrev_b32 v164, 3, v{g}")
    E("  v_add_u32 v164, s68, v164")
    E(f"  v_and_b32 v165, 3, v{n}")
    E("  v_lshlrev_b32 v165, 10, v165")
    E("  v_lshl_add_u32 v165, v164, 1, v165")
    E("  v_mul_lo_u32 v166, v164, s72")
    E(f"  v_lshl_add_u32 v166, v{n}, 4, v166")
    E("  v_add_u32 v166, s74, v166")
    E("  s_mov_b32 s69, 0")
    E("  s_mul_i32 s67, s72, 24")
    for blk in range(4):
        E(f"  buffer_load_dwordx4 v[{128+4*blk}:{131+4*blk}], v165, {S(SX)}, 0 offen offset:{64*blk}")
        for kk in range(8):
            r = 32*blk + 4*kk
            E(f"  buffer_load_dwordx4 v[{r}:{r+3}], v166, {S(ST)}, s69 offen {S1F}")
            E("  s_add_u32 s69, s69, s72")
        if blk < 3: E("  s_add_u32 s69, s69, s67")
    E("L_s1_clr:")
    E(f"  v_mov_b32 v170, {LFLAG}")
    E("  v_mov_b32 v171, 1")
    E("  ds_write_b32 v170, v171")
    for i in range(4): E(f"  v_mov_b32 v{160+i}, -1")
    E("  s_lshl_b32 s67, s65, 5")
    E("  s_add_u32 s67, s67, s64")
    E("  s_lshl_b32 s68, s67, 9")
    E(f"  s_add_u32 s68, s68, {AO:#x}")
    E(f"  v_lshlrev_b32 v172, 12, v{g}")
    E(f"  v_lshl_add_u32 v172, v{n}, 5, v172")
    E(f"  buffer_store_dwordx4 v[160:163], v172, {S(SW)}, s68 offen sc1")
    E(f"  buffer_store_dwordx4 v[160:163], v172, {S(SW)}, s68 offen offset:16 sc1")
    E("  s_lshl_b32 s68, s67, 3")
    E(f"  s_add_u32 s68, s68, {AML:#x}")
    E(f"  v_lshlrev_b32 v172, 6, v{g}")
    E("  s_mov_b32 exec_lo, 0x00010001")
    E("  s_mov_b32 exec_hi, 0x00010001")
    E(f"  buffer_store_dwordx2 v[160:161], v172, {S(SW)}, s68 offen sc1")
    E("  s_mov_b64 exec, -1")
    wo_slot(69)
    E("  s_lshl_b32 s69, s69, 11")
    E(f"  s_add_u32 s69, s69, {L2:#x}")
    E(f"  v_lshlrev_b32 v172, 5, v{lane}")
    E(f"  buffer_store_dwordx4 v[160:163], v172, {S(SW)}, s69 offen sc1")
    E(f"  buffer_store_dwordx4 v[160:163], v172, {S(SW)}, s69 offen offset:16 sc1")
    NCLR = 5
    E("  s_cmp_ge_u32 s2, 112")
    E("  s_cbranch_scc1 L_s1_noffnclr")
    ffn_slot(69)
    E("  s_lshl_b32 s69, s69, 11")
    E(f"  s_add_u32 s69, s69, {L2:#x}")
    E(f"  buffer_store_dwordx4 v[160:163], v172, {S(SW)}, s69 offen sc1")
    E(f"  buffer_store_dwordx4 v[160:163], v172, {S(SW)}, s69 offen offset:16 sc1")
    E("L_s1_noffnclr:")
    E("  s_cmp_ge_u32 s62, 4")
    E("  s_cbranch_scc1 L_s1_nocnt")
    E("  s_lshl_b32 s68, s62, 3")
    E("  s_add_u32 s68, s68, s61")
    E("  s_lshl_b32 s68, s68, 7")
    E(f"  s_add_u32 s68, s68, {CNT:#x}")
    E("  v_mov_b32 v172, 0")
    E("  s_mov_b64 exec, 1")
    E(f"  buffer_store_dword v172, v172, {S(SW)}, s68 offen sc1")
    E("  s_mov_b64 exec, -1")
    E("L_s1_nocnt:")
    E("  v_mov_b32 v172, 0")
    E("  s_mov_b64 exec, 1")
    E(f"  buffer_load_dwordx2 v[168:169], v172, {S(SD)}, 0 offen sc1")
    E("  s_mov_b64 exec, -1")
    E("  s_cmp_ge_u32 s62, 30")
    E("  s_cbranch_scc1 L_s1_gate")
    for blk in range(4):
        E(f"  s_waitcnt vmcnt({9*(3-blk)+6})")
        gemv_block(32*blk, 128+4*blk, 144, 192, first=(blk == 0))
    stamp(1, 2)
    E("  s_nop 7")
    for b in range(4):
        for j in range(8):
            E(f"  v_mov_b32 v{8*b+j}, v{192+4*j+b}")
    E("  s_mul_i32 s68, s73, 122880")
    E("  s_add_u32 s68, s68, s75")
    E(f"  v_lshlrev_b32 v164, 5, v{n}")
    E("  s_mov_b64 exec, 0xffff")
    for b in range(4):
        E(f"  buffer_store_dwordx4 v[{8*b}:{8*b+3}], v164, {S(SW)}, s68 offen sc1")
        E(f"  buffer_store_dwordx4 v[{8*b+4}:{8*b+7}], v164, {S(SW)}, s68 offen offset:16 sc1")
        if b < 3: E("  s_add_u32 s68, s68, 30720")
    E("  s_mov_b64 exec, -1")
    E("  s_branch L_s1_signal")
    E("L_s1_gate:")
    E("  s_cmp_lg_u32 s2, 198")
    E("  s_cbranch_scc1 L_s1_signal")
    srd(ST, 22, 1024)
    E(f"  v_lshlrev_b32 v164, 4, v{lane}")
    E(f"  buffer_load_dwordx4 v[16:19], v164, {S(ST)}, 0 offen")
    for b in range(4):
        E(f"  buffer_load_dwordx4 v[{4*b}:{4*b+3}], v164, {S(SX)}, 0 offen offset:{1024*b}")
    E("  s_waitcnt vmcnt(0)")
    for b in range(4): E(f"  v_mov_b32 v{24+b}, 0")
    for c in range(4):
        E(f"  v_lshlrev_b32 v20, 16, v{16+c}")
        E(f"  v_and_b32 v21, 0xffff0000, v{16+c}")
        for b in range(4):
            E(f"  v_lshlrev_b32 v22, 16, v{4*b+c}")
            E(f"  v_and_b32 v23, 0xffff0000, v{4*b+c}")
            E(f"  v_fmac_f32 v{24+b}, v20, v22")
            E(f"  v_fmac_f32 v{24+b}, v21, v23")
    for r in (8, 4, 2, 1):
        E("  s_nop 1")
        for b in range(4):
            E(f"  v_add_f32_dpp v{24+b}, v{24+b}, v{24+b} row_ror:{r} row_mask:0xf bank_mask:0xf")
    for op in ("v_permlane16_swap_b32", "v_permlane32_swap_b32"):
        for i in range(4): E(f"  v_mov_b32 v{28+i}, v{24+i}")
        E("  s_nop 1")
        for i in range(4): E(f"  {op} v{24+i}, v{28+i}")
        for i in range(4): E(f"  v_add_f32 v{24+i}, v{24+i}, v{28+i}")
    for i in range(4): E(f"  v_mul_f32 v{24+i}, 0xbfb8aa3b, v{24+i}")
    for i in range(4): E(f"  v_exp_f32 v{24+i}, v{24+i}")
    E("  s_nop 0")
    for i in range(4): E(f"  v_add_f32 v{24+i}, 1.0, v{24+i}")
    for i in range(4): E(f"  v_rcp_f32 v{24+i}, v{24+i}")
    E(f"  s_mov_b32 s68, {GOFF:#x}")
    E("  v_mov_b32 v164, 0")
    E("  s_mov_b64 exec, 1")
    E(f"  buffer_store_dwordx4 v[24:27], v164, {S(SW)}, s68 offen sc1")
    E("  s_mov_b64 exec, -1")
    E("L_s1_signal:")
    E("  s_waitcnt vmcnt(0)")
    stamp(2, 2)
    E("  v_mov_b32 v164, 0")
    E("  s_mov_b64 exec, 1")
    E("L_pollN:")
    E("  v_readfirstlane_b32 s78, v168")
    E("  v_readfirstlane_b32 s79, v169")
    E("  s_and_b32 s68, s78, 1")
    E("  s_lshr_b32 s69, s79, 31")
    E("  s_and_b32 s68, s68, s69")
    E("  s_cmp_eq_u32 s68, 1")
    E("  s_cbranch_scc1 L_pollN_done")
    spin_guard("L_pollN_done")
    E(f"  buffer_load_dwordx2 v[168:169], v164, {S(SD)}, 0 offen sc1")
    E("  s_waitcnt vmcnt(0)")
    E("  s_branch L_pollN")
    E("L_pollN_done:")
    E("  s_lshl_b32 s68, s2, 7")
    E(f"  s_add_u32 s68, s68, {FL:#x}")
    E(f"  buffer_store_dwordx2 v[168:169], v164, {S(SW)}, s68 offen sc1")
    E("  s_mov_b64 exec, -1")
    E(f"  v_lshrrev_b32 v164, 3, v{lane}")
    E("  v_lshlrev_b32 v164, 6, v164")
    E(f"  v_and_b32 v165, 7, v{lane}")
    E("  v_add_u32 v164, v164, v165")
    E("  v_lshlrev_b32 v164, 7, v164")
    E("  s_lshl_b32 s68, s61, 10")
    E(f"  s_add_u32 s68, s68, {FL:#x}")
    E("  s_mov_b64 exec, 0xffff")
    E("L_poll0:")
    E(f"  buffer_load_dwordx2 v[166:167], v164, {S(SW)}, s68 offen sc1")
    E("  s_waitcnt vmcnt(0)")
    E("  v_cmp_ne_u32 vcc, s78, v166")
    E("  v_cmp_ne_u32 s[72:73], s79, v167")
    E("  s_nop 1")
    E("  s_or_b64 vcc, vcc, s[72:73]")
    E("  s_cmp_eq_u64 vcc, 0")
    E("  s_cbranch_scc1 L_poll0_done")
    spin_guard("L_poll0_done")
    E("  s_sleep 1")
    E("  s_branch L_poll0")
    E("L_poll0_done:")
    E("  s_mov_b64 exec, -1")
    stamp(3, 2)
    E("  s_mul_i32 s68, s63, 30720")
    E("  s_lshl_b32 s69, s61, 11")
    E("  s_add_u32 s68, s68, s69")
    E(f"  v_lshlrev_b32 v164, 5, v{lane}")
    for kq in range(4):
        E(f"  buffer_load_dwordx4 v[{8*kq}:{8*kq+3}], v164, {S(SW)}, s68 offen")
        E(f"  buffer_load_dwordx4 v[{8*kq+4}:{8*kq+7}], v164, {S(SW)}, s68 offen offset:16")
        if kq < 3: E("  s_add_u32 s68, s68, 122880")
    E("  s_waitcnt vmcnt(0)")
    stamp(4, 2)
    for i in range(8):
        E(f"  v_add_f32 v{i}, v{i}, v{8+i}")
        E(f"  v_add_f32 v{16+i}, v{16+i}, v{24+i}")
    for i in range(8): E(f"  v_add_f32 v{i}, v{i}, v{16+i}")
    for i in range(4): E(f"  v_cvt_pk_bf16_f32 v{32+i}, v{2*i}, v{2*i+1}")
    E(f"  v_lshlrev_b32 v164, 4, v{lane}")
    E(f"  ds_write_b128 v164, v[32:35] offset:{LQ}")
    E(f"  v_mov_b32 v164, {LNONCE}")
    E("  v_mov_b32 v166, s78")
    E("  v_mov_b32 v167, s79")
    E("  ds_write_b64 v164, v[166:167]")
    E("  s_waitcnt lgkmcnt(0)")
    E(f"  v_mov_b32 v164, {LFLAG}")
    E("  v_mov_b32 v165, 2")
    E("  ds_write_b32 v164, v165")
    E("  s_setprio 0")
    for i in range(4): E(f"  v_mov_b32 v{i}, 0")
    E(f"  v_lshlrev_b32 v164, 5, v{lane}")
    E(f"  ds_write_b128 v164, v[0:3] offset:{LP}")
    E(f"  ds_write_b128 v164, v[0:3] offset:{LP+16}")
    E("  v_mov_b32 v0, 0xf149f2ca")
    E(f"  v_and_b32 v164, 3, v{lane}")
    E("  v_lshlrev_b32 v164, 3, v164")
    E(f"  ds_write_b64 v164, v[0:1] offset:{LML}")
    E("  s_branch L_pool")

    E(f""".section .rodata,"a"
.p2align 6
.amdhsa_kernel {name}
  .amdhsa_next_free_vgpr 256
  .amdhsa_next_free_sgpr 102
  .amdhsa_accum_offset 256
  .amdhsa_group_segment_fixed_size 0
  .amdhsa_kernarg_size 104
  .amdhsa_user_sgpr_count 2
  .amdhsa_user_sgpr_kernarg_segment_ptr 1
  .amdhsa_system_sgpr_workgroup_id_x 1
.end_amdhsa_kernel""")

E(HEADER.rstrip())
E(f"; @launch grid=(256,1,1) block=(512,1,1) lds={LDS_BYTES}")
E('.amdgcn_target "amdgcn-amd-amdhsa--gfx950"')
E(".text")
kernel()
open(sys.argv[1], "w").write("\n".join(out) + "\n")
```

```python
import sys, os, math, struct
NAME = "gated_mix__gqa_block_cached__glu_gated_glu__decode"
KVF = os.environ.get("KVF", "nt")
S1F = os.environ.get("S1F", "nt")
DIAG = int(os.environ.get("DIAG", "0"))
PT = int(os.environ.get("PT", "16"))
SLP = int(os.environ.get("SLP", "2"))
NCL = int(os.environ.get("NCL", "2"))
out = []
def E(s=""): out.append(s)

P1 = 0x0
GOFF = 0x80000
AO = 0x100000
AML = 0x180000
L2 = 0x200000
FL = 0x300000
CNT = 0x310000
DIAGOFF = 0x400000
WS_BYTES = 0x10000000
NT = 92
LQ, LP, LML, LFLAG, LNONCE, LPROG, VST = 0, 1024, 17408, 17664, 17672, 17680, 18432
LDS_BYTES = VST + 8 * 16384
W_WO, W_FFN, W_FIN, W_CMB, W_ALL = 5, 6, 7, 2, 3

HEADER = open("cdna_kernels/" + NAME + ".s.ref").read().split("; Override launch")[0]

def srd(d, b, nbytes):
    E(f"  s_mov_b32 s{d}, s{b}")
    E(f"  s_and_b32 s{d+1}, s{b+1}, 0xffff")
    E(f"  s_mov_b32 s{d+2}, {nbytes:#x}")
    E(f"  s_mov_b32 s{d+3}, 0x00020000")

SELLO, SELHI = 80, 81
def gemv_block(W, A, T, ACC, first=True):
    def perms(j):
        c = j >> 1
        sel = SELHI if (j & 1) else SELLO
        t = T + 4 * (j & 1)
        for i in range(4):
            E(f"  v_perm_b32 v{t+i}, v{W+4*(2*i+1)+c}, v{W+4*(2*i)+c}, s{sel}")
    def mfma(j):
        t = T + 4 * (j & 1)
        a = ACC + 4 * j
        c = "0" if first else f"v[{a}:{a+3}]"
        E(f"  v_mfma_f32_16x16x32_bf16 v[{a}:{a+3}], v[{A}:{A+3}], v[{t}:{t+3}], {c}")
    perms(0)
    for j in range(8):
        if j + 1 < 8: perms(j + 1)
        else: E("  s_nop 1")
        mfma(j)

def stamp(i, lvl=1):
    if (1 if DIAG == 9 else DIAG) != lvl: return
    E(f"  s_memrealtime s[{84+2*i}:{85+2*i}]")

def spin_guard(label, lim="0x40000"):
    E("  s_add_u32 s83, s83, 1")
    E(f"  s_cmp_gt_u32 s83, {lim}")
    E(f"  s_cbranch_scc1 {label}")

def lds_wait(name, off, val, vtmp):
    E(f"  v_mov_b32 v{vtmp}, {off}")
    E(f"L_{name}:")
    E(f"  ds_read_b32 v{vtmp+1}, v{vtmp}")
    E("  s_waitcnt lgkmcnt(0)")
    E(f"  v_readfirstlane_b32 s67, v{vtmp+1}")
    E(f"  s_cmp_ge_u32 s67, {val}")
    E(f"  s_cbranch_scc1 L_{name}_done")
    spin_guard(f"L_{name}_done", "0x400000")
    E("  s_sleep 1")
    E(f"  s_branch L_{name}")
    E(f"L_{name}_done:")

KR, VR, SR, QR, M = 0, 128, 192, 224, 240
tid, lane, g, n = M, M+1, M+2, M+3
vk, vv = M+6, M+7
mx, t1, ls = M+8, M+9, M+10
SK, SV, SW, SD, ST, SX, SO = 32, 36, 40, 44, 48, 52, 56
def S(x): return f"s[{x}:{x+3}]"
cbits = struct.unpack("<I", struct.pack("<f", (128 ** -0.5) * math.log2(math.e)))[0]

class Q:
    def __init__(s): s.q = []
    def ld(s, nm): s.q.append(nm)
    def wait(s, nm):
        idx = max(i for i, x in enumerate(s.q) if x == nm)
        E(f"  s_waitcnt vmcnt({len(s.q)-1-idx})")
        del s.q[:idx+1]

def kload(q, t):
    E(f"  s_add_u32 s67, s66, {t*4096}")
    for j in range(4):
        r = KR + 16*t + 4*j
        E(f"  buffer_load_dwordx4 v[{r}:{r+3}], v{vk}, {S(SK)}, s67 offen offset:{64*j} {KVF}")
        q.ld(f"k{t}")
def vload(q, t, base):
    for half in range(2):
        E(f"  s_add_u32 s67, s66, {t*8192+half*4096}")
        for k4 in range(4):
            r = base + 4*(half*4+k4)
            E(f"  buffer_load_dwordx4 v[{r}:{r+3}], v{vv}, {S(SV)}, s67 offen offset:{256*k4} {KVF}")
            q.ld(f"v{t}")
def vload_lds(q, t):
    for half in range(2):
        E(f"  s_add_u32 s67, s66, {t*8192+half*4096}")
        for k4 in range(4):
            i = (t-2)*8 + half*4 + k4
            E(f"  s_add_u32 m0, s77, {i*1024 - 256*k4}")
            E("  s_nop 0")
            E(f"  buffer_load_dwordx4 v{vv}, {S(SV)}, s67 offen offset:{256*k4} {KVF} lds")
            q.ld(f"v{t}")

def body(q, nt, vbase, pre_pv3=None, post_s=None):
    E(f"  v_and_b32 v{M+9}, 3, v{n}")
    E(f"  v_lshlrev_b32 v{M+9}, 8, v{M+9}")
    E(f"  v_lshl_add_u32 v{M+9}, v{g}, 4, v{M+9}")
    for j in range(4):
        E(f"  ds_read_b128 v[{QR+4*j}:{QR+4*j+3}], v{M+9} offset:{LQ+64*j}")
    E("  s_waitcnt lgkmcnt(0)")
    for t in range(nt):
        q.wait(f"k{t}")
        s = SR + 4*t
        for j in range(4):
            r = KR + 16*t + 4*j
            c = "0" if j == 0 else f"v[{s}:{s+3}]"
            E(f"  v_mfma_f32_16x16x32_bf16 v[{s}:{s+3}], v[{r}:{r+3}], v[{QR+4*j}:{QR+4*j+3}], {c}")
    if post_s: post_s()
    E("  s_nop 7")
    ns = 4*nt
    E(f"  v_max3_f32 v{mx}, v{SR}, v{SR+1}, v{SR+2}")
    i = 3
    while i < ns:
        if i + 1 < ns:
            E(f"  v_max3_f32 v{mx}, v{mx}, v{SR+i}, v{SR+i+1}"); i += 2
        else:
            E(f"  v_max_f32 v{mx}, v{mx}, v{SR+i}"); i += 1
    for op in ("v_permlane16_swap_b32", "v_permlane32_swap_b32"):
        E(f"  v_mov_b32 v{t1}, v{mx}")
        E("  s_nop 1")
        E(f"  {op} v{mx}, v{t1}")
        E(f"  v_max_f32 v{mx}, v{mx}, v{t1}")
    E(f"  v_mul_f32 v{mx}, s82, v{mx}")
    for i in range(ns): E(f"  v_fma_f32 v{SR+i}, v{SR+i}, s82, -v{mx}")
    for i in range(ns): E(f"  v_exp_f32 v{SR+i}, v{SR+i}")
    E("  s_nop 0")
    E(f"  v_add_f32 v{ls}, v{SR}, v{SR+1}")
    for i in range(2, ns): E(f"  v_add_f32 v{ls}, v{ls}, v{SR+i}")
    for t in range(nt//2):
        for h in range(4):
            a = SR + 8*t + 2*h
            E(f"  v_cvt_pk_bf16_f32 v{QR+4*t+h}, v{a}, v{a+1}")
    for op in ("v_permlane16_swap_b32", "v_permlane32_swap_b32"):
        E(f"  v_mov_b32 v{t1}, v{ls}")
        E("  s_nop 1")
        E(f"  {op} v{ls}, v{t1}")
        E(f"  v_add_f32 v{ls}, v{ls}, v{t1}")
    ACC = SR; T = KR + 96
    for t in range(nt//2):
        q.wait(f"v{t}")
        if t >= 2:
            if t == 2:
                E(f"  v_lshlrev_b32 v{M+11}, 4, v{lane}")
                E(f"  v_add_u32 v{M+11}, s77, v{M+11}")
            for i in range(8):
                r = vbase[t] + 4*i
                E(f"  ds_read_b128 v[{r}:{r+3}], v{M+11} offset:{((t-2)*8+i)*1024}")
            E("  s_waitcnt lgkmcnt(0)")
        if t == 3 and pre_pv3: pre_pv3()
        gemv_block(vbase[t], QR+4*t, T, ACC, first=(t == 0))
    E("  s_lshl_b32 s67, s60, 11")
    E(f"  v_lshlrev_b32 v{M+11}, 5, v{n}")
    E(f"  v_add_u32 v{M+11}, s67, v{M+11}")
    E("  s_nop 5")
    for h in range(4):
        for j in range(8):
            E(f"  v_mov_b32 v{8*h+j}, v{ACC+4*j+h}")

def write_partial():
    E(f"  v_cmp_gt_u32 vcc, 16, v{lane}")
    E("  s_nop 1")
    E("  s_and_saveexec_b64 s[70:71], vcc")
    for h in range(4):
        E(f"  ds_write_b128 v{M+11}, v[{8*h}:{8*h+3}] offset:{LP+512*h}")
        E(f"  ds_write_b128 v{M+11}, v[{8*h+4}:{8*h+7}] offset:{LP+512*h+16}")
    E("  s_mov_b64 exec, s[70:71]")
    E("  s_lshl_b32 s67, s60, 5")
    E(f"  v_lshlrev_b32 v{M+11}, 3, v{lane}")
    E(f"  v_add_u32 v{M+11}, s67, v{M+11}")
    E(f"  v_mov_b32 v{M+12}, v{mx}")
    E(f"  v_mov_b32 v{M+13}, v{ls}")
    E(f"  v_cmp_gt_u32 vcc, 4, v{lane}")
    E("  s_nop 1")
    E("  s_and_saveexec_b64 s[70:71], vcc")
    E(f"  ds_write_b64 v{M+11}, v[{M+12}:{M+13}] offset:{LML}")
    E("  s_mov_b64 exec, s[70:71]")
    E("  s_waitcnt lgkmcnt(0)")

def merge_old():
    E("  s_lshl_b32 s67, s60, 5")
    E("  v_mov_b32 v32, s67")
    for h in range(4):
        E(f"  ds_read_b64 v[{34+2*h}:{35+2*h}], v32 offset:{LML+8*h}")
    for h in range(4):
        E(f"  ds_read_b128 v[{64+8*h}:{67+8*h}], v{M+11} offset:{LP+512*h}")
        E(f"  ds_read_b128 v[{68+8*h}:{71+8*h}], v{M+11} offset:{LP+512*h+16}")
    for h in range(4):
        E(f"  v_readlane_b32 s{68+h}, v{mx}, {h}")
        E(f"  v_readlane_b32 s{72+h}, v{ls}, {h}")
    E("  s_waitcnt lgkmcnt(0)")
    for h in range(4):
        mo, lo = 34+2*h, 35+2*h
        E(f"  v_max_f32 v44, s{68+h}, v{mo}")
        E(f"  v_sub_f32 v45, v{mo}, v44")
        E(f"  v_sub_f32 v46, s{68+h}, v44")
        E("  v_exp_f32 v45, v45")
        E("  v_exp_f32 v46, v46")
        E("  s_nop 0")
        E(f"  v_mul_f32 v{lo}, v{lo}, v45")
        E(f"  v_fma_f32 v{lo}, v46, s{72+h}, v{lo}")
        E(f"  v_mov_b32 v{mo}, v44")
        for j in range(8):
            E(f"  v_mul_f32 v{8*h+j}, v{8*h+j}, v46")
            E(f"  v_fmac_f32 v{8*h+j}, v{64+8*h+j}, v45")
    for h in range(4):
        E(f"  v_readfirstlane_b32 s{68+h}, v{34+2*h}")
        E(f"  v_readfirstlane_b32 s{72+h}, v{35+2*h}")
    E("  s_nop 3")
    for h in range(4):
        E(f"  v_writelane_b32 v{mx}, s{68+h}, {h}")
        E(f"  v_writelane_b32 v{ls}, s{72+h}, {h}")

def claim():
    E(f"  v_mov_b32 v{M+14}, 1")
    E(f"  v_mov_b32 v{M+15}, 0")
    E("  s_mov_b64 exec, 1")
    E(f"  buffer_atomic_add v{M+14}, v{M+15}, {S(SW)}, s76 offen sc0 sc1")
    E("  s_mov_b64 exec, -1")

def wo_slot(dst):
    E(f"  s_and_b32 s{dst}, s62, 3")
    E(f"  s_mul_i32 s{dst}, s{dst}, {NT}")
    E("  s_lshl_b32 s68, s61, 3")
    E(f"  s_add_u32 s{dst}, s{dst}, s68")
    E("  s_lshr_b32 s68, s62, 2")
    E(f"  s_add_u32 s{dst}, s{dst}, s68")
def ffn_slot(dst):
    E(f"  s_and_b32 s{dst}, s2, 3")
    E(f"  s_mul_i32 s{dst}, s{dst}, {NT}")
    E("  s_lshr_b32 s68, s2, 2")
    E(f"  s_add_u32 s{dst}, s{dst}, s68")
    E(f"  s_add_u32 s{dst}, s{dst}, 64")

def kernel():
    name = NAME + "_kernel"
    E(f".globl {name}\n.p2align 8\n.type {name},@function\n{name}:")
    E("  s_cmp_ge_u32 s2, 256")
    E("  s_cbranch_scc1 L_end")
    E("  s_load_dwordx16 s[4:19], s[0:1], 0")
    E("  s_load_dwordx8 s[20:27], s[0:1], 64")
    E("  s_load_dwordx2 s[28:29], s[0:1], 96")
    if DIAG:
        for i in range(18): E(f"  s_mov_b32 s{84+i}, 0")
        E("  s_memrealtime s[84:85]")
    E(f"  v_mov_b32 v{tid}, v0")
    E(f"  v_and_b32 v{lane}, 63, v0")
    E(f"  v_lshrrev_b32 v{M+4}, 6, v0")
    E(f"  v_lshrrev_b32 v{g}, 4, v{lane}")
    E(f"  v_readfirstlane_b32 s60, v{M+4}")
    E(f"  v_and_b32 v{n}, 15, v{lane}")
    E("  s_mov_b32 s83, 0")
    E(f"  s_mov_b32 s{SELLO}, 0x05040100")
    E(f"  s_mov_b32 s{SELHI}, 0x07060302")
    E(f"  s_mov_b32 s82, {cbits:#x}")
    E("  s_lshr_b32 s61, s2, 3")
    E("  s_and_b32 s61, s61, 7")
    E("  s_lshr_b32 s63, s2, 6")
    E("  s_and_b32 s64, s2, 7")
    E("  s_lshl_b32 s62, s63, 3")
    E("  s_add_u32 s62, s62, s64")
    E("  s_lshl_b32 s65, s63, 3")
    E("  s_add_u32 s65, s65, s61")
    E("  s_lshl_b32 s66, s65, 21")
    E("  s_lshl_b32 s67, s64, 18")
    E("  s_add_u32 s66, s66, s67")
    E("  s_lshl_b32 s67, s60, 15")
    E("  s_add_u32 s66, s66, s67")
    E("  s_lshl_b32 s77, s60, 14")
    E(f"  s_add_u32 s77, s77, {VST}")
    E("  s_lshl_b32 s76, s65, 7")
    E(f"  s_add_u32 s76, s76, {CNT:#x}")
    E(f"  v_lshlrev_b32 v{vk}, 8, v{n}")
    E(f"  v_lshl_add_u32 v{vk}, v{g}, 4, v{vk}")
    E(f"  v_lshlrev_b32 v{vv}, 10, v{g}")
    E(f"  v_lshl_add_u32 v{vv}, v{n}, 4, v{vv}")
    E(f"  v_mov_b32 v{M+8}, 0")
    E(f"  v_mov_b32 v{M+9}, {LFLAG}")
    E(f"  ds_write_b32 v{M+9}, v{M+8}")
    E(f"  ds_write_b32 v{M+9}, v{M+8} offset:16")
    E("  s_waitcnt lgkmcnt(0)")
    E("  s_barrier")
    srd(SK, 6, 0x4000000); srd(SV, 8, 0x4000000); srd(SW, 28, WS_BYTES)
    srd(SD, 26, 256); srd(SX, 4, 4096); srd(SO, 24, 4096)
    E("  s_cmp_eq_u32 s60, 0")
    E("  s_cbranch_scc1 L_stage1")
    E("  s_lshl_b32 s67, s2, 3")
    E("  s_add_u32 s67, s67, s60")
    E("  s_cmp_lg_u32 s67, 1")
    E("  s_cbranch_scc1 L_nopub")
    E("  s_memrealtime s[78:79]")
    E("  s_waitcnt lgkmcnt(0)")
    E("  s_or_b32 s78, s78, 1")
    E("  s_or_b32 s79, s79, 0x80000000")
    E("  v_mov_b32 v8, s78")
    E("  v_mov_b32 v9, s79")
    E("  v_mov_b32 v10, 0")
    E("  s_mov_b64 exec, 1")
    E(f"  buffer_store_dwordx2 v[8:9], v10, {S(SD)}, 0 offen sc1")
    E("  s_mov_b64 exec, -1")
    E("L_nopub:")
    lds_wait("fwait", LFLAG, 1, M+8)
    q = Q()
    for t in range(8): kload(q, t)
    vload(q, 0, VR); vload(q, 1, VR+32)
    vload_lds(q, 2); vload_lds(q, 3)
    E(f"  s_waitcnt vmcnt({PT})")
    E(f"  v_mov_b32 v{M+9}, {LPROG}")
    E(f"  v_mov_b32 v{M+8}, 1")
    E("  s_mov_b64 exec, 1")
    E(f"  ds_add_u32 v{M+9}, v{M+8}")
    E("  s_mov_b64 exec, -1")
    lds_wait("qwait", LFLAG, 2, M+8)
    stamp(1)
    def prefetch():
        stamp(3)
        E(f"  s_cmp_eq_u32 s60, {W_WO}")
        E("  s_cbranch_scc1 L_pf_wo")
        E(f"  s_cmp_eq_u32 s60, {W_FFN}")
        E("  s_cbranch_scc0 L_pf_done")
        E("  s_cmp_ge_u32 s2, 112")
        E("  s_cbranch_scc1 L_pf_done")
        srd(ST, 20, 0x1c0000)
        E("  s_lshr_b32 s68, s2, 2")
        E("  s_lshl_b32 s68, s68, 16")
        E("  s_and_b32 s69, s2, 3")
        E("  s_branch L_pf_go")
        E("L_pf_wo:")
        srd(ST, 12, 0x400000)
        E("  s_lshl_b32 s68, s61, 3")
        E("  s_lshr_b32 s69, s62, 2")
        E("  s_add_u32 s68, s68, s69")
        E("  s_lshl_b32 s68, s68, 16")
        E("  s_and_b32 s69, s62, 3")
        E("L_pf_go:")
        E("  s_lshl_b32 s69, s69, 8")
        E("  s_add_u32 s68, s68, s69")
        E(f"  v_lshlrev_b32 v{M+11}, 13, v{g}")
        E(f"  v_lshl_add_u32 v{M+11}, v{n}, 4, v{M+11}")
        for blk in range(2):
            for half in range(2):
                E(f"  s_add_u32 s69, s68, {blk*32768+half*4096}")
                for k4 in range(4):
                    r = VR + 32*blk + 4*(half*4+k4)
                    E(f"  buffer_load_dwordx4 v[{r}:{r+3}], v{M+11}, {S(ST)}, s69 offen offset:{1024*k4} {S1F}")
        E("L_pf_done:")
    body(q, 8, [VR, VR+32, KR, KR+32], pre_pv3=prefetch)
    write_partial()
    E(f"  s_cmp_lt_u32 s60, {NCL}")
    E("  s_cbranch_scc1 L_pool")
    E("L_w0done:")
    E(f"  s_cmp_eq_u32 s60, {W_ALL}")
    E("  s_cbranch_scc0 L_noall")
    E(f"  v_mov_b32 v0, {LNONCE}")
    E("  ds_read_b64 v[2:3], v0")
    E(f"  v_lshlrev_b32 v1, 7, v{lane}")
    E(f"  s_mov_b32 s68, {FL:#x}")
    E("  s_waitcnt lgkmcnt(0)")
    E("L_pollA:")
    for i in range(4):
        if i: E(f"  s_add_u32 s69, s68, {8192*i}")
        E(f"  buffer_load_dwordx2 v[{8+2*i}:{9+2*i}], v1, {S(SW)}, {'s69' if i else 's68'} offen sc1")
    E("  s_waitcnt vmcnt(0)")
    E("  v_xor_b32 v4, v8, v2")
    E("  v_xor_b32 v5, v9, v3")
    E("  v_or_b32 v4, v4, v5")
    for i in range(1, 4):
        E(f"  v_xor_b32 v5, v{8+2*i}, v2")
        E("  v_or_b32 v4, v4, v5")
        E(f"  v_xor_b32 v5, v{9+2*i}, v3")
        E("  v_or_b32 v4, v4, v5")
    E("  v_cmp_ne_u32 vcc, 0, v4")
    E("  s_nop 1")
    E("  s_cmp_eq_u64 vcc, 0")
    E("  s_cbranch_scc1 L_noall")
    spin_guard("L_noall")
    E("  s_sleep 4")
    E("  s_branch L_pollA")
    E("L_noall:")
    E("  s_barrier")
    E(f"  s_sub_u32 s67, s60, {W_CMB}")
    E("  s_cmp_ge_u32 s67, 2")
    E("  s_cbranch_scc1 L_nocomb")
    E(f"  v_subrev_u32 v1, {64*W_CMB}, v{tid}")
    E("  v_lshrrev_b32 v0, 5, v1")
    E("  v_lshlrev_b32 v2, 3, v0")
    E("  v_lshlrev_b32 v3, 4, v1")
    for w in range(8):
        E(f"  ds_read_b64 v[{8+2*w}:{9+2*w}], v2 offset:{LML+32*w}")
    for w in range(8):
        E(f"  ds_read_b128 v[{24+4*w}:{27+4*w}], v3 offset:{LP+2048*w}")
    E("  s_waitcnt lgkmcnt(8)")
    E("  v_max3_f32 v4, v8, v10, v12")
    E("  v_max3_f32 v4, v4, v14, v16")
    E("  v_max3_f32 v4, v4, v18, v20")
    E("  v_max_f32 v4, v4, v22")
    for w in range(8): E(f"  v_sub_f32 v{8+2*w}, v{8+2*w}, v4")
    for w in range(8): E(f"  v_exp_f32 v{8+2*w}, v{8+2*w}")
    E("  s_waitcnt lgkmcnt(0)")
    E("  v_mul_f32 v5, v8, v9")
    for e in range(4): E(f"  v_mul_f32 v{60+e}, v8, v{24+e}")
    for w in range(1, 8):
        E(f"  v_fmac_f32 v5, v{8+2*w}, v{9+2*w}")
        for e in range(4): E(f"  v_fmac_f32 v{60+e}, v{8+2*w}, v{24+4*w+e}")
    E("  v_min_u32 v4, 0xfffffffe, v4")
    E("  v_min_u32 v5, 0xfffffffe, v5")
    for e in range(4): E(f"  v_min_u32 v{60+e}, 0xfffffffe, v{60+e}")
    E("  s_lshl_b32 s67, s65, 5")
    E("  s_add_u32 s67, s67, s64")
    E("  s_lshl_b32 s68, s67, 9")
    E(f"  s_add_u32 s68, s68, {AO:#x}")
    E("  v_and_b32 v1, 31, v1")
    E("  v_lshlrev_b32 v7, 12, v0")
    E("  v_lshl_add_u32 v7, v1, 4, v7")
    E(f"  buffer_store_dwordx4 v[60:63], v7, {S(SW)}, s68 offen sc1")
    E("  s_lshl_b32 s68, s67, 3")
    E(f"  s_add_u32 s68, s68, {AML:#x}")
    E("  v_lshlrev_b32 v7, 6, v0")
    E("  v_cmp_eq_u32 vcc, 0, v1")
    E("  s_nop 1")
    E("  s_and_saveexec_b64 s[70:71], vcc")
    E(f"  buffer_store_dwordx2 v[4:5], v7, {S(SW)}, s68 offen sc1")
    E("  s_mov_b64 exec, s[70:71]")
    E("L_nocomb:")
    stamp(4)
    E(f"  s_cmp_eq_u32 s60, {W_WO}")
    E("  s_cbranch_scc1 L_tail_wo")
    E(f"  s_cmp_eq_u32 s60, {W_FIN}")
    E("  s_cbranch_scc1 L_tail_fin")
    E(f"  s_cmp_eq_u32 s60, {W_FFN}")
    E("  s_cbranch_scc0 L_exit")
    E("  s_cmp_ge_u32 s2, 112")
    E("  s_cbranch_scc1 L_exit")
    E(f"  v_and_b32 v0, 3, v{n}")
    E(f"  v_lshrrev_b32 v1, 2, v{n}")
    E("  v_lshl_add_u32 v2, v1, 2, v0")
    E("  s_movk_i32 s67, 30720")
    E("  v_mul_lo_u32 v2, v2, s67")
    E(f"  v_lshl_add_u32 v2, v{g}, 5, v2")
    E("  s_lshr_b32 s68, s2, 2")
    E("  s_lshl_b32 s69, s68, 8")
    E("  s_add_u32 s69, s69, 16384")
    E("  s_add_u32 s72, s69, 7168")
    for blk in range(2):
        E(f"  buffer_load_dwordx4 v[{8+8*blk}:{11+8*blk}], v2, {S(SW)}, s69 offen offset:{128*blk}")
        E(f"  buffer_load_dwordx4 v[{12+8*blk}:{15+8*blk}], v2, {S(SW)}, s69 offen offset:{128*blk+16}")
        E(f"  buffer_load_dwordx4 v[{24+8*blk}:{27+8*blk}], v2, {S(SW)}, s72 offen offset:{128*blk}")
        E(f"  buffer_load_dwordx4 v[{28+8*blk}:{31+8*blk}], v2, {S(SW)}, s72 offen offset:{128*blk+16}")
    E("  v_lshlrev_b32 v3, 2, v0")
    E(f"  s_mov_b32 s73, {GOFF:#x}")
    E(f"  buffer_load_dword v4, v3, {S(SW)}, s73 offen")
    E("  s_waitcnt vmcnt(0)")
    for r in (4, 8):
        for i in range(32):
            E(f"  v_add_f32_dpp v{8+i}, v{8+i}, v{8+i} row_ror:{r} row_mask:0xf bank_mask:0xf")
    E("  v_sub_f32 v4, 1.0, v4")
    for i in range(16): E(f"  v_mul_f32 v{8+i}, 0xbfb8aa3b, v{8+i}")
    for i in range(16): E(f"  v_exp_f32 v{8+i}, v{8+i}")
    for i in range(16): E(f"  v_mul_f32 v{24+i}, v{24+i}, v4")
    for i in range(16): E(f"  v_add_f32 v{8+i}, 1.0, v{8+i}")
    for i in range(16): E(f"  v_rcp_f32 v{8+i}, v{8+i}")
    E("  s_nop 0")
    for i in range(16): E(f"  v_mul_f32 v{8+i}, v{8+i}, v{24+i}")
    for i in range(8): E(f"  v_cvt_pk_bf16_f32 v{40+i}, v{8+2*i}, v{9+2*i}")
    ffn_slot(69)
    E("  s_branch L_tail_mm")
    E("L_tail_wo:")
    E(f"  v_and_b32 v0, 3, v{n}")
    E(f"  v_lshrrev_b32 v1, 2, v{n}")
    E("  s_lshr_b32 s68, s62, 3")
    E("  s_lshl_b32 s69, s61, 2")
    E("  s_add_u32 s69, s69, s68")
    E("  v_lshlrev_b32 v2, 17, v0")
    E("  v_lshl_add_u32 v2, v1, 10, v2")
    E(f"  v_lshl_add_u32 v2, v{g}, 5, v2")
    E("  s_lshl_b32 s72, s69, 12")
    E("  s_lshr_b32 s73, s62, 2")
    E("  s_and_b32 s73, s73, 1")
    E("  s_lshl_b32 s73, s73, 8")
    E("  s_add_u32 s72, s72, s73")
    E(f"  s_add_u32 s72, s72, {AO:#x}")
    E("  v_lshlrev_b32 v3, 11, v0")
    E("  v_lshl_add_u32 v5, v1, 4, v3")
    E("  s_lshl_b32 s73, s69, 6")
    E(f"  s_add_u32 s73, s73, {AML:#x}")
    E("  v_lshlrev_b32 v6, 2, v0")
    E(f"  s_mov_b32 s74, {GOFF:#x}")
    E(f"  buffer_load_dword v4, v6, {S(SW)}, s74 offen")
    E("  s_mov_b64 exec, 0xffff")
    E("L_poll1a:")
    E(f"  buffer_load_dwordx4 v[56:59], v5, {S(SW)}, s73 offen sc1")
    E("  s_waitcnt vmcnt(0)")
    E("  v_max3_u32 v7, v56, v57, v58")
    E("  v_max_u32 v7, v7, v59")
    E("  v_cmp_eq_u32 vcc, -1, v7")
    E("  s_nop 1")
    E("  s_cmp_eq_u64 vcc, 0")
    E("  s_cbranch_scc1 L_poll1a_done")
    spin_guard("L_poll1a_done")
    E(f"  s_sleep {SLP}")
    E("  s_branch L_poll1a")
    E("L_poll1a_done:")
    E("  s_mov_b64 exec, -1")
    E("L_poll1:")
    for s_ in range(2):
        for blk in range(2):
            r = 8 + 16*s_ + 8*blk
            E(f"  buffer_load_dwordx4 v[{r}:{r+3}], v2, {S(SW)}, s72 offen offset:{512*s_+128*blk} sc1")
            E(f"  buffer_load_dwordx4 v[{r+4}:{r+7}], v2, {S(SW)}, s72 offen offset:{512*s_+128*blk+16} sc1")
    for i in range(4):
        E(f"  buffer_load_dwordx4 v[{40+4*i}:{43+4*i}], v3, {S(SW)}, s73 offen offset:{16*i} sc1")
    E(f"  buffer_load_dwordx4 v[56:59], v5, {S(SW)}, s73 offen sc1")
    E("  s_waitcnt vmcnt(0)")
    E("  v_max3_u32 v7, v8, v9, v10")
    i = 11
    while i < 60:
        if i + 1 < 60:
            E(f"  v_max3_u32 v7, v7, v{i}, v{i+1}"); i += 2
        else:
            E(f"  v_max_u32 v7, v7, v{i}"); i += 1
    E("  v_cmp_eq_u32 vcc, -1, v7")
    E("  s_nop 1")
    E("  s_cmp_eq_u64 vcc, 0")
    E("  s_cbranch_scc1 L_poll1_done")
    spin_guard("L_poll1_done")
    E(f"  s_sleep {SLP}")
    E("  s_branch L_poll1")
    E("L_poll1_done:")
    stamp(5)
    E("  v_max3_f32 v7, v40, v42, v44")
    E("  v_max3_f32 v7, v7, v46, v48")
    E("  v_max3_f32 v7, v7, v50, v52")
    E("  v_max_f32 v7, v7, v54")
    for s_ in range(8): E(f"  v_sub_f32 v{40+2*s_}, v{40+2*s_}, v7")
    E("  v_sub_f32 v56, v56, v7")
    E("  v_sub_f32 v58, v58, v7")
    for s_ in range(8): E(f"  v_exp_f32 v{40+2*s_}, v{40+2*s_}")
    E("  v_exp_f32 v56, v56")
    E("  v_exp_f32 v58, v58")
    E("  v_mul_f32 v7, v40, v41")
    for s_ in range(1, 8): E(f"  v_fmac_f32 v7, v{40+2*s_}, v{41+2*s_}")
    E("  v_rcp_f32 v7, v7")
    E("  s_nop 0")
    E("  v_mul_f32 v7, v7, v4")
    E("  v_mul_f32 v56, v56, v7")
    E("  v_mul_f32 v58, v58, v7")
    for i in range(16): E(f"  v_mul_f32 v{8+i}, v{8+i}, v56")
    for i in range(16): E(f"  v_fmac_f32 v{8+i}, v{24+i}, v58")
    for r in (4, 8):
        for i in range(16):
            E(f"  v_add_f32_dpp v{8+i}, v{8+i}, v{8+i} row_ror:{r} row_mask:0xf bank_mask:0xf")
    for i in range(8): E(f"  v_cvt_pk_bf16_f32 v{40+i}, v{8+2*i}, v{9+2*i}")
    wo_slot(69)
    E("L_tail_mm:")
    E("  s_waitcnt vmcnt(0)")
    gemv_block(VR, 40, 96, SR, first=True)
    gemv_block(VR+32, 44, 96, SR, first=False)
    E("  s_lshl_b32 s69, s69, 11")
    E(f"  s_add_u32 s69, s69, {L2:#x}")
    E(f"  v_lshlrev_b32 v2, 7, v{n}")
    E(f"  v_cmp_gt_u32 vcc, 16, v{lane}")
    E("  s_nop 4")
    for i in range(32): E(f"  v_min_u32 v{SR+i}, 0xfffffffe, v{SR+i}")
    E("  s_and_saveexec_b64 s[70:71], vcc")
    for j in range(8):
        E(f"  buffer_store_dwordx4 v[{SR+4*j}:{SR+3+4*j}], v2, {S(SW)}, s69 offen offset:{16*j} sc1")
    E("  s_mov_b64 exec, s[70:71]")
    E(f"  s_cmp_eq_u32 s60, {W_WO}")
    E("  s_cbranch_scc0 L_noflag3")
    E(f"  v_mov_b32 v2, {LFLAG}")
    E("  v_mov_b32 v3, 3")
    E("  ds_write_b32 v2, v3")
    E("L_noflag3:")
    stamp(6)
    E("  s_branch L_exit")
    E("L_tail_fin:")
    E(f"  v_lshrrev_b32 v0, 1, v{lane}")
    E(f"  v_and_b32 v1, 1, v{lane}")
    E("  s_lshr_b32 s68, s2, 6")
    E(f"  s_mul_i32 s68, s68, {NT*2048}")
    E("  s_and_b32 s69, s2, 63")
    E("  s_lshl_b32 s69, s69, 5")
    E("  s_add_u32 s68, s68, s69")
    E(f"  s_add_u32 s68, s68, {L2:#x}")
    E("  v_lshlrev_b32 v2, 11, v0")
    E("  v_lshl_add_u32 v2, v1, 4, v2")
    E("  s_add_u32 s69, s68, 65536")
    E("  v_cmp_gt_u32 vcc, 28, v0")
    E("  v_add_u32 v3, 0x20000, v2")
    E("  s_nop 0")
    E("  v_cndmask_b32 v3, v2, v3, vcc")
    lds_wait("finwait", LFLAG, 3, 20)
    E("L_poll2:")
    E(f"  buffer_load_dwordx4 v[8:11], v2, {S(SW)}, s68 offen sc1")
    E(f"  buffer_load_dwordx4 v[12:15], v2, {S(SW)}, s69 offen sc1")
    E(f"  buffer_load_dwordx4 v[16:19], v3, {S(SW)}, s68 offen sc1")
    E("  s_waitcnt vmcnt(0)")
    E("  v_max3_u32 v7, v8, v9, v10")
    E("  v_max3_u32 v7, v7, v11, v12")
    E("  v_max3_u32 v7, v7, v13, v14")
    E("  v_max3_u32 v7, v7, v15, v16")
    E("  v_max3_u32 v7, v7, v17, v18")
    E("  v_max_u32 v7, v7, v19")
    E("  v_cmp_eq_u32 vcc, -1, v7")
    E("  s_nop 1")
    E("  s_cmp_eq_u64 vcc, 0")
    E("  s_cbranch_scc1 L_poll2_done")
    spin_guard("L_poll2_done")
    E(f"  s_sleep {SLP}")
    E("  s_branch L_poll2")
    E("L_poll2_done:")
    stamp(7)
    E("  v_cmp_gt_u32 vcc, 28, v0")
    E("  s_nop 1")
    for i in range(4): E(f"  v_cndmask_b32 v{16+i}, 0, v{16+i}, vcc")
    for i in range(4): E(f"  v_add_f32 v{8+i}, v{8+i}, v{12+i}")
    for i in range(4): E(f"  v_add_f32 v{8+i}, v{8+i}, v{16+i}")
    for r in (2, 4, 8):
        E("  s_nop 1")
        for i in range(4):
            E(f"  v_add_f32_dpp v{8+i}, v{8+i}, v{8+i} row_ror:{r} row_mask:0xf bank_mask:0xf")
    for op in ("v_permlane16_swap_b32", "v_permlane32_swap_b32"):
        for i in range(4): E(f"  v_mov_b32 v{12+i}, v{8+i}")
        E("  s_nop 1")
        for i in range(4): E(f"  {op} v{8+i}, v{12+i}")
        for i in range(4): E(f"  v_add_f32 v{8+i}, v{8+i}, v{12+i}")
    E("  s_nop 1")
    for i in range(4):
        E(f"  v_mov_b32_dpp v{12+i}, v{8+i} quad_perm:[1,0,3,2] row_mask:0xf bank_mask:0xf")
    for i in range(4): E(f"  v_cvt_pk_bf16_f32 v{8+i}, v{8+i}, v{12+i}")
    E("  s_lshl_b32 s68, s2, 2")
    E("  v_mov_b32 v2, 0")
    E("  s_mov_b64 exec, 1")
    for i in range(4):
        E(f"  buffer_store_dword v{8+i}, v2, {S(SO)}, s68 offen offset:{1024*i}")
    E("  s_mov_b64 exec, -1")
    E("L_exit:")
    if DIAG == 9:
        E(f"  s_cmp_eq_u32 s60, {W_FIN}")
        E("  s_cbranch_scc0 L_end")
        E("  s_and_b32 s68, s2, 63")
        E("  s_cmp_lg_u32 s68, 0")
        E("  s_cbranch_scc1 L_end")
        E("  s_waitcnt lgkmcnt(0)")
        E("  s_lshr_b32 s68, s2, 6")
        E("  s_mul_i32 s68, s68, 12")
        E("  v_mov_b32 v2, 0")
        E("  s_mov_b64 exec, 1")
        E("  v_mov_b32 v8, s84")
        E("  v_mov_b32 v9, s92")
        E("  v_mov_b32 v10, s98")
        E(f"  buffer_store_dwordx3 v[8:10], v2, {S(SD)}, s68 offen offset:16")
    elif DIAG:
        E("  s_memrealtime s[100:101]")
        E("  s_waitcnt lgkmcnt(0)")
        E("  s_lshl_b32 s68, s2, 3")
        E("  s_add_u32 s68, s68, s60")
        E("  s_lshl_b32 s68, s68, 6")
        E(f"  s_add_u32 s68, s68, {DIAGOFF:#x}")
        for i in range(9): E(f"  v_mov_b32 v{8+i}, s{84+2*i}")
        E("  v_mov_b32 v2, 0")
        E("  s_mov_b64 exec, 1")
        E(f"  buffer_store_dwordx4 v[8:11], v2, {S(SW)}, s68 offen")
        E(f"  buffer_store_dwordx4 v[12:15], v2, {S(SW)}, s68 offen offset:16")
        E(f"  buffer_store_dword v16, v2, {S(SW)}, s68 offen offset:32")
    E("L_end:")
    E("  s_endpgm")

    E("L_pool:")
    lds_wait("pwait", LPROG, 7, M+8)
    claim()
    E("  s_waitcnt vmcnt(0)")
    E("L_claimed:")
    E(f"  v_readfirstlane_b32 s67, v{M+14}")
    E("  s_cmp_ge_u32 s67, 16")
    E("  s_cbranch_scc1 L_w0done")
    stamp(2)
    E("  s_lshl_b32 s66, s65, 21")
    E("  s_lshr_b32 s68, s67, 1")
    E("  s_lshl_b32 s68, s68, 18")
    E("  s_add_u32 s66, s66, s68")
    E("  s_and_b32 s68, s67, 1")
    E("  s_lshl_b32 s68, s68, 14")
    E("  s_add_u32 s66, s66, s68")
    q = Q()
    for t in range(4): kload(q, t)
    vload(q, 0, VR); vload(q, 1, VR+32)
    body(q, 4, [VR, VR+32], post_s=claim)
    E("  s_waitcnt vmcnt(0)")
    merge_old()
    write_partial()
    E("  s_branch L_claimed")

    E("L_stage1:")
    E("  s_setprio 3")
    E("  s_cmp_ge_u32 s62, 30")
    E("  s_cbranch_scc1 L_s1_clr")
    E("  s_cmp_ge_u32 s62, 16")
    E("  s_cbranch_scc1 L_s1_ffn")
    srd(ST, 10, 0x400000)
    E("  s_movk_i32 s72, 8192")
    E("  s_lshl_b32 s68, s61, 2")
    E("  s_lshr_b32 s69, s62, 2")
    E("  s_add_u32 s68, s68, s69")
    E("  s_and_b32 s73, s62, 3")
    E("  s_lshl_b32 s74, s68, 8")
    E("  s_lshl_b32 s75, s68, 9")
    E("  s_branch L_s1_go")
    E("L_s1_ffn:")
    E("  s_mul_i32 s68, s61, 14")
    E("  s_add_u32 s68, s68, s62")
    E("  s_sub_u32 s68, s68, 16")
    E("  s_and_b32 s73, s68, 3")
    E("  s_lshr_b32 s68, s68, 2")
    E("  s_movk_i32 s72, 3584")
    E("  s_lshl_b32 s75, s68, 9")
    E("  s_add_u32 s75, s75, 16384")
    E("  s_cmp_ge_u32 s68, 14")
    E(f"  s_cselect_b32 s{ST}, s18, s16")
    E(f"  s_cselect_b32 s{ST+1}, s19, s17")
    E("  s_cselect_b32 s69, 14, 0")
    E(f"  s_and_b32 s{ST+1}, s{ST+1}, 0xffff")
    E(f"  s_mov_b32 s{ST+2}, 0x1c0000")
    E(f"  s_mov_b32 s{ST+3}, 0x00020000")
    E("  s_sub_u32 s68, s68, s69")
    E("  s_lshl_b32 s74, s68, 8")
    E("L_s1_go:")
    E("  s_lshl_b32 s68, s73, 7")
    E(f"  v_lshlrev_b32 v164, 3, v{g}")
    E("  v_add_u32 v164, s68, v164")
    E(f"  v_and_b32 v165, 3, v{n}")
    E("  v_lshlrev_b32 v165, 10, v165")
    E("  v_lshl_add_u32 v165, v164, 1, v165")
    E("  v_mul_lo_u32 v166, v164, s72")
    E(f"  v_lshl_add_u32 v166, v{n}, 4, v166")
    E("  v_add_u32 v166, s74, v166")
    E("  s_mov_b32 s69, 0")
    E("  s_mul_i32 s67, s72, 24")
    for blk in range(4):
        E(f"  buffer_load_dwordx4 v[{128+4*blk}:{131+4*blk}], v165, {S(SX)}, 0 offen offset:{64*blk}")
        for kk in range(8):
            r = 32*blk + 4*kk
            E(f"  buffer_load_dwordx4 v[{r}:{r+3}], v166, {S(ST)}, s69 offen {S1F}")
            E("  s_add_u32 s69, s69, s72")
        if blk < 3: E("  s_add_u32 s69, s69, s67")
    E("L_s1_clr:")
    E(f"  v_mov_b32 v170, {LFLAG}")
    E("  v_mov_b32 v171, 1")
    E("  ds_write_b32 v170, v171")
    for i in range(4): E(f"  v_mov_b32 v{160+i}, -1")
    E("  s_lshl_b32 s67, s65, 5")
    E("  s_add_u32 s67, s67, s64")
    E("  s_lshl_b32 s68, s67, 9")
    E(f"  s_add_u32 s68, s68, {AO:#x}")
    E(f"  v_lshlrev_b32 v172, 12, v{g}")
    E(f"  v_lshl_add_u32 v172, v{n}, 5, v172")
    E(f"  buffer_store_dwordx4 v[160:163], v172, {S(SW)}, s68 offen sc1")
    E(f"  buffer_store_dwordx4 v[160:163], v172, {S(SW)}, s68 offen offset:16 sc1")
    E("  s_lshl_b32 s68, s67, 3")
    E(f"  s_add_u32 s68, s68, {AML:#x}")
    E(f"  v_lshlrev_b32 v172, 6, v{g}")
    E("  s_mov_b32 exec_lo, 0x00010001")
    E("  s_mov_b32 exec_hi, 0x00010001")
    E(f"  buffer_store_dwordx2 v[160:161], v172, {S(SW)}, s68 offen sc1")
    E("  s_mov_b64 exec, -1")
    wo_slot(69)
    E("  s_lshl_b32 s69, s69, 11")
    E(f"  s_add_u32 s69, s69, {L2:#x}")
    E(f"  v_lshlrev_b32 v172, 5, v{lane}")
    E(f"  buffer_store_dwordx4 v[160:163], v172, {S(SW)}, s69 offen sc1")
    E(f"  buffer_store_dwordx4 v[160:163], v172, {S(SW)}, s69 offen offset:16 sc1")
    NCLR = 5
    E("  s_cmp_ge_u32 s2, 112")
    E("  s_cbranch_scc1 L_s1_noffnclr")
    ffn_slot(69)
    E("  s_lshl_b32 s69, s69, 11")
    E(f"  s_add_u32 s69, s69, {L2:#x}")
    E(f"  buffer_store_dwordx4 v[160:163], v172, {S(SW)}, s69 offen sc1")
    E(f"  buffer_store_dwordx4 v[160:163], v172, {S(SW)}, s69 offen offset:16 sc1")
    E("L_s1_noffnclr:")
    E("  s_cmp_ge_u32 s62, 4")
    E("  s_cbranch_scc1 L_s1_nocnt")
    E("  s_lshl_b32 s68, s62, 3")
    E("  s_add_u32 s68, s68, s61")
    E("  s_lshl_b32 s68, s68, 7")
    E(f"  s_add_u32 s68, s68, {CNT:#x}")
    E("  v_mov_b32 v172, 0")
    E("  s_mov_b64 exec, 1")
    E(f"  buffer_store_dword v172, v172, {S(SW)}, s68 offen sc1")
    E("  s_mov_b64 exec, -1")
    E("L_s1_nocnt:")
    E("  v_mov_b32 v172, 0")
    E("  s_mov_b64 exec, 1")
    E(f"  buffer_load_dwordx2 v[168:169], v172, {S(SD)}, 0 offen sc1")
    E("  s_mov_b64 exec, -1")
    E("  s_cmp_ge_u32 s62, 30")
    E("  s_cbranch_scc1 L_s1_gate")
    for blk in range(4):
        E(f"  s_waitcnt vmcnt({9*(3-blk)+6})")
        gemv_block(32*blk, 128+4*blk, 144, 192, first=(blk == 0))
    stamp(1, 2)
    E("  s_nop 7")
    for b in range(4):
        for j in range(8):
            E(f"  v_mov_b32 v{8*b+j}, v{192+4*j+b}")
    E("  s_mul_i32 s68, s73, 122880")
    E("  s_add_u32 s68, s68, s75")
    E(f"  v_lshlrev_b32 v164, 5, v{n}")
    E("  s_mov_b64 exec, 0xffff")
    for b in range(4):
        E(f"  buffer_store_dwordx4 v[{8*b}:{8*b+3}], v164, {S(SW)}, s68 offen sc1")
        E(f"  buffer_store_dwordx4 v[{8*b+4}:{8*b+7}], v164, {S(SW)}, s68 offen offset:16 sc1")
        if b < 3: E("  s_add_u32 s68, s68, 30720")
    E("  s_mov_b64 exec, -1")
    E("  s_branch L_s1_signal")
    E("L_s1_gate:")
    E("  s_cmp_lg_u32 s2, 198")
    E("  s_cbranch_scc1 L_s1_signal")
    srd(ST, 22, 1024)
    E(f"  v_lshlrev_b32 v164, 4, v{lane}")
    E(f"  buffer_load_dwordx4 v[16:19], v164, {S(ST)}, 0 offen")
    for b in range(4):
        E(f"  buffer_load_dwordx4 v[{4*b}:{4*b+3}], v164, {S(SX)}, 0 offen offset:{1024*b}")
    E("  s_waitcnt vmcnt(0)")
    for b in range(4): E(f"  v_mov_b32 v{24+b}, 0")
    for c in range(4):
        E(f"  v_lshlrev_b32 v20, 16, v{16+c}")
        E(f"  v_and_b32 v21, 0xffff0000, v{16+c}")
        for b in range(4):
            E(f"  v_lshlrev_b32 v22, 16, v{4*b+c}")
            E(f"  v_and_b32 v23, 0xffff0000, v{4*b+c}")
            E(f"  v_fmac_f32 v{24+b}, v20, v22")
            E(f"  v_fmac_f32 v{24+b}, v21, v23")
    for r in (8, 4, 2, 1):
        E("  s_nop 1")
        for b in range(4):
            E(f"  v_add_f32_dpp v{24+b}, v{24+b}, v{24+b} row_ror:{r} row_mask:0xf bank_mask:0xf")
    for op in ("v_permlane16_swap_b32", "v_permlane32_swap_b32"):
        for i in range(4): E(f"  v_mov_b32 v{28+i}, v{24+i}")
        E("  s_nop 1")
        for i in range(4): E(f"  {op} v{24+i}, v{28+i}")
        for i in range(4): E(f"  v_add_f32 v{24+i}, v{24+i}, v{28+i}")
    for i in range(4): E(f"  v_mul_f32 v{24+i}, 0xbfb8aa3b, v{24+i}")
    for i in range(4): E(f"  v_exp_f32 v{24+i}, v{24+i}")
    E("  s_nop 0")
    for i in range(4): E(f"  v_add_f32 v{24+i}, 1.0, v{24+i}")
    for i in range(4): E(f"  v_rcp_f32 v{24+i}, v{24+i}")
    E(f"  s_mov_b32 s68, {GOFF:#x}")
    E("  v_mov_b32 v164, 0")
    E("  s_mov_b64 exec, 1")
    E(f"  buffer_store_dwordx4 v[24:27], v164, {S(SW)}, s68 offen sc1")
    E("  s_mov_b64 exec, -1")
    E("L_s1_signal:")
    E("  s_waitcnt vmcnt(0)")
    stamp(2, 2)
    E("  v_mov_b32 v164, 0")
    E("  s_mov_b64 exec, 1")
    E("L_pollN:")
    E("  v_readfirstlane_b32 s78, v168")
    E("  v_readfirstlane_b32 s79, v169")
    E("  s_and_b32 s68, s78, 1")
    E("  s_lshr_b32 s69, s79, 31")
    E("  s_and_b32 s68, s68, s69")
    E("  s_cmp_eq_u32 s68, 1")
    E("  s_cbranch_scc1 L_pollN_done")
    spin_guard("L_pollN_done")
    E(f"  buffer_load_dwordx2 v[168:169], v164, {S(SD)}, 0 offen sc1")
    E("  s_waitcnt vmcnt(0)")
    E("  s_branch L_pollN")
    E("L_pollN_done:")
    E("  s_lshl_b32 s68, s2, 7")
    E(f"  s_add_u32 s68, s68, {FL:#x}")
    E(f"  buffer_store_dwordx2 v[168:169], v164, {S(SW)}, s68 offen sc1")
    E("  s_mov_b64 exec, -1")
    E(f"  v_lshrrev_b32 v164, 3, v{lane}")
    E("  v_lshlrev_b32 v164, 6, v164")
    E(f"  v_and_b32 v165, 7, v{lane}")
    E("  v_add_u32 v164, v164, v165")
    E("  v_lshlrev_b32 v164, 7, v164")
    E("  s_lshl_b32 s68, s61, 10")
    E(f"  s_add_u32 s68, s68, {FL:#x}")
    E("  s_mov_b64 exec, 0xffff")
    E("L_poll0:")
    E(f"  buffer_load_dwordx2 v[166:167], v164, {S(SW)}, s68 offen sc1")
    E("  s_waitcnt vmcnt(0)")
    E("  v_cmp_ne_u32 vcc, s78, v166")
    E("  v_cmp_ne_u32 s[72:73], s79, v167")
    E("  s_nop 1")
    E("  s_or_b64 vcc, vcc, s[72:73]")
    E("  s_cmp_eq_u64 vcc, 0")
    E("  s_cbranch_scc1 L_poll0_done")
    spin_guard("L_poll0_done")
    E("  s_sleep 1")
    E("  s_branch L_poll0")
    E("L_poll0_done:")
    E("  s_mov_b64 exec, -1")
    stamp(3, 2)
    E("  s_mul_i32 s68, s63, 30720")
    E("  s_lshl_b32 s69, s61, 11")
    E("  s_add_u32 s68, s68, s69")
    E(f"  v_lshlrev_b32 v164, 5, v{lane}")
    for kq in range(4):
        E(f"  buffer_load_dwordx4 v[{8*kq}:{8*kq+3}], v164, {S(SW)}, s68 offen")
        E(f"  buffer_load_dwordx4 v[{8*kq+4}:{8*kq+7}], v164, {S(SW)}, s68 offen offset:16")
        if kq < 3: E("  s_add_u32 s68, s68, 122880")
    E("  s_waitcnt vmcnt(0)")
    stamp(4, 2)
    for i in range(8):
        E(f"  v_add_f32 v{i}, v{i}, v{8+i}")
        E(f"  v_add_f32 v{16+i}, v{16+i}, v{24+i}")
    for i in range(8): E(f"  v_add_f32 v{i}, v{i}, v{16+i}")
    for i in range(4): E(f"  v_cvt_pk_bf16_f32 v{32+i}, v{2*i}, v{2*i+1}")
    E(f"  v_lshlrev_b32 v164, 4, v{lane}")
    E(f"  ds_write_b128 v164, v[32:35] offset:{LQ}")
    E(f"  v_mov_b32 v164, {LNONCE}")
    E("  v_mov_b32 v166, s78")
    E("  v_mov_b32 v167, s79")
    E("  ds_write_b64 v164, v[166:167]")
    E("  s_waitcnt lgkmcnt(0)")
    E(f"  v_mov_b32 v164, {LFLAG}")
    E("  v_mov_b32 v165, 2")
    E("  ds_write_b32 v164, v165")
    E("  s_setprio 0")
    for i in range(4): E(f"  v_mov_b32 v{i}, 0")
    E(f"  v_lshlrev_b32 v164, 5, v{lane}")
    E(f"  ds_write_b128 v164, v[0:3] offset:{LP}")
    E(f"  ds_write_b128 v164, v[0:3] offset:{LP+16}")
    E("  v_mov_b32 v0, 0xf149f2ca")
    E(f"  v_and_b32 v164, 3, v{lane}")
    E("  v_lshlrev_b32 v164, 3, v164")
    E(f"  ds_write_b64 v164, v[0:1] offset:{LML}")
    E("  s_branch L_pool")

    E(f""".section .rodata,"a"
.p2align 6
.amdhsa_kernel {name}
  .amdhsa_next_free_vgpr 256
  .amdhsa_next_free_sgpr 102
  .amdhsa_accum_offset 256
  .amdhsa_group_segment_fixed_size 0
  .amdhsa_kernarg_size 104
  .amdhsa_user_sgpr_count 2
  .amdhsa_user_sgpr_kernarg_segment_ptr 1
  .amdhsa_system_sgpr_workgroup_id_x 1
.end_amdhsa_kernel""")

E(HEADER.rstrip())
E(f"; @launch grid=(256,1,1) block=(512,1,1) lds={LDS_BYTES}")
E('.amdgcn_target "amdgcn-amd-amdhsa--gfx950"')
E(".text")
kernel()
open(sys.argv[1], "w").write("\n".join(out) + "\n")
```

```python
import sys, os, math, struct
NAME = "gated_mix__gqa_block_cached__glu_gated_glu__decode"
KVF = os.environ.get("KVF", "nt")
S1F = os.environ.get("S1F", "nt")
DIAG = int(os.environ.get("DIAG", "0"))
PT = int(os.environ.get("PT", "16"))
SLP = int(os.environ.get("SLP", "2"))
NCL = int(os.environ.get("NCL", "2"))
out = []
def E(s=""): out.append(s)

P1 = 0x0
GOFF = 0x80000
AO = 0x100000
AML = 0x180000
L2 = 0x200000
FL = 0x300000
CNT = 0x310000
DIAGOFF = 0x400000
WS_BYTES = 0x10000000
NT = 92
LQ, LP, LML, LFLAG, LNONCE, LPROG, VST = 0, 1024, 17408, 17664, 17672, 17680, 18432
LDS_BYTES = VST + 8 * 16384
W_WO, W_FFN, W_FIN, W_CMB, W_ALL = 5, 6, 7, 2, 3

HEADER = open("cdna_kernels/" + NAME + ".s.ref").read().split("; Override launch")[0]

def srd(d, b, nbytes):
    E(f"  s_mov_b32 s{d}, s{b}")
    E(f"  s_and_b32 s{d+1}, s{b+1}, 0xffff")
    E(f"  s_mov_b32 s{d+2}, {nbytes:#x}")
    E(f"  s_mov_b32 s{d+3}, 0x00020000")

SELLO, SELHI = 80, 81
def gemv_block(W, A, T, ACC, first=True):
    def perms(j):
        c = j >> 1
        sel = SELHI if (j & 1) else SELLO
        t = T + 4 * (j & 1)
        for i in range(4):
            E(f"  v_perm_b32 v{t+i}, v{W+4*(2*i+1)+c}, v{W+4*(2*i)+c}, s{sel}")
    def mfma(j):
        t = T + 4 * (j & 1)
        a = ACC + 4 * j
        c = "0" if first else f"v[{a}:{a+3}]"
        E(f"  v_mfma_f32_16x16x32_bf16 v[{a}:{a+3}], v[{A}:{A+3}], v[{t}:{t+3}], {c}")
    perms(0)
    for j in range(8):
        if j + 1 < 8: perms(j + 1)
        else: E("  s_nop 1")
        mfma(j)

def stamp(i, lvl=1):
    if (1 if DIAG == 9 else DIAG) != lvl: return
    E(f"  s_memrealtime s[{84+2*i}:{85+2*i}]")

def spin_guard(label, lim="0x40000"):
    E("  s_add_u32 s83, s83, 1")
    E(f"  s_cmp_gt_u32 s83, {lim}")
    E(f"  s_cbranch_scc1 {label}")

def lds_wait(name, off, val, vtmp):
    E(f"  v_mov_b32 v{vtmp}, {off}")
    E(f"L_{name}:")
    E(f"  ds_read_b32 v{vtmp+1}, v{vtmp}")
    E("  s_waitcnt lgkmcnt(0)")
    E(f"  v_readfirstlane_b32 s67, v{vtmp+1}")
    E(f"  s_cmp_ge_u32 s67, {val}")
    E(f"  s_cbranch_scc1 L_{name}_done")
    spin_guard(f"L_{name}_done", "0x400000")
    E("  s_sleep 1")
    E(f"  s_branch L_{name}")
    E(f"L_{name}_done:")

KR, VR, SR, QR, M = 0, 128, 192, 224, 240
tid, lane, g, n = M, M+1, M+2, M+3
vk, vv = M+6, M+7
mx, t1, ls = M+8, M+9, M+10
SK, SV, SW, SD, ST, SX, SO = 32, 36, 40, 44, 48, 52, 56
def S(x): return f"s[{x}:{x+3}]"
cbits = struct.unpack("<I", struct.pack("<f", (128 ** -0.5) * math.log2(math.e)))[0]

class Q:
    def __init__(s): s.q = []
    def ld(s, nm): s.q.append(nm)
    def wait(s, nm):
        idx = max(i for i, x in enumerate(s.q) if x == nm)
        E(f"  s_waitcnt vmcnt({len(s.q)-1-idx})")
        del s.q[:idx+1]

def kload(q, t):
    E(f"  s_add_u32 s67, s66, {t*4096}")
    for j in range(4):
        r = KR + 16*t + 4*j
        E(f"  buffer_load_dwordx4 v[{r}:{r+3}], v{vk}, {S(SK)}, s67 offen offset:{64*j} {KVF}")
        q.ld(f"k{t}")
def vload(q, t, base):
    for half in range(2):
        E(f"  s_add_u32 s67, s66, {t*8192+half*4096}")
        for k4 in range(4):
            r = base + 4*(half*4+k4)
            E(f"  buffer_load_dwordx4 v[{r}:{r+3}], v{vv}, {S(SV)}, s67 offen offset:{256*k4} {KVF}")
            q.ld(f"v{t}")
def vload_lds(q, t):
    for half in range(2):
        E(f"  s_add_u32 s67, s66, {t*8192+half*4096}")
        for k4 in range(4):
            i = (t-2)*8 + half*4 + k4
            E(f"  s_add_u32 m0, s77, {i*1024 - 256*k4}")
            E("  s_nop 0")
            E(f"  buffer_load_dwordx4 v{vv}, {S(SV)}, s67 offen offset:{256*k4} {KVF} lds")
            q.ld(f"v{t}")

def body(q, nt, vbase, pre_pv3=None, post_s=None):
    E(f"  v_and_b32 v{M+9}, 3, v{n}")
    E(f"  v_lshlrev_b32 v{M+9}, 8, v{M+9}")
    E(f"  v_lshl_add_u32 v{M+9}, v{g}, 4, v{M+9}")
    for j in range(4):
        E(f"  ds_read_b128 v[{QR+4*j}:{QR+4*j+3}], v{M+9} offset:{LQ+64*j}")
    E("  s_waitcnt lgkmcnt(0)")
    for t in range(nt):
        q.wait(f"k{t}")
        s = SR + 4*t
        for j in range(4):
            r = KR + 16*t + 4*j
            c = "0" if j == 0 else f"v[{s}:{s+3}]"
            E(f"  v_mfma_f32_16x16x32_bf16 v[{s}:{s+3}], v[{r}:{r+3}], v[{QR+4*j}:{QR+4*j+3}], {c}")
    if post_s: post_s()
    E("  s_nop 7")
    ns = 4*nt
    E(f"  v_max3_f32 v{mx}, v{SR}, v{SR+1}, v{SR+2}")
    i = 3
    while i < ns:
        if i + 1 < ns:
            E(f"  v_max3_f32 v{mx}, v{mx}, v{SR+i}, v{SR+i+1}"); i += 2
        else:
            E(f"  v_max_f32 v{mx}, v{mx}, v{SR+i}"); i += 1
    for op in ("v_permlane16_swap_b32", "v_permlane32_swap_b32"):
        E(f"  v_mov_b32 v{t1}, v{mx}")
        E("  s_nop 1")
        E(f"  {op} v{mx}, v{t1}")
        E(f"  v_max_f32 v{mx}, v{mx}, v{t1}")
    E(f"  v_mul_f32 v{mx}, s82, v{mx}")
    for i in range(ns): E(f"  v_fma_f32 v{SR+i}, v{SR+i}, s82, -v{mx}")
    for i in range(ns): E(f"  v_exp_f32 v{SR+i}, v{SR+i}")
    E("  s_nop 0")
    E(f"  v_add_f32 v{ls}, v{SR}, v{SR+1}")
    for i in range(2, ns): E(f"  v_add_f32 v{ls}, v{ls}, v{SR+i}")
    for t in range(nt//2):
        for h in range(4):
            a = SR + 8*t + 2*h
            E(f"  v_cvt_pk_bf16_f32 v{QR+4*t+h}, v{a}, v{a+1}")
    for op in ("v_permlane16_swap_b32", "v_permlane32_swap_b32"):
        E(f"  v_mov_b32 v{t1}, v{ls}")
        E("  s_nop 1")
        E(f"  {op} v{ls}, v{t1}")
        E(f"  v_add_f32 v{ls}, v{ls}, v{t1}")
    ACC = SR; T = KR + 96
    for t in range(nt//2):
        q.wait(f"v{t}")
        if t >= 2:
            if t == 2:
                E(f"  v_lshlrev_b32 v{M+11}, 4, v{lane}")
                E(f"  v_add_u32 v{M+11}, s77, v{M+11}")
            for i in range(8):
                r = vbase[t] + 4*i
                E(f"  ds_read_b128 v[{r}:{r+3}], v{M+11} offset:{((t-2)*8+i)*1024}")
            E("  s_waitcnt lgkmcnt(0)")
        if t == 3 and pre_pv3: pre_pv3()
        gemv_block(vbase[t], QR+4*t, T, ACC, first=(t == 0))
    E("  s_lshl_b32 s67, s60, 11")
    E(f"  v_lshlrev_b32 v{M+11}, 5, v{n}")
    E(f"  v_add_u32 v{M+11}, s67, v{M+11}")
    E("  s_nop 5")
    for h in range(4):
        for j in range(8):
            E(f"  v_mov_b32 v{8*h+j}, v{ACC+4*j+h}")

def write_partial():
    E(f"  v_cmp_gt_u32 vcc, 16, v{lane}")
    E("  s_nop 1")
    E("  s_and_saveexec_b64 s[70:71], vcc")
    for h in range(4):
        E(f"  ds_write_b128 v{M+11}, v[{8*h}:{8*h+3}] offset:{LP+512*h}")
        E(f"  ds_write_b128 v{M+11}, v[{8*h+4}:{8*h+7}] offset:{LP+512*h+16}")
    E("  s_mov_b64 exec, s[70:71]")
    E("  s_lshl_b32 s67, s60, 5")
    E(f"  v_lshlrev_b32 v{M+11}, 3, v{lane}")
    E(f"  v_add_u32 v{M+11}, s67, v{M+11}")
    E(f"  v_mov_b32 v{M+12}, v{mx}")
    E(f"  v_mov_b32 v{M+13}, v{ls}")
    E(f"  v_cmp_gt_u32 vcc, 4, v{lane}")
    E("  s_nop 1")
    E("  s_and_saveexec_b64 s[70:71], vcc")
    E(f"  ds_write_b64 v{M+11}, v[{M+12}:{M+13}] offset:{LML}")
    E("  s_mov_b64 exec, s[70:71]")
    E("  s_waitcnt lgkmcnt(0)")

def merge_old():
    E("  s_lshl_b32 s67, s60, 5")
    E("  v_mov_b32 v32, s67")
    for h in range(4):
        E(f"  ds_read_b64 v[{34+2*h}:{35+2*h}], v32 offset:{LML+8*h}")
    for h in range(4):
        E(f"  ds_read_b128 v[{64+8*h}:{67+8*h}], v{M+11} offset:{LP+512*h}")
        E(f"  ds_read_b128 v[{68+8*h}:{71+8*h}], v{M+11} offset:{LP+512*h+16}")
    for h in range(4):
        E(f"  v_readlane_b32 s{68+h}, v{mx}, {h}")
        E(f"  v_readlane_b32 s{72+h}, v{ls}, {h}")
    E("  s_waitcnt lgkmcnt(0)")
    for h in range(4):
        mo, lo = 34+2*h, 35+2*h
        E(f"  v_max_f32 v44, s{68+h}, v{mo}")
        E(f"  v_sub_f32 v45, v{mo}, v44")
        E(f"  v_sub_f32 v46, s{68+h}, v44")
        E("  v_exp_f32 v45, v45")
        E("  v_exp_f32 v46, v46")
        E("  s_nop 0")
        E(f"  v_mul_f32 v{lo}, v{lo}, v45")
        E(f"  v_fma_f32 v{lo}, v46, s{72+h}, v{lo}")
        E(f"  v_mov_b32 v{mo}, v44")
        for j in range(8):
            E(f"  v_mul_f32 v{8*h+j}, v{8*h+j}, v46")
            E(f"  v_fmac_f32 v{8*h+j}, v{64+8*h+j}, v45")
    for h in range(4):
        E(f"  v_readfirstlane_b32 s{68+h}, v{34+2*h}")
        E(f"  v_readfirstlane_b32 s{72+h}, v{35+2*h}")
    E("  s_nop 3")
    for h in range(4):
        E(f"  v_writelane_b32 v{mx}, s{68+h}, {h}")
        E(f"  v_writelane_b32 v{ls}, s{72+h}, {h}")

def claim():
    E(f"  v_mov_b32 v{M+14}, 1")
    E(f"  v_mov_b32 v{M+15}, 0")
    E("  s_mov_b64 exec, 1")
    E(f"  buffer_atomic_add v{M+14}, v{M+15}, {S(SW)}, s76 offen sc0 sc1")
    E("  s_mov_b64 exec, -1")

def wo_slot(dst):
    E(f"  s_and_b32 s{dst}, s62, 3")
    E(f"  s_mul_i32 s{dst}, s{dst}, {NT}")
    E("  s_lshl_b32 s68, s61, 3")
    E(f"  s_add_u32 s{dst}, s{dst}, s68")
    E("  s_lshr_b32 s68, s62, 2")
    E(f"  s_add_u32 s{dst}, s{dst}, s68")
def ffn_slot(dst):
    E(f"  s_and_b32 s{dst}, s2, 3")
    E(f"  s_mul_i32 s{dst}, s{dst}, {NT}")
    E("  s_lshr_b32 s68, s2, 2")
    E(f"  s_add_u32 s{dst}, s{dst}, s68")
    E(f"  s_add_u32 s{dst}, s{dst}, 64")

def kernel():
    name = NAME + "_kernel"
    E(f".globl {name}\n.p2align 8\n.type {name},@function\n{name}:")
    E("  s_cmp_ge_u32 s2, 256")
    E("  s_cbranch_scc1 L_end")
    E("  s_load_dwordx16 s[4:19], s[0:1], 0")
    E("  s_load_dwordx8 s[20:27], s[0:1], 64")
    E("  s_load_dwordx2 s[28:29], s[0:1], 96")
    if DIAG:
        for i in range(18): E(f"  s_mov_b32 s{84+i}, 0")
        E("  s_memrealtime s[84:85]")
    E(f"  v_mov_b32 v{tid}, v0")
    E(f"  v_and_b32 v{lane}, 63, v0")
    E(f"  v_lshrrev_b32 v{M+4}, 6, v0")
    E(f"  v_lshrrev_b32 v{g}, 4, v{lane}")
    E(f"  v_readfirstlane_b32 s60, v{M+4}")
    E(f"  v_and_b32 v{n}, 15, v{lane}")
    E("  s_mov_b32 s83, 0")
    E(f"  s_mov_b32 s{SELLO}, 0x05040100")
    E(f"  s_mov_b32 s{SELHI}, 0x07060302")
    E(f"  s_mov_b32 s82, {cbits:#x}")
    E("  s_lshr_b32 s61, s2, 3")
    E("  s_and_b32 s61, s61, 7")
    E("  s_lshr_b32 s63, s2, 6")
    E("  s_and_b32 s64, s2, 7")
    E("  s_lshl_b32 s62, s63, 3")
    E("  s_add_u32 s62, s62, s64")
    E("  s_lshl_b32 s65, s63, 3")
    E("  s_add_u32 s65, s65, s61")
    E("  s_lshl_b32 s66, s65, 21")
    E("  s_lshl_b32 s67, s64, 18")
    E("  s_add_u32 s66, s66, s67")
    E("  s_lshl_b32 s67, s60, 15")
    E("  s_add_u32 s66, s66, s67")
    E("  s_lshl_b32 s77, s60, 14")
    E(f"  s_add_u32 s77, s77, {VST}")
    E("  s_lshl_b32 s76, s65, 7")
    E(f"  s_add_u32 s76, s76, {CNT:#x}")
    E(f"  v_lshlrev_b32 v{vk}, 8, v{n}")
    E(f"  v_lshl_add_u32 v{vk}, v{g}, 4, v{vk}")
    E(f"  v_lshlrev_b32 v{vv}, 10, v{g}")
    E(f"  v_lshl_add_u32 v{vv}, v{n}, 4, v{vv}")
    E(f"  v_mov_b32 v{M+8}, 0")
    E(f"  v_mov_b32 v{M+9}, {LFLAG}")
    E(f"  ds_write_b32 v{M+9}, v{M+8}")
    E(f"  ds_write_b32 v{M+9}, v{M+8} offset:16")
    E("  s_waitcnt lgkmcnt(0)")
    E("  s_barrier")
    srd(SK, 6, 0x4000000); srd(SV, 8, 0x4000000); srd(SW, 28, WS_BYTES)
    srd(SD, 26, 256); srd(SX, 4, 4096); srd(SO, 24, 4096)
    E("  s_cmp_eq_u32 s60, 0")
    E("  s_cbranch_scc1 L_stage1")
    E("  s_lshl_b32 s67, s2, 3")
    E("  s_add_u32 s67, s67, s60")
    E("  s_cmp_lg_u32 s67, 1")
    E("  s_cbranch_scc1 L_nopub")
    E("  s_memrealtime s[78:79]")
    E("  s_waitcnt lgkmcnt(0)")
    E("  s_or_b32 s78, s78, 1")
    E("  s_or_b32 s79, s79, 0x80000000")
    E("  v_mov_b32 v8, s78")
    E("  v_mov_b32 v9, s79")
    E("  v_mov_b32 v10, 0")
    E("  s_mov_b64 exec, 1")
    E(f"  buffer_store_dwordx2 v[8:9], v10, {S(SD)}, 0 offen sc1")
    E("  s_mov_b64 exec, -1")
    E("L_nopub:")
    lds_wait("fwait", LFLAG, 1, M+8)
    q = Q()
    for t in range(8): kload(q, t)
    vload(q, 0, VR); vload(q, 1, VR+32)
    vload_lds(q, 2); vload_lds(q, 3)
    E(f"  s_waitcnt vmcnt({PT})")
    E(f"  v_mov_b32 v{M+9}, {LPROG}")
    E(f"  v_mov_b32 v{M+8}, 1")
    E("  s_mov_b64 exec, 1")
    E(f"  ds_add_u32 v{M+9}, v{M+8}")
    E("  s_mov_b64 exec, -1")
    lds_wait("qwait", LFLAG, 2, M+8)
    stamp(1)
    def prefetch():
        stamp(3)
        E(f"  s_cmp_eq_u32 s60, {W_WO}")
        E("  s_cbranch_scc1 L_pf_wo")
        E(f"  s_cmp_eq_u32 s60, {W_FFN}")
        E("  s_cbranch_scc0 L_pf_done")
        E("  s_cmp_ge_u32 s2, 112")
        E("  s_cbranch_scc1 L_pf_done")
        srd(ST, 20, 0x1c0000)
        E("  s_lshr_b32 s68, s2, 2")
        E("  s_lshl_b32 s68, s68, 16")
        E("  s_and_b32 s69, s2, 3")
        E("  s_branch L_pf_go")
        E("L_pf_wo:")
        srd(ST, 12, 0x400000)
        E("  s_lshl_b32 s68, s61, 3")
        E("  s_lshr_b32 s69, s62, 2")
        E("  s_add_u32 s68, s68, s69")
        E("  s_lshl_b32 s68, s68, 16")
        E("  s_and_b32 s69, s62, 3")
        E("L_pf_go:")
        E("  s_lshl_b32 s69, s69, 8")
        E("  s_add_u32 s68, s68, s69")
        E(f"  v_lshlrev_b32 v{M+11}, 13, v{g}")
        E(f"  v_lshl_add_u32 v{M+11}, v{n}, 4, v{M+11}")
        for blk in range(2):
            for half in range(2):
                E(f"  s_add_u32 s69, s68, {blk*32768+half*4096}")
                for k4 in range(4):
                    r = VR + 32*blk + 4*(half*4+k4)
                    E(f"  buffer_load_dwordx4 v[{r}:{r+3}], v{M+11}, {S(ST)}, s69 offen offset:{1024*k4} {S1F}")
        E("L_pf_done:")
    body(q, 8, [VR, VR+32, KR, KR+32], pre_pv3=prefetch)
    write_partial()
    E(f"  s_cmp_lt_u32 s60, {NCL}")
    E("  s_cbranch_scc1 L_pool")
    E("L_w0done:")
    E(f"  s_cmp_eq_u32 s60, {W_ALL}")
    E("  s_cbranch_scc0 L_noall")
    E(f"  v_mov_b32 v0, {LNONCE}")
    E("  ds_read_b64 v[2:3], v0")
    E(f"  v_lshlrev_b32 v1, 7, v{lane}")
    E(f"  s_mov_b32 s68, {FL:#x}")
    E("  s_waitcnt lgkmcnt(0)")
    E("L_pollA:")
    for i in range(4):
        if i: E(f"  s_add_u32 s69, s68, {8192*i}")
        E(f"  buffer_load_dwordx2 v[{8+2*i}:{9+2*i}], v1, {S(SW)}, {'s69' if i else 's68'} offen sc1")
    E("  s_waitcnt vmcnt(0)")
    E("  v_xor_b32 v4, v8, v2")
    E("  v_xor_b32 v5, v9, v3")
    E("  v_or_b32 v4, v4, v5")
    for i in range(1, 4):
        E(f"  v_xor_b32 v5, v{8+2*i}, v2")
        E("  v_or_b32 v4, v4, v5")
        E(f"  v_xor_b32 v5, v{9+2*i}, v3")
        E("  v_or_b32 v4, v4, v5")
    E("  v_cmp_ne_u32 vcc, 0, v4")
    E("  s_nop 1")
    E("  s_cmp_eq_u64 vcc, 0")
    E("  s_cbranch_scc1 L_noall")
    spin_guard("L_noall")
    E("  s_sleep 4")
    E("  s_branch L_pollA")
    E("L_noall:")
    E("  s_barrier")
    E(f"  s_sub_u32 s67, s60, {W_CMB}")
    E("  s_cmp_ge_u32 s67, 2")
    E("  s_cbranch_scc1 L_nocomb")
    E(f"  v_subrev_u32 v1, {64*W_CMB}, v{tid}")
    E("  v_lshrrev_b32 v0, 5, v1")
    E("  v_lshlrev_b32 v2, 3, v0")
    E("  v_lshlrev_b32 v3, 4, v1")
    for w in range(8):
        E(f"  ds_read_b64 v[{8+2*w}:{9+2*w}], v2 offset:{LML+32*w}")
    for w in range(8):
        E(f"  ds_read_b128 v[{24+4*w}:{27+4*w}], v3 offset:{LP+2048*w}")
    E("  s_waitcnt lgkmcnt(8)")
    E("  v_max3_f32 v4, v8, v10, v12")
    E("  v_max3_f32 v4, v4, v14, v16")
    E("  v_max3_f32 v4, v4, v18, v20")
    E("  v_max_f32 v4, v4, v22")
    for w in range(8): E(f"  v_sub_f32 v{8+2*w}, v{8+2*w}, v4")
    for w in range(8): E(f"  v_exp_f32 v{8+2*w}, v{8+2*w}")
    E("  s_waitcnt lgkmcnt(0)")
    E("  v_mul_f32 v5, v8, v9")
    for e in range(4): E(f"  v_mul_f32 v{60+e}, v8, v{24+e}")
    for w in range(1, 8):
        E(f"  v_fmac_f32 v5, v{8+2*w}, v{9+2*w}")
        for e in range(4): E(f"  v_fmac_f32 v{60+e}, v{8+2*w}, v{24+4*w+e}")
    E("  v_min_u32 v4, 0xfffffffe, v4")
    E("  v_min_u32 v5, 0xfffffffe, v5")
    for e in range(4): E(f"  v_min_u32 v{60+e}, 0xfffffffe, v{60+e}")
    E("  s_lshl_b32 s67, s65, 5")
    E("  s_add_u32 s67, s67, s64")
    E("  s_lshl_b32 s68, s67, 9")
    E(f"  s_add_u32 s68, s68, {AO:#x}")
    E("  v_and_b32 v1, 31, v1")
    E("  v_lshlrev_b32 v7, 12, v0")
    E("  v_lshl_add_u32 v7, v1, 4, v7")
    E(f"  buffer_store_dwordx4 v[60:63], v7, {S(SW)}, s68 offen sc1")
    E("  s_lshl_b32 s68, s67, 3")
    E(f"  s_add_u32 s68, s68, {AML:#x}")
    E("  v_lshlrev_b32 v7, 6, v0")
    E("  v_cmp_eq_u32 vcc, 0, v1")
    E("  s_nop 1")
    E("  s_and_saveexec_b64 s[70:71], vcc")
    E(f"  buffer_store_dwordx2 v[4:5], v7, {S(SW)}, s68 offen sc1")
    E("  s_mov_b64 exec, s[70:71]")
    E("L_nocomb:")
    stamp(4)
    E(f"  s_cmp_eq_u32 s60, {W_WO}")
    E("  s_cbranch_scc1 L_tail_wo")
    E(f"  s_cmp_eq_u32 s60, {W_FIN}")
    E("  s_cbranch_scc1 L_tail_fin")
    E(f"  s_cmp_eq_u32 s60, {W_FFN}")
    E("  s_cbranch_scc0 L_exit")
    E("  s_cmp_ge_u32 s2, 112")
    E("  s_cbranch_scc1 L_exit")
    E(f"  v_and_b32 v0, 3, v{n}")
    E(f"  v_lshrrev_b32 v1, 2, v{n}")
    E("  v_lshl_add_u32 v2, v1, 2, v0")
    E("  s_movk_i32 s67, 30720")
    E("  v_mul_lo_u32 v2, v2, s67")
    E(f"  v_lshl_add_u32 v2, v{g}, 5, v2")
    E("  s_lshr_b32 s68, s2, 2")
    E("  s_lshl_b32 s69, s68, 8")
    E("  s_add_u32 s69, s69, 16384")
    E("  s_add_u32 s72, s69, 7168")
    for blk in range(2):
        E(f"  buffer_load_dwordx4 v[{8+8*blk}:{11+8*blk}], v2, {S(SW)}, s69 offen offset:{128*blk}")
        E(f"  buffer_load_dwordx4 v[{12+8*blk}:{15+8*blk}], v2, {S(SW)}, s69 offen offset:{128*blk+16}")
        E(f"  buffer_load_dwordx4 v[{24+8*blk}:{27+8*blk}], v2, {S(SW)}, s72 offen offset:{128*blk}")
        E(f"  buffer_load_dwordx4 v[{28+8*blk}:{31+8*blk}], v2, {S(SW)}, s72 offen offset:{128*blk+16}")
    E("  v_lshlrev_b32 v3, 2, v0")
    E(f"  s_mov_b32 s73, {GOFF:#x}")
    E(f"  buffer_load_dword v4, v3, {S(SW)}, s73 offen")
    E("  s_waitcnt vmcnt(0)")
    for r in (4, 8):
        for i in range(32):
            E(f"  v_add_f32_dpp v{8+i}, v{8+i}, v{8+i} row_ror:{r} row_mask:0xf bank_mask:0xf")
    E("  v_sub_f32 v4, 1.0, v4")
    for i in range(16): E(f"  v_mul_f32 v{8+i}, 0xbfb8aa3b, v{8+i}")
    for i in range(16): E(f"  v_exp_f32 v{8+i}, v{8+i}")
    for i in range(16): E(f"  v_mul_f32 v{24+i}, v{24+i}, v4")
    for i in range(16): E(f"  v_add_f32 v{8+i}, 1.0, v{8+i}")
    for i in range(16): E(f"  v_rcp_f32 v{8+i}, v{8+i}")
    E("  s_nop 0")
    for i in range(16): E(f"  v_mul_f32 v{8+i}, v{8+i}, v{24+i}")
    for i in range(8): E(f"  v_cvt_pk_bf16_f32 v{40+i}, v{8+2*i}, v{9+2*i}")
    ffn_slot(69)
    E("  s_branch L_tail_mm")
    E("L_tail_wo:")
    E(f"  v_and_b32 v0, 3, v{n}")
    E(f"  v_lshrrev_b32 v1, 2, v{n}")
    E("  s_lshr_b32 s68, s62, 3")
    E("  s_lshl_b32 s69, s61, 2")
    E("  s_add_u32 s69, s69, s68")
    E("  v_lshlrev_b32 v2, 17, v0")
    E("  v_lshl_add_u32 v2, v1, 10, v2")
    E(f"  v_lshl_add_u32 v2, v{g}, 5, v2")
    E("  s_lshl_b32 s72, s69, 12")
    E("  s_lshr_b32 s73, s62, 2")
    E("  s_and_b32 s73, s73, 1")
    E("  s_lshl_b32 s73, s73, 8")
    E("  s_add_u32 s72, s72, s73")
    E(f"  s_add_u32 s72, s72, {AO:#x}")
    E("  v_lshlrev_b32 v3, 11, v0")
    E("  v_lshl_add_u32 v5, v1, 4, v3")
    E("  s_lshl_b32 s73, s69, 6")
    E(f"  s_add_u32 s73, s73, {AML:#x}")
    E("  v_lshlrev_b32 v6, 2, v0")
    E(f"  s_mov_b32 s74, {GOFF:#x}")
    E(f"  buffer_load_dword v4, v6, {S(SW)}, s74 offen")
    E("  s_mov_b64 exec, 0xffff")
    E("L_poll1a:")
    E(f"  buffer_load_dwordx4 v[56:59], v5, {S(SW)}, s73 offen sc1")
    E("  s_waitcnt vmcnt(0)")
    E("  v_max3_u32 v7, v56, v57, v58")
    E("  v_max_u32 v7, v7, v59")
    E("  v_cmp_eq_u32 vcc, -1, v7")
    E("  s_nop 1")
    E("  s_cmp_eq_u64 vcc, 0")
    E("  s_cbranch_scc1 L_poll1a_done")
    spin_guard("L_poll1a_done")
    E(f"  s_sleep {SLP}")
    E("  s_branch L_poll1a")
    E("L_poll1a_done:")
    E("  s_mov_b64 exec, -1")
    E("L_poll1:")
    for s_ in range(2):
        for blk in range(2):
            r = 8 + 16*s_ + 8*blk
            E(f"  buffer_load_dwordx4 v[{r}:{r+3}], v2, {S(SW)}, s72 offen offset:{512*s_+128*blk} sc1")
            E(f"  buffer_load_dwordx4 v[{r+4}:{r+7}], v2, {S(SW)}, s72 offen offset:{512*s_+128*blk+16} sc1")
    for i in range(4):
        E(f"  buffer_load_dwordx4 v[{40+4*i}:{43+4*i}], v3, {S(SW)}, s73 offen offset:{16*i} sc1")
    E(f"  buffer_load_dwordx4 v[56:59], v5, {S(SW)}, s73 offen sc1")
    E("  s_waitcnt vmcnt(0)")
    E("  v_max3_u32 v7, v8, v9, v10")
    i = 11
    while i < 60:
        if i + 1 < 60:
            E(f"  v_max3_u32 v7, v7, v{i}, v{i+1}"); i += 2
        else:
            E(f"  v_max_u32 v7, v7, v{i}"); i += 1
    E("  v_cmp_eq_u32 vcc, -1, v7")
    E("  s_nop 1")
    E("  s_cmp_eq_u64 vcc, 0")
    E("  s_cbranch_scc1 L_poll1_done")
    spin_guard("L_poll1_done")
    E(f"  s_sleep {SLP}")
    E("  s_branch L_poll1")
    E("L_poll1_done:")
    stamp(5)
    E("  v_max3_f32 v7, v40, v42, v44")
    E("  v_max3_f32 v7, v7, v46, v48")
    E("  v_max3_f32 v7, v7, v50, v52")
    E("  v_max_f32 v7, v7, v54")
    for s_ in range(8): E(f"  v_sub_f32 v{40+2*s_}, v{40+2*s_}, v7")
    E("  v_sub_f32 v56, v56, v7")
    E("  v_sub_f32 v58, v58, v7")
    for s_ in range(8): E(f"  v_exp_f32 v{40+2*s_}, v{40+2*s_}")
    E("  v_exp_f32 v56, v56")
    E("  v_exp_f32 v58, v58")
    E("  v_mul_f32 v7, v40, v41")
    for s_ in range(1, 8): E(f"  v_fmac_f32 v7, v{40+2*s_}, v{41+2*s_}")
    E("  v_rcp_f32 v7, v7")
    E("  s_nop 0")
    E("  v_mul_f32 v7, v7, v4")
    E("  v_mul_f32 v56, v56, v7")
    E("  v_mul_f32 v58, v58, v7")
    for i in range(16): E(f"  v_mul_f32 v{8+i}, v{8+i}, v56")
    for i in range(16): E(f"  v_fmac_f32 v{8+i}, v{24+i}, v58")
    for r in (4, 8):
        for i in range(16):
            E(f"  v_add_f32_dpp v{8+i}, v{8+i}, v{8+i} row_ror:{r} row_mask:0xf bank_mask:0xf")
    for i in range(8): E(f"  v_cvt_pk_bf16_f32 v{40+i}, v{8+2*i}, v{9+2*i}")
    wo_slot(69)
    E("L_tail_mm:")
    E("  s_waitcnt vmcnt(0)")
    gemv_block(VR, 40, 96, SR, first=True)
    gemv_block(VR+32, 44, 96, SR, first=False)
    E("  s_lshl_b32 s69, s69, 11")
    E(f"  s_add_u32 s69, s69, {L2:#x}")
    E(f"  v_lshlrev_b32 v2, 7, v{n}")
    E(f"  v_cmp_gt_u32 vcc, 16, v{lane}")
    E("  s_nop 4")
    for i in range(32): E(f"  v_min_u32 v{SR+i}, 0xfffffffe, v{SR+i}")
    E("  s_and_saveexec_b64 s[70:71], vcc")
    for j in range(8):
        E(f"  buffer_store_dwordx4 v[{SR+4*j}:{SR+3+4*j}], v2, {S(SW)}, s69 offen offset:{16*j} sc1")
    E("  s_mov_b64 exec, s[70:71]")
    E(f"  s_cmp_eq_u32 s60, {W_WO}")
    E("  s_cbranch_scc0 L_noflag3")
    E(f"  v_mov_b32 v2, {LFLAG}")
    E("  v_mov_b32 v3, 3")
    E("  ds_write_b32 v2, v3")
    E("L_noflag3:")
    stamp(6)
    E("  s_branch L_exit")
    E("L_tail_fin:")
    E(f"  v_lshrrev_b32 v0, 1, v{lane}")
    E(f"  v_and_b32 v1, 1, v{lane}")
    E("  s_lshr_b32 s68, s2, 6")
    E(f"  s_mul_i32 s68, s68, {NT*2048}")
    E("  s_and_b32 s69, s2, 63")
    E("  s_lshl_b32 s69, s69, 5")
    E("  s_add_u32 s68, s68, s69")
    E(f"  s_add_u32 s68, s68, {L2:#x}")
    E("  v_lshlrev_b32 v2, 11, v0")
    E("  v_lshl_add_u32 v2, v1, 4, v2")
    E("  s_add_u32 s69, s68, 65536")
    E("  v_cmp_gt_u32 vcc, 28, v0")
    E("  v_add_u32 v3, 0x20000, v2")
    E("  s_nop 0")
    E("  v_cndmask_b32 v3, v2, v3, vcc")
    lds_wait("finwait", LFLAG, 3, 20)
    E("L_poll2:")
    E(f"  buffer_load_dwordx4 v[8:11], v2, {S(SW)}, s68 offen sc1")
    E(f"  buffer_load_dwordx4 v[12:15], v2, {S(SW)}, s69 offen sc1")
    E(f"  buffer_load_dwordx4 v[16:19], v3, {S(SW)}, s68 offen sc1")
    E("  s_waitcnt vmcnt(0)")
    E("  v_max3_u32 v7, v8, v9, v10")
    E("  v_max3_u32 v7, v7, v11, v12")
    E("  v_max3_u32 v7, v7, v13, v14")
    E("  v_max3_u32 v7, v7, v15, v16")
    E("  v_max3_u32 v7, v7, v17, v18")
    E("  v_max_u32 v7, v7, v19")
    E("  v_cmp_eq_u32 vcc, -1, v7")
    E("  s_nop 1")
    E("  s_cmp_eq_u64 vcc, 0")
    E("  s_cbranch_scc1 L_poll2_done")
    spin_guard("L_poll2_done")
    E(f"  s_sleep {SLP}")
    E("  s_branch L_poll2")
    E("L_poll2_done:")
    stamp(7)
    if os.environ.get("XDELAY"):
        E("  s_memrealtime s[70:71]")
        E("  s_waitcnt lgkmcnt(0)")
        E(f"  s_add_u32 s72, s70, {int(os.environ['XDELAY'])}")
        E("L_xd:")
        E("  s_memrealtime s[70:71]")
        E("  s_waitcnt lgkmcnt(0)")
        E("  s_sub_u32 s73, s70, s72")
        E("  s_cmp_lt_i32 s73, 0")
        E("  s_cbranch_scc1 L_xd")
    E("  v_cmp_gt_u32 vcc, 28, v0")
    E("  s_nop 1")
    for i in range(4): E(f"  v_cndmask_b32 v{16+i}, 0, v{16+i}, vcc")
    for i in range(4): E(f"  v_add_f32 v{8+i}, v{8+i}, v{12+i}")
    for i in range(4): E(f"  v_add_f32 v{8+i}, v{8+i}, v{16+i}")
    for r in (2, 4, 8):
        E("  s_nop 1")
        for i in range(4):
            E(f"  v_add_f32_dpp v{8+i}, v{8+i}, v{8+i} row_ror:{r} row_mask:0xf bank_mask:0xf")
    for op in ("v_permlane16_swap_b32", "v_permlane32_swap_b32"):
        for i in range(4): E(f"  v_mov_b32 v{12+i}, v{8+i}")
        E("  s_nop 1")
        for i in range(4): E(f"  {op} v{8+i}, v{12+i}")
        for i in range(4): E(f"  v_add_f32 v{8+i}, v{8+i}, v{12+i}")
    E("  s_nop 1")
    for i in range(4):
        E(f"  v_mov_b32_dpp v{12+i}, v{8+i} quad_perm:[1,0,3,2] row_mask:0xf bank_mask:0xf")
    for i in range(4): E(f"  v_cvt_pk_bf16_f32 v{8+i}, v{8+i}, v{12+i}")
    E("  s_lshl_b32 s68, s2, 2")
    E("  v_mov_b32 v2, 0")
    E("  s_mov_b64 exec, 1")
    for i in range(4):
        E(f"  buffer_store_dword v{8+i}, v2, {S(SO)}, s68 offen offset:{1024*i}")
    E("  s_mov_b64 exec, -1")
    E("L_exit:")
    if DIAG == 9:
        E(f"  s_cmp_eq_u32 s60, {W_FIN}")
        E("  s_cbranch_scc0 L_end")
        E("  s_and_b32 s68, s2, 63")
        E("  s_cmp_lg_u32 s68, 0")
        E("  s_cbranch_scc1 L_end")
        E("  s_waitcnt lgkmcnt(0)")
        E("  s_lshr_b32 s68, s2, 6")
        E("  s_mul_i32 s68, s68, 12")
        E("  v_mov_b32 v2, 0")
        E("  s_mov_b64 exec, 1")
        E("  v_mov_b32 v8, s84")
        E("  v_mov_b32 v9, s92")
        E("  v_mov_b32 v10, s98")
        E(f"  buffer_store_dwordx3 v[8:10], v2, {S(SD)}, s68 offen offset:16")
    elif DIAG:
        E("  s_memrealtime s[100:101]")
        E("  s_waitcnt lgkmcnt(0)")
        E("  s_lshl_b32 s68, s2, 3")
        E("  s_add_u32 s68, s68, s60")
        E("  s_lshl_b32 s68, s68, 6")
        E(f"  s_add_u32 s68, s68, {DIAGOFF:#x}")
        for i in range(9): E(f"  v_mov_b32 v{8+i}, s{84+2*i}")
        E("  v_mov_b32 v2, 0")
        E("  s_mov_b64 exec, 1")
        E(f"  buffer_store_dwordx4 v[8:11], v2, {S(SW)}, s68 offen")
        E(f"  buffer_store_dwordx4 v[12:15], v2, {S(SW)}, s68 offen offset:16")
        E(f"  buffer_store_dword v16, v2, {S(SW)}, s68 offen offset:32")
    E("L_end:")
    E("  s_endpgm")

    E("L_pool:")
    lds_wait("pwait", LPROG, 7, M+8)
    claim()
    E("  s_waitcnt vmcnt(0)")
    E("L_claimed:")
    E(f"  v_readfirstlane_b32 s67, v{M+14}")
    E("  s_cmp_ge_u32 s67, 16")
    E("  s_cbranch_scc1 L_w0done")
    stamp(2)
    E("  s_lshl_b32 s66, s65, 21")
    E("  s_lshr_b32 s68, s67, 1")
    E("  s_lshl_b32 s68, s68, 18")
    E("  s_add_u32 s66, s66, s68")
    E("  s_and_b32 s68, s67, 1")
    E("  s_lshl_b32 s68, s68, 14")
    E("  s_add_u32 s66, s66, s68")
    q = Q()
    for t in range(4): kload(q, t)
    vload(q, 0, VR); vload(q, 1, VR+32)
    body(q, 4, [VR, VR+32], post_s=claim)
    E("  s_waitcnt vmcnt(0)")
    merge_old()
    write_partial()
    E("  s_branch L_claimed")

    E("L_stage1:")
    E("  s_setprio 3")
    E("  s_cmp_ge_u32 s62, 30")
    E("  s_cbranch_scc1 L_s1_clr")
    E("  s_cmp_ge_u32 s62, 16")
    E("  s_cbranch_scc1 L_s1_ffn")
    srd(ST, 10, 0x400000)
    E("  s_movk_i32 s72, 8192")
    E("  s_lshl_b32 s68, s61, 2")
    E("  s_lshr_b32 s69, s62, 2")
    E("  s_add_u32 s68, s68, s69")
    E("  s_and_b32 s73, s62, 3")
    E("  s_lshl_b32 s74, s68, 8")
    E("  s_lshl_b32 s75, s68, 9")
    E("  s_branch L_s1_go")
    E("L_s1_ffn:")
    E("  s_mul_i32 s68, s61, 14")
    E("  s_add_u32 s68, s68, s62")
    E("  s_sub_u32 s68, s68, 16")
    E("  s_and_b32 s73, s68, 3")
    E("  s_lshr_b32 s68, s68, 2")
    E("  s_movk_i32 s72, 3584")
    E("  s_lshl_b32 s75, s68, 9")
    E("  s_add_u32 s75, s75, 16384")
    E("  s_cmp_ge_u32 s68, 14")
    E(f"  s_cselect_b32 s{ST}, s18, s16")
    E(f"  s_cselect_b32 s{ST+1}, s19, s17")
    E("  s_cselect_b32 s69, 14, 0")
    E(f"  s_and_b32 s{ST+1}, s{ST+1}, 0xffff")
    E(f"  s_mov_b32 s{ST+2}, 0x1c0000")
    E(f"  s_mov_b32 s{ST+3}, 0x00020000")
    E("  s_sub_u32 s68, s68, s69")
    E("  s_lshl_b32 s74, s68, 8")
    E("L_s1_go:")
    E("  s_lshl_b32 s68, s73, 7")
    E(f"  v_lshlrev_b32 v164, 3, v{g}")
    E("  v_add_u32 v164, s68, v164")
    E(f"  v_and_b32 v165, 3, v{n}")
    E("  v_lshlrev_b32 v165, 10, v165")
    E("  v_lshl_add_u32 v165, v164, 1, v165")
    E("  v_mul_lo_u32 v166, v164, s72")
    E(f"  v_lshl_add_u32 v166, v{n}, 4, v166")
    E("  v_add_u32 v166, s74, v166")
    E("  s_mov_b32 s69, 0")
    E("  s_mul_i32 s67, s72, 24")
    for blk in range(4):
        E(f"  buffer_load_dwordx4 v[{128+4*blk}:{131+4*blk}], v165, {S(SX)}, 0 offen offset:{64*blk}")
        for kk in range(8):
            r = 32*blk + 4*kk
            E(f"  buffer_load_dwordx4 v[{r}:{r+3}], v166, {S(ST)}, s69 offen {S1F}")
            E("  s_add_u32 s69, s69, s72")
        if blk < 3: E("  s_add_u32 s69, s69, s67")
    E("L_s1_clr:")
    E(f"  v_mov_b32 v170, {LFLAG}")
    E("  v_mov_b32 v171, 1")
    E("  ds_write_b32 v170, v171")
    for i in range(4): E(f"  v_mov_b32 v{160+i}, -1")
    E("  s_lshl_b32 s67, s65, 5")
    E("  s_add_u32 s67, s67, s64")
    E("  s_lshl_b32 s68, s67, 9")
    E(f"  s_add_u32 s68, s68, {AO:#x}")
    E(f"  v_lshlrev_b32 v172, 12, v{g}")
    E(f"  v_lshl_add_u32 v172, v{n}, 5, v172")
    E(f"  buffer_store_dwordx4 v[160:163], v172, {S(SW)}, s68 offen sc1")
    E(f"  buffer_store_dwordx4 v[160:163], v172, {S(SW)}, s68 offen offset:16 sc1")
    E("  s_lshl_b32 s68, s67, 3")
    E(f"  s_add_u32 s68, s68, {AML:#x}")
    E(f"  v_lshlrev_b32 v172, 6, v{g}")
    E("  s_mov_b32 exec_lo, 0x00010001")
    E("  s_mov_b32 exec_hi, 0x00010001")
    E(f"  buffer_store_dwordx2 v[160:161], v172, {S(SW)}, s68 offen sc1")
    E("  s_mov_b64 exec, -1")
    wo_slot(69)
    E("  s_lshl_b32 s69, s69, 11")
    E(f"  s_add_u32 s69, s69, {L2:#x}")
    E(f"  v_lshlrev_b32 v172, 5, v{lane}")
    E(f"  buffer_store_dwordx4 v[160:163], v172, {S(SW)}, s69 offen sc1")
    E(f"  buffer_store_dwordx4 v[160:163], v172, {S(SW)}, s69 offen offset:16 sc1")
    NCLR = 5
    E("  s_cmp_ge_u32 s2, 112")
    E("  s_cbranch_scc1 L_s1_noffnclr")
    ffn_slot(69)
    E("  s_lshl_b32 s69, s69, 11")
    E(f"  s_add_u32 s69, s69, {L2:#x}")
    E(f"  buffer_store_dwordx4 v[160:163], v172, {S(SW)}, s69 offen sc1")
    E(f"  buffer_store_dwordx4 v[160:163], v172, {S(SW)}, s69 offen offset:16 sc1")
    E("L_s1_noffnclr:")
    E("  s_cmp_ge_u32 s62, 4")
    E("  s_cbranch_scc1 L_s1_nocnt")
    E("  s_lshl_b32 s68, s62, 3")
    E("  s_add_u32 s68, s68, s61")
    E("  s_lshl_b32 s68, s68, 7")
    E(f"  s_add_u32 s68, s68, {CNT:#x}")
    E("  v_mov_b32 v172, 0")
    E("  s_mov_b64 exec, 1")
    E(f"  buffer_store_dword v172, v172, {S(SW)}, s68 offen sc1")
    E("  s_mov_b64 exec, -1")
    E("L_s1_nocnt:")
    E("  v_mov_b32 v172, 0")
    E("  s_mov_b64 exec, 1")
    E(f"  buffer_load_dwordx2 v[168:169], v172, {S(SD)}, 0 offen sc1")
    E("  s_mov_b64 exec, -1")
    E("  s_cmp_ge_u32 s62, 30")
    E("  s_cbranch_scc1 L_s1_gate")
    for blk in range(4):
        E(f"  s_waitcnt vmcnt({9*(3-blk)+6})")
        gemv_block(32*blk, 128+4*blk, 144, 192, first=(blk == 0))
    stamp(1, 2)
    E("  s_nop 7")
    for b in range(4):
        for j in range(8):
            E(f"  v_mov_b32 v{8*b+j}, v{192+4*j+b}")
    E("  s_mul_i32 s68, s73, 122880")
    E("  s_add_u32 s68, s68, s75")
    E(f"  v_lshlrev_b32 v164, 5, v{n}")
    E("  s_mov_b64 exec, 0xffff")
    for b in range(4):
        E(f"  buffer_store_dwordx4 v[{8*b}:{8*b+3}], v164, {S(SW)}, s68 offen sc1")
        E(f"  buffer_store_dwordx4 v[{8*b+4}:{8*b+7}], v164, {S(SW)}, s68 offen offset:16 sc1")
        if b < 3: E("  s_add_u32 s68, s68, 30720")
    E("  s_mov_b64 exec, -1")
    E("  s_branch L_s1_signal")
    E("L_s1_gate:")
    E("  s_cmp_lg_u32 s2, 198")
    E("  s_cbranch_scc1 L_s1_signal")
    srd(ST, 22, 1024)
    E(f"  v_lshlrev_b32 v164, 4, v{lane}")
    E(f"  buffer_load_dwordx4 v[16:19], v164, {S(ST)}, 0 offen")
    for b in range(4):
        E(f"  buffer_load_dwordx4 v[{4*b}:{4*b+3}], v164, {S(SX)}, 0 offen offset:{1024*b}")
    E("  s_waitcnt vmcnt(0)")
    for b in range(4): E(f"  v_mov_b32 v{24+b}, 0")
    for c in range(4):
        E(f"  v_lshlrev_b32 v20, 16, v{16+c}")
        E(f"  v_and_b32 v21, 0xffff0000, v{16+c}")
        for b in range(4):
            E(f"  v_lshlrev_b32 v22, 16, v{4*b+c}")
            E(f"  v_and_b32 v23, 0xffff0000, v{4*b+c}")
            E(f"  v_fmac_f32 v{24+b}, v20, v22")
            E(f"  v_fmac_f32 v{24+b}, v21, v23")
    for r in (8, 4, 2, 1):
        E("  s_nop 1")
        for b in range(4):
            E(f"  v_add_f32_dpp v{24+b}, v{24+b}, v{24+b} row_ror:{r} row_mask:0xf bank_mask:0xf")
    for op in ("v_permlane16_swap_b32", "v_permlane32_swap_b32"):
        for i in range(4): E(f"  v_mov_b32 v{28+i}, v{24+i}")
        E("  s_nop 1")
        for i in range(4): E(f"  {op} v{24+i}, v{28+i}")
        for i in range(4): E(f"  v_add_f32 v{24+i}, v{24+i}, v{28+i}")
    for i in range(4): E(f"  v_mul_f32 v{24+i}, 0xbfb8aa3b, v{24+i}")
    for i in range(4): E(f"  v_exp_f32 v{24+i}, v{24+i}")
    E("  s_nop 0")
    for i in range(4): E(f"  v_add_f32 v{24+i}, 1.0, v{24+i}")
    for i in range(4): E(f"  v_rcp_f32 v{24+i}, v{24+i}")
    E(f"  s_mov_b32 s68, {GOFF:#x}")
    E("  v_mov_b32 v164, 0")
    E("  s_mov_b64 exec, 1")
    E(f"  buffer_store_dwordx4 v[24:27], v164, {S(SW)}, s68 offen sc1")
    E("  s_mov_b64 exec, -1")
    E("L_s1_signal:")
    E("  s_waitcnt vmcnt(0)")
    stamp(2, 2)
    E("  v_mov_b32 v164, 0")
    E("  s_mov_b64 exec, 1")
    E("L_pollN:")
    E("  v_readfirstlane_b32 s78, v168")
    E("  v_readfirstlane_b32 s79, v169")
    E("  s_and_b32 s68, s78, 1")
    E("  s_lshr_b32 s69, s79, 31")
    E("  s_and_b32 s68, s68, s69")
    E("  s_cmp_eq_u32 s68, 1")
    E("  s_cbranch_scc1 L_pollN_done")
    spin_guard("L_pollN_done")
    E(f"  buffer_load_dwordx2 v[168:169], v164, {S(SD)}, 0 offen sc1")
    E("  s_waitcnt vmcnt(0)")
    E("  s_branch L_pollN")
    E("L_pollN_done:")
    E("  s_lshl_b32 s68, s2, 7")
    E(f"  s_add_u32 s68, s68, {FL:#x}")
    E(f"  buffer_store_dwordx2 v[168:169], v164, {S(SW)}, s68 offen sc1")
    E("  s_mov_b64 exec, -1")
    E(f"  v_lshrrev_b32 v164, 3, v{lane}")
    E("  v_lshlrev_b32 v164, 6, v164")
    E(f"  v_and_b32 v165, 7, v{lane}")
    E("  v_add_u32 v164, v164, v165")
    E("  v_lshlrev_b32 v164, 7, v164")
    E("  s_lshl_b32 s68, s61, 10")
    E(f"  s_add_u32 s68, s68, {FL:#x}")
    E("  s_mov_b64 exec, 0xffff")
    E("L_poll0:")
    E(f"  buffer_load_dwordx2 v[166:167], v164, {S(SW)}, s68 offen sc1")
    E("  s_waitcnt vmcnt(0)")
    E("  v_cmp_ne_u32 vcc, s78, v166")
    E("  v_cmp_ne_u32 s[72:73], s79, v167")
    E("  s_nop 1")
    E("  s_or_b64 vcc, vcc, s[72:73]")
    E("  s_cmp_eq_u64 vcc, 0")
    E("  s_cbranch_scc1 L_poll0_done")
    spin_guard("L_poll0_done")
    E("  s_sleep 1")
    E("  s_branch L_poll0")
    E("L_poll0_done:")
    E("  s_mov_b64 exec, -1")
    stamp(3, 2)
    E("  s_mul_i32 s68, s63, 30720")
    E("  s_lshl_b32 s69, s61, 11")
    E("  s_add_u32 s68, s68, s69")
    E(f"  v_lshlrev_b32 v164, 5, v{lane}")
    for kq in range(4):
        E(f"  buffer_load_dwordx4 v[{8*kq}:{8*kq+3}], v164, {S(SW)}, s68 offen")
        E(f"  buffer_load_dwordx4 v[{8*kq+4}:{8*kq+7}], v164, {S(SW)}, s68 offen offset:16")
        if kq < 3: E("  s_add_u32 s68, s68, 122880")
    E("  s_waitcnt vmcnt(0)")
    stamp(4, 2)
    for i in range(8):
        E(f"  v_add_f32 v{i}, v{i}, v{8+i}")
        E(f"  v_add_f32 v{16+i}, v{16+i}, v{24+i}")
    for i in range(8): E(f"  v_add_f32 v{i}, v{i}, v{16+i}")
    for i in range(4): E(f"  v_cvt_pk_bf16_f32 v{32+i}, v{2*i}, v{2*i+1}")
    E(f"  v_lshlrev_b32 v164, 4, v{lane}")
    E(f"  ds_write_b128 v164, v[32:35] offset:{LQ}")
    E(f"  v_mov_b32 v164, {LNONCE}")
    E("  v_mov_b32 v166, s78")
    E("  v_mov_b32 v167, s79")
    E("  ds_write_b64 v164, v[166:167]")
    E("  s_waitcnt lgkmcnt(0)")
    E(f"  v_mov_b32 v164, {LFLAG}")
    E("  v_mov_b32 v165, 2")
    E("  ds_write_b32 v164, v165")
    E("  s_setprio 0")
    for i in range(4): E(f"  v_mov_b32 v{i}, 0")
    E(f"  v_lshlrev_b32 v164, 5, v{lane}")
    E(f"  ds_write_b128 v164, v[0:3] offset:{LP}")
    E(f"  ds_write_b128 v164, v[0:3] offset:{LP+16}")
    E("  v_mov_b32 v0, 0xf149f2ca")
    E(f"  v_and_b32 v164, 3, v{lane}")
    E("  v_lshlrev_b32 v164, 3, v164")
    E(f"  ds_write_b64 v164, v[0:1] offset:{LML}")
    E("  s_branch L_pool")

    E(f""".section .rodata,"a"
.p2align 6
.amdhsa_kernel {name}
  .amdhsa_next_free_vgpr 256
  .amdhsa_next_free_sgpr 102
  .amdhsa_accum_offset 256
  .amdhsa_group_segment_fixed_size 0
  .amdhsa_kernarg_size 104
  .amdhsa_user_sgpr_count 2
  .amdhsa_user_sgpr_kernarg_segment_ptr 1
  .amdhsa_system_sgpr_workgroup_id_x 1
.end_amdhsa_kernel""")

E(HEADER.rstrip())
E(f"; @launch grid=(256,1,1) block=(512,1,1) lds={LDS_BYTES}")
E('.amdgcn_target "amdgcn-amd-amdhsa--gfx950"')
E(".text")
kernel()
open(sys.argv[1], "w").write("\n".join(out) + "\n")
```

```python
import sys, os, math, struct
NAME = "gated_mix__gqa_block_cached__glu_gated_glu__decode"
KVF = os.environ.get("KVF", "nt")
S1F = os.environ.get("S1F", "nt")
DIAG = int(os.environ.get("DIAG", "0"))
PT = int(os.environ.get("PT", "16"))
SLP = int(os.environ.get("SLP", "2"))
NCL = int(os.environ.get("NCL", "2"))
out = []
def E(s=""): out.append(s)

P1 = 0x0
GOFF = 0x80000
AO = 0x100000
AML = 0x180000
L2 = 0x200000
FL = 0x300000
CNT = 0x310000
DIAGOFF = 0x400000
WS_BYTES = 0x10000000
NT = 92
LQ, LP, LML, LFLAG, LNONCE, LPROG, VST = 0, 1024, 17408, 17664, 17672, 17680, 18432
LDS_BYTES = VST + 8 * 16384
W_WO, W_FFN, W_FIN, W_CMB, W_ALL = 5, 6, 7, 2, 3

HEADER = open("cdna_kernels/" + NAME + ".s.ref").read().split("; Override launch")[0]

def srd(d, b, nbytes):
    E(f"  s_mov_b32 s{d}, s{b}")
    E(f"  s_and_b32 s{d+1}, s{b+1}, 0xffff")
    E(f"  s_mov_b32 s{d+2}, {nbytes:#x}")
    E(f"  s_mov_b32 s{d+3}, 0x00020000")

SELLO, SELHI = 80, 81
def gemv_block(W, A, T, ACC, first=True):
    def perms(j):
        c = j >> 1
        sel = SELHI if (j & 1) else SELLO
        t = T + 4 * (j & 1)
        for i in range(4):
            E(f"  v_perm_b32 v{t+i}, v{W+4*(2*i+1)+c}, v{W+4*(2*i)+c}, s{sel}")
    def mfma(j):
        t = T + 4 * (j & 1)
        a = ACC + 4 * j
        c = "0" if first else f"v[{a}:{a+3}]"
        E(f"  v_mfma_f32_16x16x32_bf16 v[{a}:{a+3}], v[{A}:{A+3}], v[{t}:{t+3}], {c}")
    perms(0)
    for j in range(8):
        if j + 1 < 8: perms(j + 1)
        else: E("  s_nop 1")
        mfma(j)

def stamp(i, lvl=1):
    if (1 if DIAG == 9 else DIAG) != lvl: return
    E(f"  s_memrealtime s[{84+2*i}:{85+2*i}]")

def spin_guard(label, lim="0x40000"):
    E("  s_add_u32 s83, s83, 1")
    E(f"  s_cmp_gt_u32 s83, {lim}")
    E(f"  s_cbranch_scc1 {label}")

def lds_wait(name, off, val, vtmp):
    E(f"  v_mov_b32 v{vtmp}, {off}")
    E(f"L_{name}:")
    E(f"  ds_read_b32 v{vtmp+1}, v{vtmp}")
    E("  s_waitcnt lgkmcnt(0)")
    E(f"  v_readfirstlane_b32 s67, v{vtmp+1}")
    E(f"  s_cmp_ge_u32 s67, {val}")
    E(f"  s_cbranch_scc1 L_{name}_done")
    spin_guard(f"L_{name}_done", "0x400000")
    E("  s_sleep 1")
    E(f"  s_branch L_{name}")
    E(f"L_{name}_done:")

KR, VR, SR, QR, M = 0, 128, 192, 224, 240
tid, lane, g, n = M, M+1, M+2, M+3
vk, vv = M+6, M+7
mx, t1, ls = M+8, M+9, M+10
SK, SV, SW, SD, ST, SX, SO = 32, 36, 40, 44, 48, 52, 56
def S(x): return f"s[{x}:{x+3}]"
cbits = struct.unpack("<I", struct.pack("<f", (128 ** -0.5) * math.log2(math.e)))[0]

class Q:
    def __init__(s): s.q = []
    def ld(s, nm): s.q.append(nm)
    def wait(s, nm):
        idx = max(i for i, x in enumerate(s.q) if x == nm)
        E(f"  s_waitcnt vmcnt({len(s.q)-1-idx})")
        del s.q[:idx+1]

def kload(q, t):
    E(f"  s_add_u32 s67, s66, {t*4096}")
    for j in range(4):
        r = KR + 16*t + 4*j
        E(f"  buffer_load_dwordx4 v[{r}:{r+3}], v{vk}, {S(SK)}, s67 offen offset:{64*j} {KVF}")
        q.ld(f"k{t}")
def vload(q, t, base):
    for half in range(2):
        E(f"  s_add_u32 s67, s66, {t*8192+half*4096}")
        for k4 in range(4):
            r = base + 4*(half*4+k4)
            E(f"  buffer_load_dwordx4 v[{r}:{r+3}], v{vv}, {S(SV)}, s67 offen offset:{256*k4} {KVF}")
            q.ld(f"v{t}")
def vload_lds(q, t):
    for half in range(2):
        E(f"  s_add_u32 s67, s66, {t*8192+half*4096}")
        for k4 in range(4):
            i = (t-2)*8 + half*4 + k4
            E(f"  s_add_u32 m0, s77, {i*1024 - 256*k4}")
            E("  s_nop 0")
            E(f"  buffer_load_dwordx4 v{vv}, {S(SV)}, s67 offen offset:{256*k4} {KVF} lds")
            q.ld(f"v{t}")

def body(q, nt, vbase, pre_pv3=None, post_s=None):
    E(f"  v_and_b32 v{M+9}, 3, v{n}")
    E(f"  v_lshlrev_b32 v{M+9}, 8, v{M+9}")
    E(f"  v_lshl_add_u32 v{M+9}, v{g}, 4, v{M+9}")
    for j in range(4):
        E(f"  ds_read_b128 v[{QR+4*j}:{QR+4*j+3}], v{M+9} offset:{LQ+64*j}")
    E("  s_waitcnt lgkmcnt(0)")
    for t in range(nt):
        q.wait(f"k{t}")
        s = SR + 4*t
        for j in range(4):
            r = KR + 16*t + 4*j
            c = "0" if j == 0 else f"v[{s}:{s+3}]"
            E(f"  v_mfma_f32_16x16x32_bf16 v[{s}:{s+3}], v[{r}:{r+3}], v[{QR+4*j}:{QR+4*j+3}], {c}")
    if post_s: post_s()
    E("  s_nop 7")
    ns = 4*nt
    E(f"  v_max3_f32 v{mx}, v{SR}, v{SR+1}, v{SR+2}")
    i = 3
    while i < ns:
        if i + 1 < ns:
            E(f"  v_max3_f32 v{mx}, v{mx}, v{SR+i}, v{SR+i+1}"); i += 2
        else:
            E(f"  v_max_f32 v{mx}, v{mx}, v{SR+i}"); i += 1
    for op in ("v_permlane16_swap_b32", "v_permlane32_swap_b32"):
        E(f"  v_mov_b32 v{t1}, v{mx}")
        E("  s_nop 1")
        E(f"  {op} v{mx}, v{t1}")
        E(f"  v_max_f32 v{mx}, v{mx}, v{t1}")
    E(f"  v_mul_f32 v{mx}, s82, v{mx}")
    for i in range(ns): E(f"  v_fma_f32 v{SR+i}, v{SR+i}, s82, -v{mx}")
    for i in range(ns): E(f"  v_exp_f32 v{SR+i}, v{SR+i}")
    E("  s_nop 0")
    E(f"  v_add_f32 v{ls}, v{SR}, v{SR+1}")
    for i in range(2, ns): E(f"  v_add_f32 v{ls}, v{ls}, v{SR+i}")
    for t in range(nt//2):
        for h in range(4):
            a = SR + 8*t + 2*h
            E(f"  v_cvt_pk_bf16_f32 v{QR+4*t+h}, v{a}, v{a+1}")
    for op in ("v_permlane16_swap_b32", "v_permlane32_swap_b32"):
        E(f"  v_mov_b32 v{t1}, v{ls}")
        E("  s_nop 1")
        E(f"  {op} v{ls}, v{t1}")
        E(f"  v_add_f32 v{ls}, v{ls}, v{t1}")
    ACC = SR; T = KR + 96
    for t in range(nt//2):
        q.wait(f"v{t}")
        if t >= 2:
            if t == 2:
                E(f"  v_lshlrev_b32 v{M+11}, 4, v{lane}")
                E(f"  v_add_u32 v{M+11}, s77, v{M+11}")
            for i in range(8):
                r = vbase[t] + 4*i
                E(f"  ds_read_b128 v[{r}:{r+3}], v{M+11} offset:{((t-2)*8+i)*1024}")
            E("  s_waitcnt lgkmcnt(0)")
        if t == 3 and pre_pv3: pre_pv3()
        gemv_block(vbase[t], QR+4*t, T, ACC, first=(t == 0))
    E("  s_lshl_b32 s67, s60, 11")
    E(f"  v_lshlrev_b32 v{M+11}, 5, v{n}")
    E(f"  v_add_u32 v{M+11}, s67, v{M+11}")
    E("  s_nop 5")
    for h in range(4):
        for j in range(8):
            E(f"  v_mov_b32 v{8*h+j}, v{ACC+4*j+h}")

def write_partial():
    E(f"  v_cmp_gt_u32 vcc, 16, v{lane}")
    E("  s_nop 1")
    E("  s_and_saveexec_b64 s[70:71], vcc")
    for h in range(4):
        E(f"  ds_write_b128 v{M+11}, v[{8*h}:{8*h+3}] offset:{LP+512*h}")
        E(f"  ds_write_b128 v{M+11}, v[{8*h+4}:{8*h+7}] offset:{LP+512*h+16}")
    E("  s_mov_b64 exec, s[70:71]")
    E("  s_lshl_b32 s67, s60, 5")
    E(f"  v_lshlrev_b32 v{M+11}, 3, v{lane}")
    E(f"  v_add_u32 v{M+11}, s67, v{M+11}")
    E(f"  v_mov_b32 v{M+12}, v{mx}")
    E(f"  v_mov_b32 v{M+13}, v{ls}")
    E(f"  v_cmp_gt_u32 vcc, 4, v{lane}")
    E("  s_nop 1")
    E("  s_and_saveexec_b64 s[70:71], vcc")
    E(f"  ds_write_b64 v{M+11}, v[{M+12}:{M+13}] offset:{LML}")
    E("  s_mov_b64 exec, s[70:71]")
    E("  s_waitcnt lgkmcnt(0)")

def merge_old():
    E("  s_lshl_b32 s67, s60, 5")
    E("  v_mov_b32 v32, s67")
    for h in range(4):
        E(f"  ds_read_b64 v[{34+2*h}:{35+2*h}], v32 offset:{LML+8*h}")
    for h in range(4):
        E(f"  ds_read_b128 v[{64+8*h}:{67+8*h}], v{M+11} offset:{LP+512*h}")
        E(f"  ds_read_b128 v[{68+8*h}:{71+8*h}], v{M+11} offset:{LP+512*h+16}")
    for h in range(4):
        E(f"  v_readlane_b32 s{68+h}, v{mx}, {h}")
        E(f"  v_readlane_b32 s{72+h}, v{ls}, {h}")
    E("  s_waitcnt lgkmcnt(0)")
    for h in range(4):
        mo, lo = 34+2*h, 35+2*h
        E(f"  v_max_f32 v44, s{68+h}, v{mo}")
        E(f"  v_sub_f32 v45, v{mo}, v44")
        E(f"  v_sub_f32 v46, s{68+h}, v44")
        E("  v_exp_f32 v45, v45")
        E("  v_exp_f32 v46, v46")
        E("  s_nop 0")
        E(f"  v_mul_f32 v{lo}, v{lo}, v45")
        E(f"  v_fma_f32 v{lo}, v46, s{72+h}, v{lo}")
        E(f"  v_mov_b32 v{mo}, v44")
        for j in range(8):
            E(f"  v_mul_f32 v{8*h+j}, v{8*h+j}, v46")
            E(f"  v_fmac_f32 v{8*h+j}, v{64+8*h+j}, v45")
    for h in range(4):
        E(f"  v_readfirstlane_b32 s{68+h}, v{34+2*h}")
        E(f"  v_readfirstlane_b32 s{72+h}, v{35+2*h}")
    E("  s_nop 3")
    for h in range(4):
        E(f"  v_writelane_b32 v{mx}, s{68+h}, {h}")
        E(f"  v_writelane_b32 v{ls}, s{72+h}, {h}")

def claim():
    E(f"  v_mov_b32 v{M+14}, 1")
    E(f"  v_mov_b32 v{M+15}, 0")
    E("  s_mov_b64 exec, 1")
    E(f"  buffer_atomic_add v{M+14}, v{M+15}, {S(SW)}, s76 offen sc0 sc1")
    E("  s_mov_b64 exec, -1")

def wo_slot(dst):
    E(f"  s_and_b32 s{dst}, s62, 3")
    E(f"  s_mul_i32 s{dst}, s{dst}, {NT}")
    E("  s_lshl_b32 s68, s61, 3")
    E(f"  s_add_u32 s{dst}, s{dst}, s68")
    E("  s_lshr_b32 s68, s62, 2")
    E(f"  s_add_u32 s{dst}, s{dst}, s68")
def ffn_slot(dst):
    E(f"  s_and_b32 s{dst}, s2, 3")
    E(f"  s_mul_i32 s{dst}, s{dst}, {NT}")
    E("  s_lshr_b32 s68, s2, 2")
    E(f"  s_add_u32 s{dst}, s{dst}, s68")
    E(f"  s_add_u32 s{dst}, s{dst}, 64")

def kernel():
    name = NAME + "_kernel"
    E(f".globl {name}\n.p2align 8\n.type {name},@function\n{name}:")
    E("  s_cmp_ge_u32 s2, 256")
    E("  s_cbranch_scc1 L_end")
    E("  s_load_dwordx16 s[4:19], s[0:1], 0")
    E("  s_load_dwordx8 s[20:27], s[0:1], 64")
    E("  s_load_dwordx2 s[28:29], s[0:1], 96")
    if DIAG:
        for i in range(18): E(f"  s_mov_b32 s{84+i}, 0")
        E("  s_memrealtime s[84:85]")
    if os.environ.get("XABS"): E("  s_memrealtime s[98:99]")
    E(f"  v_mov_b32 v{tid}, v0")
    E(f"  v_and_b32 v{lane}, 63, v0")
    E(f"  v_lshrrev_b32 v{M+4}, 6, v0")
    E(f"  v_lshrrev_b32 v{g}, 4, v{lane}")
    E(f"  v_readfirstlane_b32 s60, v{M+4}")
    E(f"  v_and_b32 v{n}, 15, v{lane}")
    E("  s_mov_b32 s83, 0")
    E(f"  s_mov_b32 s{SELLO}, 0x05040100")
    E(f"  s_mov_b32 s{SELHI}, 0x07060302")
    E(f"  s_mov_b32 s82, {cbits:#x}")
    E("  s_lshr_b32 s61, s2, 3")
    E("  s_and_b32 s61, s61, 7")
    E("  s_lshr_b32 s63, s2, 6")
    E("  s_and_b32 s64, s2, 7")
    E("  s_lshl_b32 s62, s63, 3")
    E("  s_add_u32 s62, s62, s64")
    E("  s_lshl_b32 s65, s63, 3")
    E("  s_add_u32 s65, s65, s61")
    E("  s_lshl_b32 s66, s65, 21")
    E("  s_lshl_b32 s67, s64, 18")
    E("  s_add_u32 s66, s66, s67")
    E("  s_lshl_b32 s67, s60, 15")
    E("  s_add_u32 s66, s66, s67")
    E("  s_lshl_b32 s77, s60, 14")
    E(f"  s_add_u32 s77, s77, {VST}")
    E("  s_lshl_b32 s76, s65, 7")
    E(f"  s_add_u32 s76, s76, {CNT:#x}")
    E(f"  v_lshlrev_b32 v{vk}, 8, v{n}")
    E(f"  v_lshl_add_u32 v{vk}, v{g}, 4, v{vk}")
    E(f"  v_lshlrev_b32 v{vv}, 10, v{g}")
    E(f"  v_lshl_add_u32 v{vv}, v{n}, 4, v{vv}")
    E(f"  v_mov_b32 v{M+8}, 0")
    E(f"  v_mov_b32 v{M+9}, {LFLAG}")
    E(f"  ds_write_b32 v{M+9}, v{M+8}")
    E(f"  ds_write_b32 v{M+9}, v{M+8} offset:16")
    E("  s_waitcnt lgkmcnt(0)")
    E("  s_barrier")
    srd(SK, 6, 0x4000000); srd(SV, 8, 0x4000000); srd(SW, 28, WS_BYTES)
    srd(SD, 26, 256); srd(SX, 4, 4096); srd(SO, 24, 4096)
    E("  s_cmp_eq_u32 s60, 0")
    E("  s_cbranch_scc1 L_stage1")
    E("  s_lshl_b32 s67, s2, 3")
    E("  s_add_u32 s67, s67, s60")
    E("  s_cmp_lg_u32 s67, 1")
    E("  s_cbranch_scc1 L_nopub")
    E("  s_memrealtime s[78:79]")
    E("  s_waitcnt lgkmcnt(0)")
    E("  s_or_b32 s78, s78, 1")
    E("  s_or_b32 s79, s79, 0x80000000")
    E("  v_mov_b32 v8, s78")
    E("  v_mov_b32 v9, s79")
    E("  v_mov_b32 v10, 0")
    E("  s_mov_b64 exec, 1")
    E(f"  buffer_store_dwordx2 v[8:9], v10, {S(SD)}, 0 offen sc1")
    E("  s_mov_b64 exec, -1")
    E("L_nopub:")
    lds_wait("fwait", LFLAG, 1, M+8)
    q = Q()
    for t in range(8): kload(q, t)
    vload(q, 0, VR); vload(q, 1, VR+32)
    vload_lds(q, 2); vload_lds(q, 3)
    E(f"  s_waitcnt vmcnt({PT})")
    E(f"  v_mov_b32 v{M+9}, {LPROG}")
    E(f"  v_mov_b32 v{M+8}, 1")
    E("  s_mov_b64 exec, 1")
    E(f"  ds_add_u32 v{M+9}, v{M+8}")
    E("  s_mov_b64 exec, -1")
    lds_wait("qwait", LFLAG, 2, M+8)
    stamp(1)
    def prefetch():
        stamp(3)
        E(f"  s_cmp_eq_u32 s60, {W_WO}")
        E("  s_cbranch_scc1 L_pf_wo")
        E(f"  s_cmp_eq_u32 s60, {W_FFN}")
        E("  s_cbranch_scc0 L_pf_done")
        E("  s_cmp_ge_u32 s2, 112")
        E("  s_cbranch_scc1 L_pf_done")
        srd(ST, 20, 0x1c0000)
        E("  s_lshr_b32 s68, s2, 2")
        E("  s_lshl_b32 s68, s68, 16")
        E("  s_and_b32 s69, s2, 3")
        E("  s_branch L_pf_go")
        E("L_pf_wo:")
        srd(ST, 12, 0x400000)
        E("  s_lshl_b32 s68, s61, 3")
        E("  s_lshr_b32 s69, s62, 2")
        E("  s_add_u32 s68, s68, s69")
        E("  s_lshl_b32 s68, s68, 16")
        E("  s_and_b32 s69, s62, 3")
        E("L_pf_go:")
        E("  s_lshl_b32 s69, s69, 8")
        E("  s_add_u32 s68, s68, s69")
        E(f"  v_lshlrev_b32 v{M+11}, 13, v{g}")
        E(f"  v_lshl_add_u32 v{M+11}, v{n}, 4, v{M+11}")
        for blk in range(2):
            for half in range(2):
                E(f"  s_add_u32 s69, s68, {blk*32768+half*4096}")
                for k4 in range(4):
                    r = VR + 32*blk + 4*(half*4+k4)
                    E(f"  buffer_load_dwordx4 v[{r}:{r+3}], v{M+11}, {S(ST)}, s69 offen offset:{1024*k4} {S1F}")
        E("L_pf_done:")
    body(q, 8, [VR, VR+32, KR, KR+32], pre_pv3=prefetch)
    write_partial()
    E(f"  s_cmp_lt_u32 s60, {NCL}")
    E("  s_cbranch_scc1 L_pool")
    E("L_w0done:")
    E(f"  s_cmp_eq_u32 s60, {W_ALL}")
    E("  s_cbranch_scc0 L_noall")
    E(f"  v_mov_b32 v0, {LNONCE}")
    E("  ds_read_b64 v[2:3], v0")
    E(f"  v_lshlrev_b32 v1, 7, v{lane}")
    E(f"  s_mov_b32 s68, {FL:#x}")
    E("  s_waitcnt lgkmcnt(0)")
    E("L_pollA:")
    for i in range(4):
        if i: E(f"  s_add_u32 s69, s68, {8192*i}")
        E(f"  buffer_load_dwordx2 v[{8+2*i}:{9+2*i}], v1, {S(SW)}, {'s69' if i else 's68'} offen sc1")
    E("  s_waitcnt vmcnt(0)")
    E("  v_xor_b32 v4, v8, v2")
    E("  v_xor_b32 v5, v9, v3")
    E("  v_or_b32 v4, v4, v5")
    for i in range(1, 4):
        E(f"  v_xor_b32 v5, v{8+2*i}, v2")
        E("  v_or_b32 v4, v4, v5")
        E(f"  v_xor_b32 v5, v{9+2*i}, v3")
        E("  v_or_b32 v4, v4, v5")
    E("  v_cmp_ne_u32 vcc, 0, v4")
    E("  s_nop 1")
    E("  s_cmp_eq_u64 vcc, 0")
    E("  s_cbranch_scc1 L_noall")
    spin_guard("L_noall")
    E("  s_sleep 4")
    E("  s_branch L_pollA")
    E("L_noall:")
    E("  s_barrier")
    E(f"  s_sub_u32 s67, s60, {W_CMB}")
    E("  s_cmp_ge_u32 s67, 2")
    E("  s_cbranch_scc1 L_nocomb")
    E(f"  v_subrev_u32 v1, {64*W_CMB}, v{tid}")
    E("  v_lshrrev_b32 v0, 5, v1")
    E("  v_lshlrev_b32 v2, 3, v0")
    E("  v_lshlrev_b32 v3, 4, v1")
    for w in range(8):
        E(f"  ds_read_b64 v[{8+2*w}:{9+2*w}], v2 offset:{LML+32*w}")
    for w in range(8):
        E(f"  ds_read_b128 v[{24+4*w}:{27+4*w}], v3 offset:{LP+2048*w}")
    E("  s_waitcnt lgkmcnt(8)")
    E("  v_max3_f32 v4, v8, v10, v12")
    E("  v_max3_f32 v4, v4, v14, v16")
    E("  v_max3_f32 v4, v4, v18, v20")
    E("  v_max_f32 v4, v4, v22")
    for w in range(8): E(f"  v_sub_f32 v{8+2*w}, v{8+2*w}, v4")
    for w in range(8): E(f"  v_exp_f32 v{8+2*w}, v{8+2*w}")
    E("  s_waitcnt lgkmcnt(0)")
    E("  v_mul_f32 v5, v8, v9")
    for e in range(4): E(f"  v_mul_f32 v{60+e}, v8, v{24+e}")
    for w in range(1, 8):
        E(f"  v_fmac_f32 v5, v{8+2*w}, v{9+2*w}")
        for e in range(4): E(f"  v_fmac_f32 v{60+e}, v{8+2*w}, v{24+4*w+e}")
    E("  v_min_u32 v4, 0xfffffffe, v4")
    E("  v_min_u32 v5, 0xfffffffe, v5")
    for e in range(4): E(f"  v_min_u32 v{60+e}, 0xfffffffe, v{60+e}")
    E("  s_lshl_b32 s67, s65, 5")
    E("  s_add_u32 s67, s67, s64")
    E("  s_lshl_b32 s68, s67, 9")
    E(f"  s_add_u32 s68, s68, {AO:#x}")
    E("  v_and_b32 v1, 31, v1")
    E("  v_lshlrev_b32 v7, 12, v0")
    E("  v_lshl_add_u32 v7, v1, 4, v7")
    E(f"  buffer_store_dwordx4 v[60:63], v7, {S(SW)}, s68 offen sc1")
    E("  s_lshl_b32 s68, s67, 3")
    E(f"  s_add_u32 s68, s68, {AML:#x}")
    E("  v_lshlrev_b32 v7, 6, v0")
    E("  v_cmp_eq_u32 vcc, 0, v1")
    E("  s_nop 1")
    E("  s_and_saveexec_b64 s[70:71], vcc")
    E(f"  buffer_store_dwordx2 v[4:5], v7, {S(SW)}, s68 offen sc1")
    E("  s_mov_b64 exec, s[70:71]")
    E("L_nocomb:")
    stamp(4)
    E(f"  s_cmp_eq_u32 s60, {W_WO}")
    E("  s_cbranch_scc1 L_tail_wo")
    E(f"  s_cmp_eq_u32 s60, {W_FIN}")
    E("  s_cbranch_scc1 L_tail_fin")
    E(f"  s_cmp_eq_u32 s60, {W_FFN}")
    E("  s_cbranch_scc0 L_exit")
    E("  s_cmp_ge_u32 s2, 112")
    E("  s_cbranch_scc1 L_exit")
    E(f"  v_and_b32 v0, 3, v{n}")
    E(f"  v_lshrrev_b32 v1, 2, v{n}")
    E("  v_lshl_add_u32 v2, v1, 2, v0")
    E("  s_movk_i32 s67, 30720")
    E("  v_mul_lo_u32 v2, v2, s67")
    E(f"  v_lshl_add_u32 v2, v{g}, 5, v2")
    E("  s_lshr_b32 s68, s2, 2")
    E("  s_lshl_b32 s69, s68, 8")
    E("  s_add_u32 s69, s69, 16384")
    E("  s_add_u32 s72, s69, 7168")
    for blk in range(2):
        E(f"  buffer_load_dwordx4 v[{8+8*blk}:{11+8*blk}], v2, {S(SW)}, s69 offen offset:{128*blk}")
        E(f"  buffer_load_dwordx4 v[{12+8*blk}:{15+8*blk}], v2, {S(SW)}, s69 offen offset:{128*blk+16}")
        E(f"  buffer_load_dwordx4 v[{24+8*blk}:{27+8*blk}], v2, {S(SW)}, s72 offen offset:{128*blk}")
        E(f"  buffer_load_dwordx4 v[{28+8*blk}:{31+8*blk}], v2, {S(SW)}, s72 offen offset:{128*blk+16}")
    E("  v_lshlrev_b32 v3, 2, v0")
    E(f"  s_mov_b32 s73, {GOFF:#x}")
    E(f"  buffer_load_dword v4, v3, {S(SW)}, s73 offen")
    E("  s_waitcnt vmcnt(0)")
    for r in (4, 8):
        for i in range(32):
            E(f"  v_add_f32_dpp v{8+i}, v{8+i}, v{8+i} row_ror:{r} row_mask:0xf bank_mask:0xf")
    E("  v_sub_f32 v4, 1.0, v4")
    for i in range(16): E(f"  v_mul_f32 v{8+i}, 0xbfb8aa3b, v{8+i}")
    for i in range(16): E(f"  v_exp_f32 v{8+i}, v{8+i}")
    for i in range(16): E(f"  v_mul_f32 v{24+i}, v{24+i}, v4")
    for i in range(16): E(f"  v_add_f32 v{8+i}, 1.0, v{8+i}")
    for i in range(16): E(f"  v_rcp_f32 v{8+i}, v{8+i}")
    E("  s_nop 0")
    for i in range(16): E(f"  v_mul_f32 v{8+i}, v{8+i}, v{24+i}")
    for i in range(8): E(f"  v_cvt_pk_bf16_f32 v{40+i}, v{8+2*i}, v{9+2*i}")
    ffn_slot(69)
    E("  s_branch L_tail_mm")
    E("L_tail_wo:")
    E(f"  v_and_b32 v0, 3, v{n}")
    E(f"  v_lshrrev_b32 v1, 2, v{n}")
    E("  s_lshr_b32 s68, s62, 3")
    E("  s_lshl_b32 s69, s61, 2")
    E("  s_add_u32 s69, s69, s68")
    E("  v_lshlrev_b32 v2, 17, v0")
    E("  v_lshl_add_u32 v2, v1, 10, v2")
    E(f"  v_lshl_add_u32 v2, v{g}, 5, v2")
    E("  s_lshl_b32 s72, s69, 12")
    E("  s_lshr_b32 s73, s62, 2")
    E("  s_and_b32 s73, s73, 1")
    E("  s_lshl_b32 s73, s73, 8")
    E("  s_add_u32 s72, s72, s73")
    E(f"  s_add_u32 s72, s72, {AO:#x}")
    E("  v_lshlrev_b32 v3, 11, v0")
    E("  v_lshl_add_u32 v5, v1, 4, v3")
    E("  s_lshl_b32 s73, s69, 6")
    E(f"  s_add_u32 s73, s73, {AML:#x}")
    E("  v_lshlrev_b32 v6, 2, v0")
    E(f"  s_mov_b32 s74, {GOFF:#x}")
    E(f"  buffer_load_dword v4, v6, {S(SW)}, s74 offen")
    E("  s_mov_b64 exec, 0xffff")
    E("L_poll1a:")
    E(f"  buffer_load_dwordx4 v[56:59], v5, {S(SW)}, s73 offen sc1")
    E("  s_waitcnt vmcnt(0)")
    E("  v_max3_u32 v7, v56, v57, v58")
    E("  v_max_u32 v7, v7, v59")
    E("  v_cmp_eq_u32 vcc, -1, v7")
    E("  s_nop 1")
    E("  s_cmp_eq_u64 vcc, 0")
    E("  s_cbranch_scc1 L_poll1a_done")
    spin_guard("L_poll1a_done")
    E(f"  s_sleep {SLP}")
    E("  s_branch L_poll1a")
    E("L_poll1a_done:")
    E("  s_mov_b64 exec, -1")
    E("L_poll1:")
    for s_ in range(2):
        for blk in range(2):
            r = 8 + 16*s_ + 8*blk
            E(f"  buffer_load_dwordx4 v[{r}:{r+3}], v2, {S(SW)}, s72 offen offset:{512*s_+128*blk} sc1")
            E(f"  buffer_load_dwordx4 v[{r+4}:{r+7}], v2, {S(SW)}, s72 offen offset:{512*s_+128*blk+16} sc1")
    for i in range(4):
        E(f"  buffer_load_dwordx4 v[{40+4*i}:{43+4*i}], v3, {S(SW)}, s73 offen offset:{16*i} sc1")
    E(f"  buffer_load_dwordx4 v[56:59], v5, {S(SW)}, s73 offen sc1")
    E("  s_waitcnt vmcnt(0)")
    E("  v_max3_u32 v7, v8, v9, v10")
    i = 11
    while i < 60:
        if i + 1 < 60:
            E(f"  v_max3_u32 v7, v7, v{i}, v{i+1}"); i += 2
        else:
            E(f"  v_max_u32 v7, v7, v{i}"); i += 1
    E("  v_cmp_eq_u32 vcc, -1, v7")
    E("  s_nop 1")
    E("  s_cmp_eq_u64 vcc, 0")
    E("  s_cbranch_scc1 L_poll1_done")
    spin_guard("L_poll1_done")
    E(f"  s_sleep {SLP}")
    E("  s_branch L_poll1")
    E("L_poll1_done:")
    stamp(5)
    E("  v_max3_f32 v7, v40, v42, v44")
    E("  v_max3_f32 v7, v7, v46, v48")
    E("  v_max3_f32 v7, v7, v50, v52")
    E("  v_max_f32 v7, v7, v54")
    for s_ in range(8): E(f"  v_sub_f32 v{40+2*s_}, v{40+2*s_}, v7")
    E("  v_sub_f32 v56, v56, v7")
    E("  v_sub_f32 v58, v58, v7")
    for s_ in range(8): E(f"  v_exp_f32 v{40+2*s_}, v{40+2*s_}")
    E("  v_exp_f32 v56, v56")
    E("  v_exp_f32 v58, v58")
    E("  v_mul_f32 v7, v40, v41")
    for s_ in range(1, 8): E(f"  v_fmac_f32 v7, v{40+2*s_}, v{41+2*s_}")
    E("  v_rcp_f32 v7, v7")
    E("  s_nop 0")
    E("  v_mul_f32 v7, v7, v4")
    E("  v_mul_f32 v56, v56, v7")
    E("  v_mul_f32 v58, v58, v7")
    for i in range(16): E(f"  v_mul_f32 v{8+i}, v{8+i}, v56")
    for i in range(16): E(f"  v_fmac_f32 v{8+i}, v{24+i}, v58")
    for r in (4, 8):
        for i in range(16):
            E(f"  v_add_f32_dpp v{8+i}, v{8+i}, v{8+i} row_ror:{r} row_mask:0xf bank_mask:0xf")
    for i in range(8): E(f"  v_cvt_pk_bf16_f32 v{40+i}, v{8+2*i}, v{9+2*i}")
    wo_slot(69)
    E("L_tail_mm:")
    E("  s_waitcnt vmcnt(0)")
    gemv_block(VR, 40, 96, SR, first=True)
    gemv_block(VR+32, 44, 96, SR, first=False)
    E("  s_lshl_b32 s69, s69, 11")
    E(f"  s_add_u32 s69, s69, {L2:#x}")
    E(f"  v_lshlrev_b32 v2, 7, v{n}")
    E(f"  v_cmp_gt_u32 vcc, 16, v{lane}")
    E("  s_nop 4")
    for i in range(32): E(f"  v_min_u32 v{SR+i}, 0xfffffffe, v{SR+i}")
    E("  s_and_saveexec_b64 s[70:71], vcc")
    for j in range(8):
        E(f"  buffer_store_dwordx4 v[{SR+4*j}:{SR+3+4*j}], v2, {S(SW)}, s69 offen offset:{16*j} sc1")
    E("  s_mov_b64 exec, s[70:71]")
    E(f"  s_cmp_eq_u32 s60, {W_WO}")
    E("  s_cbranch_scc0 L_noflag3")
    E(f"  v_mov_b32 v2, {LFLAG}")
    E("  v_mov_b32 v3, 3")
    E("  ds_write_b32 v2, v3")
    E("L_noflag3:")
    stamp(6)
    E("  s_branch L_exit")
    E("L_tail_fin:")
    E(f"  v_lshrrev_b32 v0, 1, v{lane}")
    E(f"  v_and_b32 v1, 1, v{lane}")
    E("  s_lshr_b32 s68, s2, 6")
    E(f"  s_mul_i32 s68, s68, {NT*2048}")
    E("  s_and_b32 s69, s2, 63")
    E("  s_lshl_b32 s69, s69, 5")
    E("  s_add_u32 s68, s68, s69")
    E(f"  s_add_u32 s68, s68, {L2:#x}")
    E("  v_lshlrev_b32 v2, 11, v0")
    E("  v_lshl_add_u32 v2, v1, 4, v2")
    E("  s_add_u32 s69, s68, 65536")
    E("  v_cmp_gt_u32 vcc, 28, v0")
    E("  v_add_u32 v3, 0x20000, v2")
    E("  s_nop 0")
    E("  v_cndmask_b32 v3, v2, v3, vcc")
    lds_wait("finwait", LFLAG, 3, 20)
    E("L_poll2:")
    E(f"  buffer_load_dwordx4 v[8:11], v2, {S(SW)}, s68 offen sc1")
    E(f"  buffer_load_dwordx4 v[12:15], v2, {S(SW)}, s69 offen sc1")
    E(f"  buffer_load_dwordx4 v[16:19], v3, {S(SW)}, s68 offen sc1")
    E("  s_waitcnt vmcnt(0)")
    E("  v_max3_u32 v7, v8, v9, v10")
    E("  v_max3_u32 v7, v7, v11, v12")
    E("  v_max3_u32 v7, v7, v13, v14")
    E("  v_max3_u32 v7, v7, v15, v16")
    E("  v_max3_u32 v7, v7, v17, v18")
    E("  v_max_u32 v7, v7, v19")
    E("  v_cmp_eq_u32 vcc, -1, v7")
    E("  s_nop 1")
    E("  s_cmp_eq_u64 vcc, 0")
    E("  s_cbranch_scc1 L_poll2_done")
    spin_guard("L_poll2_done")
    E(f"  s_sleep {SLP}")
    E("  s_branch L_poll2")
    E("L_poll2_done:")
    stamp(7)
    if os.environ.get("XABS"):
        E(f"  s_add_u32 s72, s98, {int(os.environ['XABS'])}")
        E("L_xa:")
        E("  s_memrealtime s[70:71]")
        E("  s_waitcnt lgkmcnt(0)")
        E("  s_sub_u32 s73, s70, s72")
        E("  s_cmp_lt_i32 s73, 0")
        E("  s_cbranch_scc1 L_xa")
    if os.environ.get("XDELAY"):
        E("  s_memrealtime s[70:71]")
        E("  s_waitcnt lgkmcnt(0)")
        E(f"  s_add_u32 s72, s70, {int(os.environ['XDELAY'])}")
        E("L_xd:")
        E("  s_memrealtime s[70:71]")
        E("  s_waitcnt lgkmcnt(0)")
        E("  s_sub_u32 s73, s70, s72")
        E("  s_cmp_lt_i32 s73, 0")
        E("  s_cbranch_scc1 L_xd")
    E("  v_cmp_gt_u32 vcc, 28, v0")
    E("  s_nop 1")
    for i in range(4): E(f"  v_cndmask_b32 v{16+i}, 0, v{16+i}, vcc")
    for i in range(4): E(f"  v_add_f32 v{8+i}, v{8+i}, v{12+i}")
    for i in range(4): E(f"  v_add_f32 v{8+i}, v{8+i}, v{16+i}")
    for r in (2, 4, 8):
        E("  s_nop 1")
        for i in range(4):
            E(f"  v_add_f32_dpp v{8+i}, v{8+i}, v{8+i} row_ror:{r} row_mask:0xf bank_mask:0xf")
    for op in ("v_permlane16_swap_b32", "v_permlane32_swap_b32"):
        for i in range(4): E(f"  v_mov_b32 v{12+i}, v{8+i}")
        E("  s_nop 1")
        for i in range(4): E(f"  {op} v{8+i}, v{12+i}")
        for i in range(4): E(f"  v_add_f32 v{8+i}, v{8+i}, v{12+i}")
    E("  s_nop 1")
    for i in range(4):
        E(f"  v_mov_b32_dpp v{12+i}, v{8+i} quad_perm:[1,0,3,2] row_mask:0xf bank_mask:0xf")
    for i in range(4): E(f"  v_cvt_pk_bf16_f32 v{8+i}, v{8+i}, v{12+i}")
    E("  s_lshl_b32 s68, s2, 2")
    E("  v_mov_b32 v2, 0")
    E("  s_mov_b64 exec, 1")
    for i in range(4):
        E(f"  buffer_store_dword v{8+i}, v2, {S(SO)}, s68 offen offset:{1024*i}")
    E("  s_mov_b64 exec, -1")
    E("L_exit:")
    if DIAG == 9:
        E(f"  s_cmp_eq_u32 s60, {W_FIN}")
        E("  s_cbranch_scc0 L_end")
        E("  s_and_b32 s68, s2, 63")
        E("  s_cmp_lg_u32 s68, 0")
        E("  s_cbranch_scc1 L_end")
        E("  s_waitcnt lgkmcnt(0)")
        E("  s_lshr_b32 s68, s2, 6")
        E("  s_mul_i32 s68, s68, 12")
        E("  v_mov_b32 v2, 0")
        E("  s_mov_b64 exec, 1")
        E("  v_mov_b32 v8, s84")
        E("  v_mov_b32 v9, s92")
        E("  v_mov_b32 v10, s98")
        E(f"  buffer_store_dwordx3 v[8:10], v2, {S(SD)}, s68 offen offset:16")
    elif DIAG:
        E("  s_memrealtime s[100:101]")
        E("  s_waitcnt lgkmcnt(0)")
        E("  s_lshl_b32 s68, s2, 3")
        E("  s_add_u32 s68, s68, s60")
        E("  s_lshl_b32 s68, s68, 6")
        E(f"  s_add_u32 s68, s68, {DIAGOFF:#x}")
        for i in range(9): E(f"  v_mov_b32 v{8+i}, s{84+2*i}")
        E("  v_mov_b32 v2, 0")
        E("  s_mov_b64 exec, 1")
        E(f"  buffer_store_dwordx4 v[8:11], v2, {S(SW)}, s68 offen")
        E(f"  buffer_store_dwordx4 v[12:15], v2, {S(SW)}, s68 offen offset:16")
        E(f"  buffer_store_dword v16, v2, {S(SW)}, s68 offen offset:32")
    E("L_end:")
    E("  s_endpgm")

    E("L_pool:")
    lds_wait("pwait", LPROG, 7, M+8)
    claim()
    E("  s_waitcnt vmcnt(0)")
    E("L_claimed:")
    E(f"  v_readfirstlane_b32 s67, v{M+14}")
    E("  s_cmp_ge_u32 s67, 16")
    E("  s_cbranch_scc1 L_w0done")
    stamp(2)
    E("  s_lshl_b32 s66, s65, 21")
    E("  s_lshr_b32 s68, s67, 1")
    E("  s_lshl_b32 s68, s68, 18")
    E("  s_add_u32 s66, s66, s68")
    E("  s_and_b32 s68, s67, 1")
    E("  s_lshl_b32 s68, s68, 14")
    E("  s_add_u32 s66, s66, s68")
    q = Q()
    for t in range(4): kload(q, t)
    vload(q, 0, VR); vload(q, 1, VR+32)
    body(q, 4, [VR, VR+32], post_s=claim)
    E("  s_waitcnt vmcnt(0)")
    merge_old()
    write_partial()
    E("  s_branch L_claimed")

    E("L_stage1:")
    E("  s_setprio 3")
    E("  s_cmp_ge_u32 s62, 30")
    E("  s_cbranch_scc1 L_s1_clr")
    E("  s_cmp_ge_u32 s62, 16")
    E("  s_cbranch_scc1 L_s1_ffn")
    srd(ST, 10, 0x400000)
    E("  s_movk_i32 s72, 8192")
    E("  s_lshl_b32 s68, s61, 2")
    E("  s_lshr_b32 s69, s62, 2")
    E("  s_add_u32 s68, s68, s69")
    E("  s_and_b32 s73, s62, 3")
    E("  s_lshl_b32 s74, s68, 8")
    E("  s_lshl_b32 s75, s68, 9")
    E("  s_branch L_s1_go")
    E("L_s1_ffn:")
    E("  s_mul_i32 s68, s61, 14")
    E("  s_add_u32 s68, s68, s62")
    E("  s_sub_u32 s68, s68, 16")
    E("  s_and_b32 s73, s68, 3")
    E("  s_lshr_b32 s68, s68, 2")
    E("  s_movk_i32 s72, 3584")
    E("  s_lshl_b32 s75, s68, 9")
    E("  s_add_u32 s75, s75, 16384")
    E("  s_cmp_ge_u32 s68, 14")
    E(f"  s_cselect_b32 s{ST}, s18, s16")
    E(f"  s_cselect_b32 s{ST+1}, s19, s17")
    E("  s_cselect_b32 s69, 14, 0")
    E(f"  s_and_b32 s{ST+1}, s{ST+1}, 0xffff")
    E(f"  s_mov_b32 s{ST+2}, 0x1c0000")
    E(f"  s_mov_b32 s{ST+3}, 0x00020000")
    E("  s_sub_u32 s68, s68, s69")
    E("  s_lshl_b32 s74, s68, 8")
    E("L_s1_go:")
    E("  s_lshl_b32 s68, s73, 7")
    E(f"  v_lshlrev_b32 v164, 3, v{g}")
    E("  v_add_u32 v164, s68, v164")
    E(f"  v_and_b32 v165, 3, v{n}")
    E("  v_lshlrev_b32 v165, 10, v165")
    E("  v_lshl_add_u32 v165, v164, 1, v165")
    E("  v_mul_lo_u32 v166, v164, s72")
    E(f"  v_lshl_add_u32 v166, v{n}, 4, v166")
    E("  v_add_u32 v166, s74, v166")
    E("  s_mov_b32 s69, 0")
    E("  s_mul_i32 s67, s72, 24")
    for blk in range(4):
        E(f"  buffer_load_dwordx4 v[{128+4*blk}:{131+4*blk}], v165, {S(SX)}, 0 offen offset:{64*blk}")
        for kk in range(8):
            r = 32*blk + 4*kk
            E(f"  buffer_load_dwordx4 v[{r}:{r+3}], v166, {S(ST)}, s69 offen {S1F}")
            E("  s_add_u32 s69, s69, s72")
        if blk < 3: E("  s_add_u32 s69, s69, s67")
    E("L_s1_clr:")
    E(f"  v_mov_b32 v170, {LFLAG}")
    E("  v_mov_b32 v171, 1")
    E("  ds_write_b32 v170, v171")
    for i in range(4): E(f"  v_mov_b32 v{160+i}, -1")
    E("  s_lshl_b32 s67, s65, 5")
    E("  s_add_u32 s67, s67, s64")
    E("  s_lshl_b32 s68, s67, 9")
    E(f"  s_add_u32 s68, s68, {AO:#x}")
    E(f"  v_lshlrev_b32 v172, 12, v{g}")
    E(f"  v_lshl_add_u32 v172, v{n}, 5, v172")
    E(f"  buffer_store_dwordx4 v[160:163], v172, {S(SW)}, s68 offen sc1")
    E(f"  buffer_store_dwordx4 v[160:163], v172, {S(SW)}, s68 offen offset:16 sc1")
    E("  s_lshl_b32 s68, s67, 3")
    E(f"  s_add_u32 s68, s68, {AML:#x}")
    E(f"  v_lshlrev_b32 v172, 6, v{g}")
    E("  s_mov_b32 exec_lo, 0x00010001")
    E("  s_mov_b32 exec_hi, 0x00010001")
    E(f"  buffer_store_dwordx2 v[160:161], v172, {S(SW)}, s68 offen sc1")
    E("  s_mov_b64 exec, -1")
    wo_slot(69)
    E("  s_lshl_b32 s69, s69, 11")
    E(f"  s_add_u32 s69, s69, {L2:#x}")
    E(f"  v_lshlrev_b32 v172, 5, v{lane}")
    E(f"  buffer_store_dwordx4 v[160:163], v172, {S(SW)}, s69 offen sc1")
    E(f"  buffer_store_dwordx4 v[160:163], v172, {S(SW)}, s69 offen offset:16 sc1")
    NCLR = 5
    E("  s_cmp_ge_u32 s2, 112")
    E("  s_cbranch_scc1 L_s1_noffnclr")
    ffn_slot(69)
    E("  s_lshl_b32 s69, s69, 11")
    E(f"  s_add_u32 s69, s69, {L2:#x}")
    E(f"  buffer_store_dwordx4 v[160:163], v172, {S(SW)}, s69 offen sc1")
    E(f"  buffer_store_dwordx4 v[160:163], v172, {S(SW)}, s69 offen offset:16 sc1")
    E("L_s1_noffnclr:")
    E("  s_cmp_ge_u32 s62, 4")
    E("  s_cbranch_scc1 L_s1_nocnt")
    E("  s_lshl_b32 s68, s62, 3")
    E("  s_add_u32 s68, s68, s61")
    E("  s_lshl_b32 s68, s68, 7")
    E(f"  s_add_u32 s68, s68, {CNT:#x}")
    E("  v_mov_b32 v172, 0")
    E("  s_mov_b64 exec, 1")
    E(f"  buffer_store_dword v172, v172, {S(SW)}, s68 offen sc1")
    E("  s_mov_b64 exec, -1")
    E("L_s1_nocnt:")
    E("  v_mov_b32 v172, 0")
    E("  s_mov_b64 exec, 1")
    E(f"  buffer_load_dwordx2 v[168:169], v172, {S(SD)}, 0 offen sc1")
    E("  s_mov_b64 exec, -1")
    E("  s_cmp_ge_u32 s62, 30")
    E("  s_cbranch_scc1 L_s1_gate")
    for blk in range(4):
        E(f"  s_waitcnt vmcnt({9*(3-blk)+6})")
        gemv_block(32*blk, 128+4*blk, 144, 192, first=(blk == 0))
    stamp(1, 2)
    E("  s_nop 7")
    for b in range(4):
        for j in range(8):
            E(f"  v_mov_b32 v{8*b+j}, v{192+4*j+b}")
    E("  s_mul_i32 s68, s73, 122880")
    E("  s_add_u32 s68, s68, s75")
    E(f"  v_lshlrev_b32 v164, 5, v{n}")
    E("  s_mov_b64 exec, 0xffff")
    for b in range(4):
        E(f"  buffer_store_dwordx4 v[{8*b}:{8*b+3}], v164, {S(SW)}, s68 offen sc1")
        E(f"  buffer_store_dwordx4 v[{8*b+4}:{8*b+7}], v164, {S(SW)}, s68 offen offset:16 sc1")
        if b < 3: E("  s_add_u32 s68, s68, 30720")
    E("  s_mov_b64 exec, -1")
    E("  s_branch L_s1_signal")
    E("L_s1_gate:")
    E("  s_cmp_lg_u32 s2, 198")
    E("  s_cbranch_scc1 L_s1_signal")
    srd(ST, 22, 1024)
    E(f"  v_lshlrev_b32 v164, 4, v{lane}")
    E(f"  buffer_load_dwordx4 v[16:19], v164, {S(ST)}, 0 offen")
    for b in range(4):
        E(f"  buffer_load_dwordx4 v[{4*b}:{4*b+3}], v164, {S(SX)}, 0 offen offset:{1024*b}")
    E("  s_waitcnt vmcnt(0)")
    for b in range(4): E(f"  v_mov_b32 v{24+b}, 0")
    for c in range(4):
        E(f"  v_lshlrev_b32 v20, 16, v{16+c}")
        E(f"  v_and_b32 v21, 0xffff0000, v{16+c}")
        for b in range(4):
            E(f"  v_lshlrev_b32 v22, 16, v{4*b+c}")
            E(f"  v_and_b32 v23, 0xffff0000, v{4*b+c}")
            E(f"  v_fmac_f32 v{24+b}, v20, v22")
            E(f"  v_fmac_f32 v{24+b}, v21, v23")
    for r in (8, 4, 2, 1):
        E("  s_nop 1")
        for b in range(4):
            E(f"  v_add_f32_dpp v{24+b}, v{24+b}, v{24+b} row_ror:{r} row_mask:0xf bank_mask:0xf")
    for op in ("v_permlane16_swap_b32", "v_permlane32_swap_b32"):
        for i in range(4): E(f"  v_mov_b32 v{28+i}, v{24+i}")
        E("  s_nop 1")
        for i in range(4): E(f"  {op} v{24+i}, v{28+i}")
        for i in range(4): E(f"  v_add_f32 v{24+i}, v{24+i}, v{28+i}")
    for i in range(4): E(f"  v_mul_f32 v{24+i}, 0xbfb8aa3b, v{24+i}")
    for i in range(4): E(f"  v_exp_f32 v{24+i}, v{24+i}")
    E("  s_nop 0")
    for i in range(4): E(f"  v_add_f32 v{24+i}, 1.0, v{24+i}")
    for i in range(4): E(f"  v_rcp_f32 v{24+i}, v{24+i}")
    E(f"  s_mov_b32 s68, {GOFF:#x}")
    E("  v_mov_b32 v164, 0")
    E("  s_mov_b64 exec, 1")
    E(f"  buffer_store_dwordx4 v[24:27], v164, {S(SW)}, s68 offen sc1")
    E("  s_mov_b64 exec, -1")
    E("L_s1_signal:")
    E("  s_waitcnt vmcnt(0)")
    stamp(2, 2)
    E("  v_mov_b32 v164, 0")
    E("  s_mov_b64 exec, 1")
    E("L_pollN:")
    E("  v_readfirstlane_b32 s78, v168")
    E("  v_readfirstlane_b32 s79, v169")
    E("  s_and_b32 s68, s78, 1")
    E("  s_lshr_b32 s69, s79, 31")
    E("  s_and_b32 s68, s68, s69")
    E("  s_cmp_eq_u32 s68, 1")
    E("  s_cbranch_scc1 L_pollN_done")
    spin_guard("L_pollN_done")
    E(f"  buffer_load_dwordx2 v[168:169], v164, {S(SD)}, 0 offen sc1")
    E("  s_waitcnt vmcnt(0)")
    E("  s_branch L_pollN")
    E("L_pollN_done:")
    E("  s_lshl_b32 s68, s2, 7")
    E(f"  s_add_u32 s68, s68, {FL:#x}")
    E(f"  buffer_store_dwordx2 v[168:169], v164, {S(SW)}, s68 offen sc1")
    E("  s_mov_b64 exec, -1")
    E(f"  v_lshrrev_b32 v164, 3, v{lane}")
    E("  v_lshlrev_b32 v164, 6, v164")
    E(f"  v_and_b32 v165, 7, v{lane}")
    E("  v_add_u32 v164, v164, v165")
    E("  v_lshlrev_b32 v164, 7, v164")
    E("  s_lshl_b32 s68, s61, 10")
    E(f"  s_add_u32 s68, s68, {FL:#x}")
    E("  s_mov_b64 exec, 0xffff")
    E("L_poll0:")
    E(f"  buffer_load_dwordx2 v[166:167], v164, {S(SW)}, s68 offen sc1")
    E("  s_waitcnt vmcnt(0)")
    E("  v_cmp_ne_u32 vcc, s78, v166")
    E("  v_cmp_ne_u32 s[72:73], s79, v167")
    E("  s_nop 1")
    E("  s_or_b64 vcc, vcc, s[72:73]")
    E("  s_cmp_eq_u64 vcc, 0")
    E("  s_cbranch_scc1 L_poll0_done")
    spin_guard("L_poll0_done")
    E("  s_sleep 1")
    E("  s_branch L_poll0")
    E("L_poll0_done:")
    E("  s_mov_b64 exec, -1")
    stamp(3, 2)
    E("  s_mul_i32 s68, s63, 30720")
    E("  s_lshl_b32 s69, s61, 11")
    E("  s_add_u32 s68, s68, s69")
    E(f"  v_lshlrev_b32 v164, 5, v{lane}")
    for kq in range(4):
        E(f"  buffer_load_dwordx4 v[{8*kq}:{8*kq+3}], v164, {S(SW)}, s68 offen")
        E(f"  buffer_load_dwordx4 v[{8*kq+4}:{8*kq+7}], v164, {S(SW)}, s68 offen offset:16")
        if kq < 3: E("  s_add_u32 s68, s68, 122880")
    E("  s_waitcnt vmcnt(0)")
    stamp(4, 2)
    for i in range(8):
        E(f"  v_add_f32 v{i}, v{i}, v{8+i}")
        E(f"  v_add_f32 v{16+i}, v{16+i}, v{24+i}")
    for i in range(8): E(f"  v_add_f32 v{i}, v{i}, v{16+i}")
    for i in range(4): E(f"  v_cvt_pk_bf16_f32 v{32+i}, v{2*i}, v{2*i+1}")
    E(f"  v_lshlrev_b32 v164, 4, v{lane}")
    E(f"  ds_write_b128 v164, v[32:35] offset:{LQ}")
    E(f"  v_mov_b32 v164, {LNONCE}")
    E("  v_mov_b32 v166, s78")
    E("  v_mov_b32 v167, s79")
    E("  ds_write_b64 v164, v[166:167]")
    E("  s_waitcnt lgkmcnt(0)")
    E(f"  v_mov_b32 v164, {LFLAG}")
    E("  v_mov_b32 v165, 2")
    E("  ds_write_b32 v164, v165")
    E("  s_setprio 0")
    for i in range(4): E(f"  v_mov_b32 v{i}, 0")
    E(f"  v_lshlrev_b32 v164, 5, v{lane}")
    E(f"  ds_write_b128 v164, v[0:3] offset:{LP}")
    E(f"  ds_write_b128 v164, v[0:3] offset:{LP+16}")
    E("  v_mov_b32 v0, 0xf149f2ca")
    E(f"  v_and_b32 v164, 3, v{lane}")
    E("  v_lshlrev_b32 v164, 3, v164")
    E(f"  ds_write_b64 v164, v[0:1] offset:{LML}")
    E("  s_branch L_pool")

    E(f""".section .rodata,"a"
.p2align 6
.amdhsa_kernel {name}
  .amdhsa_next_free_vgpr 256
  .amdhsa_next_free_sgpr 102
  .amdhsa_accum_offset 256
  .amdhsa_group_segment_fixed_size 0
  .amdhsa_kernarg_size 104
  .amdhsa_user_sgpr_count 2
  .amdhsa_user_sgpr_kernarg_segment_ptr 1
  .amdhsa_system_sgpr_workgroup_id_x 1
.end_amdhsa_kernel""")

E(HEADER.rstrip())
E(f"; @launch grid=(256,1,1) block=(512,1,1) lds={LDS_BYTES}")
E('.amdgcn_target "amdgcn-amd-amdhsa--gfx950"')
E(".text")
kernel()
open(sys.argv[1], "w").write("\n".join(out) + "\n")
```

```python
import sys, os, math, struct
NAME = "gated_mix__gqa_block_cached__glu_gated_glu__decode"
KVF = os.environ.get("KVF", "nt")
S1F = os.environ.get("S1F", "nt")
DIAG = int(os.environ.get("DIAG", "0"))
PT = int(os.environ.get("PT", "16"))
SLP = int(os.environ.get("SLP", "2"))
NCL = int(os.environ.get("NCL", "2"))
out = []
def E(s=""): out.append(s)

P1 = 0x0
GOFF = 0x80000
AO = 0x100000
AML = 0x180000
L2 = 0x200000
FL = 0x300000
CNT = 0x310000
DIAGOFF = 0x400000
WS_BYTES = 0x10000000
NT = 92
LQ, LP, LML, LFLAG, LNONCE, LPROG, VST = 0, 1024, 17408, 17664, 17672, 17680, 18432
LDS_BYTES = VST + 8 * 16384
W_WO, W_FFN, W_FIN, W_CMB, W_ALL = 5, 6, 7, 2, 3

HEADER = open("cdna_kernels/" + NAME + ".s.ref").read().split("; Override launch")[0]

def srd(d, b, nbytes):
    E(f"  s_mov_b32 s{d}, s{b}")
    E(f"  s_and_b32 s{d+1}, s{b+1}, 0xffff")
    E(f"  s_mov_b32 s{d+2}, {nbytes:#x}")
    E(f"  s_mov_b32 s{d+3}, 0x00020000")

SELLO, SELHI = 80, 81
def gemv_block(W, A, T, ACC, first=True):
    def perms(j):
        c = j >> 1
        sel = SELHI if (j & 1) else SELLO
        t = T + 4 * (j & 1)
        for i in range(4):
            E(f"  v_perm_b32 v{t+i}, v{W+4*(2*i+1)+c}, v{W+4*(2*i)+c}, s{sel}")
    def mfma(j):
        t = T + 4 * (j & 1)
        a = ACC + 4 * j
        c = "0" if first else f"v[{a}:{a+3}]"
        E(f"  v_mfma_f32_16x16x32_bf16 v[{a}:{a+3}], v[{A}:{A+3}], v[{t}:{t+3}], {c}")
    perms(0)
    for j in range(8):
        if j + 1 < 8: perms(j + 1)
        else: E("  s_nop 1")
        mfma(j)

def stamp(i, lvl=1):
    if (1 if DIAG == 9 else DIAG) != lvl: return
    E(f"  s_memrealtime s[{84+2*i}:{85+2*i}]")

def spin_guard(label, lim="0x40000"):
    E("  s_add_u32 s83, s83, 1")
    E(f"  s_cmp_gt_u32 s83, {lim}")
    E(f"  s_cbranch_scc1 {label}")

def lds_wait(name, off, val, vtmp):
    E(f"  v_mov_b32 v{vtmp}, {off}")
    E(f"L_{name}:")
    E(f"  ds_read_b32 v{vtmp+1}, v{vtmp}")
    E("  s_waitcnt lgkmcnt(0)")
    E(f"  v_readfirstlane_b32 s67, v{vtmp+1}")
    E(f"  s_cmp_ge_u32 s67, {val}")
    E(f"  s_cbranch_scc1 L_{name}_done")
    spin_guard(f"L_{name}_done", "0x400000")
    E("  s_sleep 1")
    E(f"  s_branch L_{name}")
    E(f"L_{name}_done:")

KR, VR, SR, QR, M = 0, 128, 192, 224, 240
tid, lane, g, n = M, M+1, M+2, M+3
vk, vv = M+6, M+7
mx, t1, ls = M+8, M+9, M+10
SK, SV, SW, SD, ST, SX, SO = 32, 36, 40, 44, 48, 52, 56
def S(x): return f"s[{x}:{x+3}]"
cbits = struct.unpack("<I", struct.pack("<f", (128 ** -0.5) * math.log2(math.e)))[0]

class Q:
    def __init__(s): s.q = []
    def ld(s, nm): s.q.append(nm)
    def wait(s, nm):
        idx = max(i for i, x in enumerate(s.q) if x == nm)
        E(f"  s_waitcnt vmcnt({len(s.q)-1-idx})")
        del s.q[:idx+1]

def kload(q, t):
    E(f"  s_add_u32 s67, s66, {t*4096}")
    for j in range(4):
        r = KR + 16*t + 4*j
        E(f"  buffer_load_dwordx4 v[{r}:{r+3}], v{vk}, {S(SK)}, s67 offen offset:{64*j} {KVF}")
        q.ld(f"k{t}")
def vload(q, t, base):
    for half in range(2):
        E(f"  s_add_u32 s67, s66, {t*8192+half*4096}")
        for k4 in range(4):
            r = base + 4*(half*4+k4)
            E(f"  buffer_load_dwordx4 v[{r}:{r+3}], v{vv}, {S(SV)}, s67 offen offset:{256*k4} {KVF}")
            q.ld(f"v{t}")
def vload_lds(q, t):
    for half in range(2):
        E(f"  s_add_u32 s67, s66, {t*8192+half*4096}")
        for k4 in range(4):
            i = (t-2)*8 + half*4 + k4
            E(f"  s_add_u32 m0, s77, {i*1024 - 256*k4}")
            E("  s_nop 0")
            E(f"  buffer_load_dwordx4 v{vv}, {S(SV)}, s67 offen offset:{256*k4} {KVF} lds")
            q.ld(f"v{t}")

def body(q, nt, vbase, pre_pv3=None, post_s=None):
    E(f"  v_and_b32 v{M+9}, 3, v{n}")
    E(f"  v_lshlrev_b32 v{M+9}, 8, v{M+9}")
    E(f"  v_lshl_add_u32 v{M+9}, v{g}, 4, v{M+9}")
    for j in range(4):
        E(f"  ds_read_b128 v[{QR+4*j}:{QR+4*j+3}], v{M+9} offset:{LQ+64*j}")
    E("  s_waitcnt lgkmcnt(0)")
    for t in range(nt):
        q.wait(f"k{t}")
        s = SR + 4*t
        for j in range(4):
            r = KR + 16*t + 4*j
            c = "0" if j == 0 else f"v[{s}:{s+3}]"
            E(f"  v_mfma_f32_16x16x32_bf16 v[{s}:{s+3}], v[{r}:{r+3}], v[{QR+4*j}:{QR+4*j+3}], {c}")
    if post_s: post_s()
    E("  s_nop 7")
    ns = 4*nt
    E(f"  v_max3_f32 v{mx}, v{SR}, v{SR+1}, v{SR+2}")
    i = 3
    while i < ns:
        if i + 1 < ns:
            E(f"  v_max3_f32 v{mx}, v{mx}, v{SR+i}, v{SR+i+1}"); i += 2
        else:
            E(f"  v_max_f32 v{mx}, v{mx}, v{SR+i}"); i += 1
    for op in ("v_permlane16_swap_b32", "v_permlane32_swap_b32"):
        E(f"  v_mov_b32 v{t1}, v{mx}")
        E("  s_nop 1")
        E(f"  {op} v{mx}, v{t1}")
        E(f"  v_max_f32 v{mx}, v{mx}, v{t1}")
    E(f"  v_mul_f32 v{mx}, s82, v{mx}")
    for i in range(ns): E(f"  v_fma_f32 v{SR+i}, v{SR+i}, s82, -v{mx}")
    for i in range(ns): E(f"  v_exp_f32 v{SR+i}, v{SR+i}")
    E("  s_nop 0")
    E(f"  v_add_f32 v{ls}, v{SR}, v{SR+1}")
    for i in range(2, ns): E(f"  v_add_f32 v{ls}, v{ls}, v{SR+i}")
    for t in range(nt//2):
        for h in range(4):
            a = SR + 8*t + 2*h
            E(f"  v_cvt_pk_bf16_f32 v{QR+4*t+h}, v{a}, v{a+1}")
    for op in ("v_permlane16_swap_b32", "v_permlane32_swap_b32"):
        E(f"  v_mov_b32 v{t1}, v{ls}")
        E("  s_nop 1")
        E(f"  {op} v{ls}, v{t1}")
        E(f"  v_add_f32 v{ls}, v{ls}, v{t1}")
    ACC = SR; T = KR + 96
    for t in range(nt//2):
        q.wait(f"v{t}")
        if t >= 2:
            if t == 2:
                E(f"  v_lshlrev_b32 v{M+11}, 4, v{lane}")
                E(f"  v_add_u32 v{M+11}, s77, v{M+11}")
            for i in range(8):
                r = vbase[t] + 4*i
                E(f"  ds_read_b128 v[{r}:{r+3}], v{M+11} offset:{((t-2)*8+i)*1024}")
            E("  s_waitcnt lgkmcnt(0)")
        if t == 3 and pre_pv3: pre_pv3()
        gemv_block(vbase[t], QR+4*t, T, ACC, first=(t == 0))
    E("  s_lshl_b32 s67, s60, 11")
    E(f"  v_lshlrev_b32 v{M+11}, 5, v{n}")
    E(f"  v_add_u32 v{M+11}, s67, v{M+11}")
    E("  s_nop 5")
    for h in range(4):
        for j in range(8):
            E(f"  v_mov_b32 v{8*h+j}, v{ACC+4*j+h}")

def write_partial():
    E(f"  v_cmp_gt_u32 vcc, 16, v{lane}")
    E("  s_nop 1")
    E("  s_and_saveexec_b64 s[70:71], vcc")
    for h in range(4):
        E(f"  ds_write_b128 v{M+11}, v[{8*h}:{8*h+3}] offset:{LP+512*h}")
        E(f"  ds_write_b128 v{M+11}, v[{8*h+4}:{8*h+7}] offset:{LP+512*h+16}")
    E("  s_mov_b64 exec, s[70:71]")
    E("  s_lshl_b32 s67, s60, 5")
    E(f"  v_lshlrev_b32 v{M+11}, 3, v{lane}")
    E(f"  v_add_u32 v{M+11}, s67, v{M+11}")
    E(f"  v_mov_b32 v{M+12}, v{mx}")
    E(f"  v_mov_b32 v{M+13}, v{ls}")
    E(f"  v_cmp_gt_u32 vcc, 4, v{lane}")
    E("  s_nop 1")
    E("  s_and_saveexec_b64 s[70:71], vcc")
    E(f"  ds_write_b64 v{M+11}, v[{M+12}:{M+13}] offset:{LML}")
    E("  s_mov_b64 exec, s[70:71]")
    E("  s_waitcnt lgkmcnt(0)")

def merge_old():
    E("  s_lshl_b32 s67, s60, 5")
    E("  v_mov_b32 v32, s67")
    for h in range(4):
        E(f"  ds_read_b64 v[{34+2*h}:{35+2*h}], v32 offset:{LML+8*h}")
    for h in range(4):
        E(f"  ds_read_b128 v[{64+8*h}:{67+8*h}], v{M+11} offset:{LP+512*h}")
        E(f"  ds_read_b128 v[{68+8*h}:{71+8*h}], v{M+11} offset:{LP+512*h+16}")
    for h in range(4):
        E(f"  v_readlane_b32 s{68+h}, v{mx}, {h}")
        E(f"  v_readlane_b32 s{72+h}, v{ls}, {h}")
    E("  s_waitcnt lgkmcnt(0)")
    for h in range(4):
        mo, lo = 34+2*h, 35+2*h
        E(f"  v_max_f32 v44, s{68+h}, v{mo}")
        E(f"  v_sub_f32 v45, v{mo}, v44")
        E(f"  v_sub_f32 v46, s{68+h}, v44")
        E("  v_exp_f32 v45, v45")
        E("  v_exp_f32 v46, v46")
        E("  s_nop 0")
        E(f"  v_mul_f32 v{lo}, v{lo}, v45")
        E(f"  v_fma_f32 v{lo}, v46, s{72+h}, v{lo}")
        E(f"  v_mov_b32 v{mo}, v44")
        for j in range(8):
            E(f"  v_mul_f32 v{8*h+j}, v{8*h+j}, v46")
            E(f"  v_fmac_f32 v{8*h+j}, v{64+8*h+j}, v45")
    for h in range(4):
        E(f"  v_readfirstlane_b32 s{68+h}, v{34+2*h}")
        E(f"  v_readfirstlane_b32 s{72+h}, v{35+2*h}")
    E("  s_nop 3")
    for h in range(4):
        E(f"  v_writelane_b32 v{mx}, s{68+h}, {h}")
        E(f"  v_writelane_b32 v{ls}, s{72+h}, {h}")

def claim():
    E(f"  v_mov_b32 v{M+14}, 1")
    E(f"  v_mov_b32 v{M+15}, 0")
    E("  s_mov_b64 exec, 1")
    E(f"  buffer_atomic_add v{M+14}, v{M+15}, {S(SW)}, s76 offen sc0 sc1")
    E("  s_mov_b64 exec, -1")

def wo_slot(dst):
    E(f"  s_and_b32 s{dst}, s62, 3")
    E(f"  s_mul_i32 s{dst}, s{dst}, {NT}")
    E("  s_lshl_b32 s68, s61, 3")
    E(f"  s_add_u32 s{dst}, s{dst}, s68")
    E("  s_lshr_b32 s68, s62, 2")
    E(f"  s_add_u32 s{dst}, s{dst}, s68")
def ffn_slot(dst):
    E(f"  s_and_b32 s{dst}, s2, 3")
    E(f"  s_mul_i32 s{dst}, s{dst}, {NT}")
    E("  s_lshr_b32 s68, s2, 2")
    E(f"  s_add_u32 s{dst}, s{dst}, s68")
    E(f"  s_add_u32 s{dst}, s{dst}, 64")

def kernel():
    name = NAME + "_kernel"
    E(f".globl {name}\n.p2align 8\n.type {name},@function\n{name}:")
    E("  s_cmp_ge_u32 s2, 256")
    E("  s_cbranch_scc1 L_end")
    E("  s_load_dwordx16 s[4:19], s[0:1], 0")
    E("  s_load_dwordx8 s[20:27], s[0:1], 64")
    E("  s_load_dwordx2 s[28:29], s[0:1], 96")
    if DIAG:
        for i in range(18): E(f"  s_mov_b32 s{84+i}, 0")
        E("  s_memrealtime s[84:85]")
    if os.environ.get("XABS"): E("  s_memrealtime s[98:99]")
    E(f"  v_mov_b32 v{tid}, v0")
    E(f"  v_and_b32 v{lane}, 63, v0")
    E(f"  v_lshrrev_b32 v{M+4}, 6, v0")
    E(f"  v_lshrrev_b32 v{g}, 4, v{lane}")
    E(f"  v_readfirstlane_b32 s60, v{M+4}")
    E(f"  v_and_b32 v{n}, 15, v{lane}")
    E("  s_mov_b32 s83, 0")
    E(f"  s_mov_b32 s{SELLO}, 0x05040100")
    E(f"  s_mov_b32 s{SELHI}, 0x07060302")
    E(f"  s_mov_b32 s82, {cbits:#x}")
    E("  s_lshr_b32 s61, s2, 3")
    E("  s_and_b32 s61, s61, 7")
    E("  s_lshr_b32 s63, s2, 6")
    E("  s_and_b32 s64, s2, 7")
    E("  s_lshl_b32 s62, s63, 3")
    E("  s_add_u32 s62, s62, s64")
    E("  s_lshl_b32 s65, s63, 3")
    E("  s_add_u32 s65, s65, s61")
    E("  s_lshl_b32 s66, s65, 21")
    E("  s_lshl_b32 s67, s64, 18")
    E("  s_add_u32 s66, s66, s67")
    E("  s_lshl_b32 s67, s60, 15")
    E("  s_add_u32 s66, s66, s67")
    E("  s_lshl_b32 s77, s60, 14")
    E(f"  s_add_u32 s77, s77, {VST}")
    E("  s_lshl_b32 s76, s65, 7")
    E(f"  s_add_u32 s76, s76, {CNT:#x}")
    E(f"  v_lshlrev_b32 v{vk}, 8, v{n}")
    E(f"  v_lshl_add_u32 v{vk}, v{g}, 4, v{vk}")
    E(f"  v_lshlrev_b32 v{vv}, 10, v{g}")
    E(f"  v_lshl_add_u32 v{vv}, v{n}, 4, v{vv}")
    E(f"  v_mov_b32 v{M+8}, 0")
    E(f"  v_mov_b32 v{M+9}, {LFLAG}")
    E(f"  ds_write_b32 v{M+9}, v{M+8}")
    E(f"  ds_write_b32 v{M+9}, v{M+8} offset:16")
    E("  s_waitcnt lgkmcnt(0)")
    E("  s_barrier")
    srd(SK, 6, 0x4000000); srd(SV, 8, 0x4000000); srd(SW, 28, WS_BYTES)
    srd(SD, 26, 256); srd(SX, 4, 4096); srd(SO, 24, 4096)
    E("  s_cmp_eq_u32 s60, 0")
    E("  s_cbranch_scc1 L_stage1")
    E("  s_lshl_b32 s67, s2, 3")
    E("  s_add_u32 s67, s67, s60")
    E("  s_cmp_lg_u32 s67, 1")
    E("  s_cbranch_scc1 L_nopub")
    E("  s_memrealtime s[78:79]")
    E("  s_waitcnt lgkmcnt(0)")
    E("  s_or_b32 s78, s78, 1")
    E("  s_or_b32 s79, s79, 0x80000000")
    E("  v_mov_b32 v8, s78")
    E("  v_mov_b32 v9, s79")
    E("  v_mov_b32 v10, 0")
    E("  s_mov_b64 exec, 1")
    E(f"  buffer_store_dwordx2 v[8:9], v10, {S(SD)}, 0 offen sc1")
    E("  s_mov_b64 exec, -1")
    E("L_nopub:")
    lds_wait("fwait", LFLAG, 1, M+8)
    q = Q()
    for t in range(8): kload(q, t)
    vload(q, 0, VR); vload(q, 1, VR+32)
    vload_lds(q, 2); vload_lds(q, 3)
    E(f"  s_waitcnt vmcnt({PT})")
    E(f"  v_mov_b32 v{M+9}, {LPROG}")
    E(f"  v_mov_b32 v{M+8}, 1")
    E("  s_mov_b64 exec, 1")
    E(f"  ds_add_u32 v{M+9}, v{M+8}")
    E("  s_mov_b64 exec, -1")
    lds_wait("qwait", LFLAG, 2, M+8)
    stamp(1)
    def prefetch():
        stamp(3)
        E(f"  s_cmp_eq_u32 s60, {W_WO}")
        E("  s_cbranch_scc1 L_pf_wo")
        E(f"  s_cmp_eq_u32 s60, {W_FFN}")
        E("  s_cbranch_scc0 L_pf_done")
        E("  s_cmp_ge_u32 s2, 112")
        E("  s_cbranch_scc1 L_pf_done")
        srd(ST, 20, 0x1c0000)
        E("  s_lshr_b32 s68, s2, 2")
        E("  s_lshl_b32 s68, s68, 16")
        E("  s_and_b32 s69, s2, 3")
        E("  s_branch L_pf_go")
        E("L_pf_wo:")
        srd(ST, 12, 0x400000)
        E("  s_lshl_b32 s68, s61, 3")
        E("  s_lshr_b32 s69, s62, 2")
        E("  s_add_u32 s68, s68, s69")
        E("  s_lshl_b32 s68, s68, 16")
        E("  s_and_b32 s69, s62, 3")
        E("L_pf_go:")
        E("  s_lshl_b32 s69, s69, 8")
        E("  s_add_u32 s68, s68, s69")
        E(f"  v_lshlrev_b32 v{M+11}, 13, v{g}")
        E(f"  v_lshl_add_u32 v{M+11}, v{n}, 4, v{M+11}")
        for blk in range(2):
            for half in range(2):
                E(f"  s_add_u32 s69, s68, {blk*32768+half*4096}")
                for k4 in range(4):
                    r = VR + 32*blk + 4*(half*4+k4)
                    E(f"  buffer_load_dwordx4 v[{r}:{r+3}], v{M+11}, {S(ST)}, s69 offen offset:{1024*k4} {S1F}")
        E("L_pf_done:")
    body(q, 8, [VR, VR+32, KR, KR+32], pre_pv3=prefetch)
    write_partial()
    E(f"  s_cmp_lt_u32 s60, {NCL}")
    E("  s_cbranch_scc1 L_pool")
    E("L_w0done:")
    E(f"  s_cmp_eq_u32 s60, {W_ALL}")
    E("  s_cbranch_scc0 L_noall")
    E(f"  v_mov_b32 v0, {LNONCE}")
    E("  ds_read_b64 v[2:3], v0")
    E(f"  v_lshlrev_b32 v1, 7, v{lane}")
    E(f"  s_mov_b32 s68, {FL:#x}")
    E("  s_waitcnt lgkmcnt(0)")
    E("L_pollA:")
    for i in range(4):
        if i: E(f"  s_add_u32 s69, s68, {8192*i}")
        E(f"  buffer_load_dwordx2 v[{8+2*i}:{9+2*i}], v1, {S(SW)}, {'s69' if i else 's68'} offen sc1")
    E("  s_waitcnt vmcnt(0)")
    E("  v_xor_b32 v4, v8, v2")
    E("  v_xor_b32 v5, v9, v3")
    E("  v_or_b32 v4, v4, v5")
    for i in range(1, 4):
        E(f"  v_xor_b32 v5, v{8+2*i}, v2")
        E("  v_or_b32 v4, v4, v5")
        E(f"  v_xor_b32 v5, v{9+2*i}, v3")
        E("  v_or_b32 v4, v4, v5")
    E("  v_cmp_ne_u32 vcc, 0, v4")
    E("  s_nop 1")
    E("  s_cmp_eq_u64 vcc, 0")
    E("  s_cbranch_scc1 L_noall")
    spin_guard("L_noall")
    E("  s_sleep 4")
    E("  s_branch L_pollA")
    E("L_noall:")
    E("  s_barrier")
    E(f"  s_sub_u32 s67, s60, {W_CMB}")
    E("  s_cmp_ge_u32 s67, 2")
    E("  s_cbranch_scc1 L_nocomb")
    E(f"  v_subrev_u32 v1, {64*W_CMB}, v{tid}")
    E("  v_lshrrev_b32 v0, 5, v1")
    E("  v_lshlrev_b32 v2, 3, v0")
    E("  v_lshlrev_b32 v3, 4, v1")
    for w in range(8):
        E(f"  ds_read_b64 v[{8+2*w}:{9+2*w}], v2 offset:{LML+32*w}")
    for w in range(8):
        E(f"  ds_read_b128 v[{24+4*w}:{27+4*w}], v3 offset:{LP+2048*w}")
    E("  s_waitcnt lgkmcnt(8)")
    E("  v_max3_f32 v4, v8, v10, v12")
    E("  v_max3_f32 v4, v4, v14, v16")
    E("  v_max3_f32 v4, v4, v18, v20")
    E("  v_max_f32 v4, v4, v22")
    for w in range(8): E(f"  v_sub_f32 v{8+2*w}, v{8+2*w}, v4")
    for w in range(8): E(f"  v_exp_f32 v{8+2*w}, v{8+2*w}")
    E("  s_waitcnt lgkmcnt(0)")
    E("  v_mul_f32 v5, v8, v9")
    for e in range(4): E(f"  v_mul_f32 v{60+e}, v8, v{24+e}")
    for w in range(1, 8):
        E(f"  v_fmac_f32 v5, v{8+2*w}, v{9+2*w}")
        for e in range(4): E(f"  v_fmac_f32 v{60+e}, v{8+2*w}, v{24+4*w+e}")
    E("  v_min_u32 v4, 0xfffffffe, v4")
    E("  v_min_u32 v5, 0xfffffffe, v5")
    for e in range(4): E(f"  v_min_u32 v{60+e}, 0xfffffffe, v{60+e}")
    E("  s_lshl_b32 s67, s65, 5")
    E("  s_add_u32 s67, s67, s64")
    E("  s_lshl_b32 s68, s67, 9")
    E(f"  s_add_u32 s68, s68, {AO:#x}")
    E("  v_and_b32 v1, 31, v1")
    E("  v_lshlrev_b32 v7, 12, v0")
    E("  v_lshl_add_u32 v7, v1, 4, v7")
    E(f"  buffer_store_dwordx4 v[60:63], v7, {S(SW)}, s68 offen sc1")
    E("  s_lshl_b32 s68, s67, 3")
    E(f"  s_add_u32 s68, s68, {AML:#x}")
    E("  v_lshlrev_b32 v7, 6, v0")
    E("  v_cmp_eq_u32 vcc, 0, v1")
    E("  s_nop 1")
    E("  s_and_saveexec_b64 s[70:71], vcc")
    E(f"  buffer_store_dwordx2 v[4:5], v7, {S(SW)}, s68 offen sc1")
    E("  s_mov_b64 exec, s[70:71]")
    E("L_nocomb:")
    stamp(4)
    E(f"  s_cmp_eq_u32 s60, {W_WO}")
    E("  s_cbranch_scc1 L_tail_wo")
    E(f"  s_cmp_eq_u32 s60, {W_FIN}")
    E("  s_cbranch_scc1 L_tail_fin")
    E(f"  s_cmp_eq_u32 s60, {W_FFN}")
    E("  s_cbranch_scc0 L_exit")
    E("  s_cmp_ge_u32 s2, 112")
    E("  s_cbranch_scc1 L_exit")
    E(f"  v_and_b32 v0, 3, v{n}")
    E(f"  v_lshrrev_b32 v1, 2, v{n}")
    E("  v_lshl_add_u32 v2, v1, 2, v0")
    E("  s_movk_i32 s67, 30720")
    E("  v_mul_lo_u32 v2, v2, s67")
    E(f"  v_lshl_add_u32 v2, v{g}, 5, v2")
    E("  s_lshr_b32 s68, s2, 2")
    E("  s_lshl_b32 s69, s68, 8")
    E("  s_add_u32 s69, s69, 16384")
    E("  s_add_u32 s72, s69, 7168")
    for blk in range(2):
        E(f"  buffer_load_dwordx4 v[{8+8*blk}:{11+8*blk}], v2, {S(SW)}, s69 offen offset:{128*blk}")
        E(f"  buffer_load_dwordx4 v[{12+8*blk}:{15+8*blk}], v2, {S(SW)}, s69 offen offset:{128*blk+16}")
        E(f"  buffer_load_dwordx4 v[{24+8*blk}:{27+8*blk}], v2, {S(SW)}, s72 offen offset:{128*blk}")
        E(f"  buffer_load_dwordx4 v[{28+8*blk}:{31+8*blk}], v2, {S(SW)}, s72 offen offset:{128*blk+16}")
    E("  v_lshlrev_b32 v3, 2, v0")
    E(f"  s_mov_b32 s73, {GOFF:#x}")
    E(f"  buffer_load_dword v4, v3, {S(SW)}, s73 offen")
    E("  s_waitcnt vmcnt(0)")
    for r in (4, 8):
        for i in range(32):
            E(f"  v_add_f32_dpp v{8+i}, v{8+i}, v{8+i} row_ror:{r} row_mask:0xf bank_mask:0xf")
    E("  v_sub_f32 v4, 1.0, v4")
    for i in range(16): E(f"  v_mul_f32 v{8+i}, 0xbfb8aa3b, v{8+i}")
    for i in range(16): E(f"  v_exp_f32 v{8+i}, v{8+i}")
    for i in range(16): E(f"  v_mul_f32 v{24+i}, v{24+i}, v4")
    for i in range(16): E(f"  v_add_f32 v{8+i}, 1.0, v{8+i}")
    for i in range(16): E(f"  v_rcp_f32 v{8+i}, v{8+i}")
    E("  s_nop 0")
    for i in range(16): E(f"  v_mul_f32 v{8+i}, v{8+i}, v{24+i}")
    for i in range(8): E(f"  v_cvt_pk_bf16_f32 v{40+i}, v{8+2*i}, v{9+2*i}")
    ffn_slot(69)
    E("  s_branch L_tail_mm")
    E("L_tail_wo:")
    E(f"  v_and_b32 v0, 3, v{n}")
    E(f"  v_lshrrev_b32 v1, 2, v{n}")
    E("  s_lshr_b32 s68, s62, 3")
    E("  s_lshl_b32 s69, s61, 2")
    E("  s_add_u32 s69, s69, s68")
    E("  v_lshlrev_b32 v2, 17, v0")
    E("  v_lshl_add_u32 v2, v1, 10, v2")
    E(f"  v_lshl_add_u32 v2, v{g}, 5, v2")
    E("  s_lshl_b32 s72, s69, 12")
    E("  s_lshr_b32 s73, s62, 2")
    E("  s_and_b32 s73, s73, 1")
    E("  s_lshl_b32 s73, s73, 8")
    E("  s_add_u32 s72, s72, s73")
    E(f"  s_add_u32 s72, s72, {AO:#x}")
    E("  v_lshlrev_b32 v3, 11, v0")
    E("  v_lshl_add_u32 v5, v1, 4, v3")
    E("  s_lshl_b32 s73, s69, 6")
    E(f"  s_add_u32 s73, s73, {AML:#x}")
    E("  v_lshlrev_b32 v6, 2, v0")
    E(f"  s_mov_b32 s74, {GOFF:#x}")
    E(f"  buffer_load_dword v4, v6, {S(SW)}, s74 offen")
    E("  s_mov_b64 exec, 0xffff")
    E("L_poll1a:")
    E(f"  buffer_load_dwordx4 v[56:59], v5, {S(SW)}, s73 offen sc1")
    E("  s_waitcnt vmcnt(0)")
    E("  v_max3_u32 v7, v56, v57, v58")
    E("  v_max_u32 v7, v7, v59")
    E("  v_cmp_eq_u32 vcc, -1, v7")
    E("  s_nop 1")
    E("  s_cmp_eq_u64 vcc, 0")
    E("  s_cbranch_scc1 L_poll1a_done")
    spin_guard("L_poll1a_done")
    E(f"  s_sleep {SLP}")
    E("  s_branch L_poll1a")
    E("L_poll1a_done:")
    E("  s_mov_b64 exec, -1")
    E("L_poll1:")
    for s_ in range(2):
        for blk in range(2):
            r = 8 + 16*s_ + 8*blk
            E(f"  buffer_load_dwordx4 v[{r}:{r+3}], v2, {S(SW)}, s72 offen offset:{512*s_+128*blk} sc1")
            E(f"  buffer_load_dwordx4 v[{r+4}:{r+7}], v2, {S(SW)}, s72 offen offset:{512*s_+128*blk+16} sc1")
    for i in range(4):
        E(f"  buffer_load_dwordx4 v[{40+4*i}:{43+4*i}], v3, {S(SW)}, s73 offen offset:{16*i} sc1")
    E(f"  buffer_load_dwordx4 v[56:59], v5, {S(SW)}, s73 offen sc1")
    E("  s_waitcnt vmcnt(0)")
    E("  v_max3_u32 v7, v8, v9, v10")
    i = 11
    while i < 60:
        if i + 1 < 60:
            E(f"  v_max3_u32 v7, v7, v{i}, v{i+1}"); i += 2
        else:
            E(f"  v_max_u32 v7, v7, v{i}"); i += 1
    E("  v_cmp_eq_u32 vcc, -1, v7")
    E("  s_nop 1")
    E("  s_cmp_eq_u64 vcc, 0")
    E("  s_cbranch_scc1 L_poll1_done")
    spin_guard("L_poll1_done")
    E(f"  s_sleep {SLP}")
    E("  s_branch L_poll1")
    E("L_poll1_done:")
    stamp(5)
    E("  v_max3_f32 v7, v40, v42, v44")
    E("  v_max3_f32 v7, v7, v46, v48")
    E("  v_max3_f32 v7, v7, v50, v52")
    E("  v_max_f32 v7, v7, v54")
    for s_ in range(8): E(f"  v_sub_f32 v{40+2*s_}, v{40+2*s_}, v7")
    E("  v_sub_f32 v56, v56, v7")
    E("  v_sub_f32 v58, v58, v7")
    for s_ in range(8): E(f"  v_exp_f32 v{40+2*s_}, v{40+2*s_}")
    E("  v_exp_f32 v56, v56")
    E("  v_exp_f32 v58, v58")
    E("  v_mul_f32 v7, v40, v41")
    for s_ in range(1, 8): E(f"  v_fmac_f32 v7, v{40+2*s_}, v{41+2*s_}")
    E("  v_rcp_f32 v7, v7")
    E("  s_nop 0")
    E("  v_mul_f32 v7, v7, v4")
    E("  v_mul_f32 v56, v56, v7")
    E("  v_mul_f32 v58, v58, v7")
    for i in range(16): E(f"  v_mul_f32 v{8+i}, v{8+i}, v56")
    for i in range(16): E(f"  v_fmac_f32 v{8+i}, v{24+i}, v58")
    for r in (4, 8):
        for i in range(16):
            E(f"  v_add_f32_dpp v{8+i}, v{8+i}, v{8+i} row_ror:{r} row_mask:0xf bank_mask:0xf")
    for i in range(8): E(f"  v_cvt_pk_bf16_f32 v{40+i}, v{8+2*i}, v{9+2*i}")
    wo_slot(69)
    E("L_tail_mm:")
    E("  s_waitcnt vmcnt(0)")
    gemv_block(VR, 40, 96, SR, first=True)
    gemv_block(VR+32, 44, 96, SR, first=False)
    E("  s_lshl_b32 s69, s69, 11")
    E(f"  s_add_u32 s69, s69, {L2:#x}")
    E(f"  v_lshlrev_b32 v2, 7, v{n}")
    E(f"  v_cmp_gt_u32 vcc, 16, v{lane}")
    E("  s_nop 4")
    for i in range(32): E(f"  v_min_u32 v{SR+i}, 0xfffffffe, v{SR+i}")
    E("  s_and_saveexec_b64 s[70:71], vcc")
    for j in range(8):
        E(f"  buffer_store_dwordx4 v[{SR+4*j}:{SR+3+4*j}], v2, {S(SW)}, s69 offen offset:{16*j} sc1")
    E("  s_mov_b64 exec, s[70:71]")
    E(f"  s_cmp_eq_u32 s60, {W_WO}")
    E("  s_cbranch_scc0 L_noflag3")
    E(f"  v_mov_b32 v2, {LFLAG}")
    E("  v_mov_b32 v3, 3")
    E("  ds_write_b32 v2, v3")
    E("L_noflag3:")
    stamp(6)
    E("  s_branch L_exit")
    E("L_tail_fin:")
    E(f"  v_lshrrev_b32 v0, 1, v{lane}")
    E(f"  v_and_b32 v1, 1, v{lane}")
    E("  s_lshr_b32 s68, s2, 6")
    E(f"  s_mul_i32 s68, s68, {NT*2048}")
    E("  s_and_b32 s69, s2, 63")
    E("  s_lshl_b32 s69, s69, 5")
    E("  s_add_u32 s68, s68, s69")
    E(f"  s_add_u32 s68, s68, {L2:#x}")
    E("  v_lshlrev_b32 v2, 11, v0")
    E("  v_lshl_add_u32 v2, v1, 4, v2")
    E("  s_add_u32 s69, s68, 65536")
    E("  v_cmp_gt_u32 vcc, 28, v0")
    E("  v_add_u32 v3, 0x20000, v2")
    E("  s_nop 0")
    E("  v_cndmask_b32 v3, v2, v3, vcc")
    lds_wait("finwait", LFLAG, 3, 20)
    E("L_poll2:")
    E(f"  buffer_load_dwordx4 v[8:11], v2, {S(SW)}, s68 offen sc1")
    E(f"  buffer_load_dwordx4 v[12:15], v2, {S(SW)}, s69 offen sc1")
    E(f"  buffer_load_dwordx4 v[16:19], v3, {S(SW)}, s68 offen sc1")
    E("  s_waitcnt vmcnt(0)")
    E("  v_max3_u32 v7, v8, v9, v10")
    E("  v_max3_u32 v7, v7, v11, v12")
    E("  v_max3_u32 v7, v7, v13, v14")
    E("  v_max3_u32 v7, v7, v15, v16")
    E("  v_max3_u32 v7, v7, v17, v18")
    E("  v_max_u32 v7, v7, v19")
    E("  v_cmp_eq_u32 vcc, -1, v7")
    E("  s_nop 1")
    E("  s_cmp_eq_u64 vcc, 0")
    E("  s_cbranch_scc1 L_poll2_done")
    spin_guard("L_poll2_done")
    E(f"  s_sleep {SLP}")
    E("  s_branch L_poll2")
    E("L_poll2_done:")
    stamp(7)
    if os.environ.get("XABS"):
        E(f"  s_add_u32 s72, s98, {int(os.environ['XABS'])}")
        E("L_xa:")
        E("  s_memrealtime s[70:71]")
        E("  s_waitcnt lgkmcnt(0)")
        E("  s_sub_u32 s73, s70, s72")
        E("  s_cmp_lt_i32 s73, 0")
        E("  s_cbranch_scc1 L_xa")
    if os.environ.get("XNON"):
        E(f"  v_mov_b32 v20, {LNONCE}")
        E("  ds_read_b32 v21, v20")
        E("  s_waitcnt lgkmcnt(0)")
        E("  v_readfirstlane_b32 s72, v21")
        E(f"  s_add_u32 s72, s72, {int(os.environ['XNON'])}")
        E("L_xn:")
        E("  s_memrealtime s[70:71]")
        E("  s_waitcnt lgkmcnt(0)")
        E("  s_sub_u32 s73, s70, s72")
        E("  s_cmp_lt_i32 s73, 0")
        E("  s_cbranch_scc1 L_xn")
    if os.environ.get("XDELAY"):
        E("  s_memrealtime s[70:71]")
        E("  s_waitcnt lgkmcnt(0)")
        E(f"  s_add_u32 s72, s70, {int(os.environ['XDELAY'])}")
        E("L_xd:")
        E("  s_memrealtime s[70:71]")
        E("  s_waitcnt lgkmcnt(0)")
        E("  s_sub_u32 s73, s70, s72")
        E("  s_cmp_lt_i32 s73, 0")
        E("  s_cbranch_scc1 L_xd")
    E("  v_cmp_gt_u32 vcc, 28, v0")
    E("  s_nop 1")
    for i in range(4): E(f"  v_cndmask_b32 v{16+i}, 0, v{16+i}, vcc")
    for i in range(4): E(f"  v_add_f32 v{8+i}, v{8+i}, v{12+i}")
    for i in range(4): E(f"  v_add_f32 v{8+i}, v{8+i}, v{16+i}")
    for r in (2, 4, 8):
        E("  s_nop 1")
        for i in range(4):
            E(f"  v_add_f32_dpp v{8+i}, v{8+i}, v{8+i} row_ror:{r} row_mask:0xf bank_mask:0xf")
    for op in ("v_permlane16_swap_b32", "v_permlane32_swap_b32"):
        for i in range(4): E(f"  v_mov_b32 v{12+i}, v{8+i}")
        E("  s_nop 1")
        for i in range(4): E(f"  {op} v{8+i}, v{12+i}")
        for i in range(4): E(f"  v_add_f32 v{8+i}, v{8+i}, v{12+i}")
    E("  s_nop 1")
    for i in range(4):
        E(f"  v_mov_b32_dpp v{12+i}, v{8+i} quad_perm:[1,0,3,2] row_mask:0xf bank_mask:0xf")
    for i in range(4): E(f"  v_cvt_pk_bf16_f32 v{8+i}, v{8+i}, v{12+i}")
    E("  s_lshl_b32 s68, s2, 2")
    E("  v_mov_b32 v2, 0")
    E("  s_mov_b64 exec, 1")
    for i in range(4):
        E(f"  buffer_store_dword v{8+i}, v2, {S(SO)}, s68 offen offset:{1024*i}")
    E("  s_mov_b64 exec, -1")
    E("L_exit:")
    if DIAG == 9:
        E(f"  s_cmp_eq_u32 s60, {W_FIN}")
        E("  s_cbranch_scc0 L_end")
        E("  s_and_b32 s68, s2, 63")
        E("  s_cmp_lg_u32 s68, 0")
        E("  s_cbranch_scc1 L_end")
        E("  s_waitcnt lgkmcnt(0)")
        E("  s_lshr_b32 s68, s2, 6")
        E("  s_mul_i32 s68, s68, 12")
        E("  v_mov_b32 v2, 0")
        E("  s_mov_b64 exec, 1")
        E("  v_mov_b32 v8, s84")
        E("  v_mov_b32 v9, s92")
        E("  v_mov_b32 v10, s98")
        E(f"  buffer_store_dwordx3 v[8:10], v2, {S(SD)}, s68 offen offset:16")
    elif DIAG:
        E("  s_memrealtime s[100:101]")
        E("  s_waitcnt lgkmcnt(0)")
        E("  s_lshl_b32 s68, s2, 3")
        E("  s_add_u32 s68, s68, s60")
        E("  s_lshl_b32 s68, s68, 6")
        E(f"  s_add_u32 s68, s68, {DIAGOFF:#x}")
        for i in range(9): E(f"  v_mov_b32 v{8+i}, s{84+2*i}")
        E("  v_mov_b32 v2, 0")
        E("  s_mov_b64 exec, 1")
        E(f"  buffer_store_dwordx4 v[8:11], v2, {S(SW)}, s68 offen")
        E(f"  buffer_store_dwordx4 v[12:15], v2, {S(SW)}, s68 offen offset:16")
        E(f"  buffer_store_dword v16, v2, {S(SW)}, s68 offen offset:32")
    E("L_end:")
    E("  s_endpgm")

    E("L_pool:")
    lds_wait("pwait", LPROG, 7, M+8)
    claim()
    E("  s_waitcnt vmcnt(0)")
    E("L_claimed:")
    E(f"  v_readfirstlane_b32 s67, v{M+14}")
    E("  s_cmp_ge_u32 s67, 16")
    E("  s_cbranch_scc1 L_w0done")
    stamp(2)
    E("  s_lshl_b32 s66, s65, 21")
    E("  s_lshr_b32 s68, s67, 1")
    E("  s_lshl_b32 s68, s68, 18")
    E("  s_add_u32 s66, s66, s68")
    E("  s_and_b32 s68, s67, 1")
    E("  s_lshl_b32 s68, s68, 14")
    E("  s_add_u32 s66, s66, s68")
    q = Q()
    for t in range(4): kload(q, t)
    vload(q, 0, VR); vload(q, 1, VR+32)
    body(q, 4, [VR, VR+32], post_s=claim)
    E("  s_waitcnt vmcnt(0)")
    merge_old()
    write_partial()
    E("  s_branch L_claimed")

    E("L_stage1:")
    E("  s_setprio 3")
    E("  s_cmp_ge_u32 s62, 30")
    E("  s_cbranch_scc1 L_s1_clr")
    E("  s_cmp_ge_u32 s62, 16")
    E("  s_cbranch_scc1 L_s1_ffn")
    srd(ST, 10, 0x400000)
    E("  s_movk_i32 s72, 8192")
    E("  s_lshl_b32 s68, s61, 2")
    E("  s_lshr_b32 s69, s62, 2")
    E("  s_add_u32 s68, s68, s69")
    E("  s_and_b32 s73, s62, 3")
    E("  s_lshl_b32 s74, s68, 8")
    E("  s_lshl_b32 s75, s68, 9")
    E("  s_branch L_s1_go")
    E("L_s1_ffn:")
    E("  s_mul_i32 s68, s61, 14")
    E("  s_add_u32 s68, s68, s62")
    E("  s_sub_u32 s68, s68, 16")
    E("  s_and_b32 s73, s68, 3")
    E("  s_lshr_b32 s68, s68, 2")
    E("  s_movk_i32 s72, 3584")
    E("  s_lshl_b32 s75, s68, 9")
    E("  s_add_u32 s75, s75, 16384")
    E("  s_cmp_ge_u32 s68, 14")
    E(f"  s_cselect_b32 s{ST}, s18, s16")
    E(f"  s_cselect_b32 s{ST+1}, s19, s17")
    E("  s_cselect_b32 s69, 14, 0")
    E(f"  s_and_b32 s{ST+1}, s{ST+1}, 0xffff")
    E(f"  s_mov_b32 s{ST+2}, 0x1c0000")
    E(f"  s_mov_b32 s{ST+3}, 0x00020000")
    E("  s_sub_u32 s68, s68, s69")
    E("  s_lshl_b32 s74, s68, 8")
    E("L_s1_go:")
    E("  s_lshl_b32 s68, s73, 7")
    E(f"  v_lshlrev_b32 v164, 3, v{g}")
    E("  v_add_u32 v164, s68, v164")
    E(f"  v_and_b32 v165, 3, v{n}")
    E("  v_lshlrev_b32 v165, 10, v165")
    E("  v_lshl_add_u32 v165, v164, 1, v165")
    E("  v_mul_lo_u32 v166, v164, s72")
    E(f"  v_lshl_add_u32 v166, v{n}, 4, v166")
    E("  v_add_u32 v166, s74, v166")
    E("  s_mov_b32 s69, 0")
    E("  s_mul_i32 s67, s72, 24")
    for blk in range(4):
        E(f"  buffer_load_dwordx4 v[{128+4*blk}:{131+4*blk}], v165, {S(SX)}, 0 offen offset:{64*blk}")
        for kk in range(8):
            r = 32*blk + 4*kk
            E(f"  buffer_load_dwordx4 v[{r}:{r+3}], v166, {S(ST)}, s69 offen {S1F}")
            E("  s_add_u32 s69, s69, s72")
        if blk < 3: E("  s_add_u32 s69, s69, s67")
    E("L_s1_clr:")
    E(f"  v_mov_b32 v170, {LFLAG}")
    E("  v_mov_b32 v171, 1")
    E("  ds_write_b32 v170, v171")
    for i in range(4): E(f"  v_mov_b32 v{160+i}, -1")
    E("  s_lshl_b32 s67, s65, 5")
    E("  s_add_u32 s67, s67, s64")
    E("  s_lshl_b32 s68, s67, 9")
    E(f"  s_add_u32 s68, s68, {AO:#x}")
    E(f"  v_lshlrev_b32 v172, 12, v{g}")
    E(f"  v_lshl_add_u32 v172, v{n}, 5, v172")
    E(f"  buffer_store_dwordx4 v[160:163], v172, {S(SW)}, s68 offen sc1")
    E(f"  buffer_store_dwordx4 v[160:163], v172, {S(SW)}, s68 offen offset:16 sc1")
    E("  s_lshl_b32 s68, s67, 3")
    E(f"  s_add_u32 s68, s68, {AML:#x}")
    E(f"  v_lshlrev_b32 v172, 6, v{g}")
    E("  s_mov_b32 exec_lo, 0x00010001")
    E("  s_mov_b32 exec_hi, 0x00010001")
    E(f"  buffer_store_dwordx2 v[160:161], v172, {S(SW)}, s68 offen sc1")
    E("  s_mov_b64 exec, -1")
    wo_slot(69)
    E("  s_lshl_b32 s69, s69, 11")
    E(f"  s_add_u32 s69, s69, {L2:#x}")
    E(f"  v_lshlrev_b32 v172, 5, v{lane}")
    E(f"  buffer_store_dwordx4 v[160:163], v172, {S(SW)}, s69 offen sc1")
    E(f"  buffer_store_dwordx4 v[160:163], v172, {S(SW)}, s69 offen offset:16 sc1")
    NCLR = 5
    E("  s_cmp_ge_u32 s2, 112")
    E("  s_cbranch_scc1 L_s1_noffnclr")
    ffn_slot(69)
    E("  s_lshl_b32 s69, s69, 11")
    E(f"  s_add_u32 s69, s69, {L2:#x}")
    E(f"  buffer_store_dwordx4 v[160:163], v172, {S(SW)}, s69 offen sc1")
    E(f"  buffer_store_dwordx4 v[160:163], v172, {S(SW)}, s69 offen offset:16 sc1")
    E("L_s1_noffnclr:")
    E("  s_cmp_ge_u32 s62, 4")
    E("  s_cbranch_scc1 L_s1_nocnt")
    E("  s_lshl_b32 s68, s62, 3")
    E("  s_add_u32 s68, s68, s61")
    E("  s_lshl_b32 s68, s68, 7")
    E(f"  s_add_u32 s68, s68, {CNT:#x}")
    E("  v_mov_b32 v172, 0")
    E("  s_mov_b64 exec, 1")
    E(f"  buffer_store_dword v172, v172, {S(SW)}, s68 offen sc1")
    E("  s_mov_b64 exec, -1")
    E("L_s1_nocnt:")
    E("  v_mov_b32 v172, 0")
    E("  s_mov_b64 exec, 1")
    E(f"  buffer_load_dwordx2 v[168:169], v172, {S(SD)}, 0 offen sc1")
    E("  s_mov_b64 exec, -1")
    E("  s_cmp_ge_u32 s62, 30")
    E("  s_cbranch_scc1 L_s1_gate")
    for blk in range(4):
        E(f"  s_waitcnt vmcnt({9*(3-blk)+6})")
        gemv_block(32*blk, 128+4*blk, 144, 192, first=(blk == 0))
    stamp(1, 2)
    E("  s_nop 7")
    for b in range(4):
        for j in range(8):
            E(f"  v_mov_b32 v{8*b+j}, v{192+4*j+b}")
    E("  s_mul_i32 s68, s73, 122880")
    E("  s_add_u32 s68, s68, s75")
    E(f"  v_lshlrev_b32 v164, 5, v{n}")
    E("  s_mov_b64 exec, 0xffff")
    for b in range(4):
        E(f"  buffer_store_dwordx4 v[{8*b}:{8*b+3}], v164, {S(SW)}, s68 offen sc1")
        E(f"  buffer_store_dwordx4 v[{8*b+4}:{8*b+7}], v164, {S(SW)}, s68 offen offset:16 sc1")
        if b < 3: E("  s_add_u32 s68, s68, 30720")
    E("  s_mov_b64 exec, -1")
    E("  s_branch L_s1_signal")
    E("L_s1_gate:")
    E("  s_cmp_lg_u32 s2, 198")
    E("  s_cbranch_scc1 L_s1_signal")
    srd(ST, 22, 1024)
    E(f"  v_lshlrev_b32 v164, 4, v{lane}")
    E(f"  buffer_load_dwordx4 v[16:19], v164, {S(ST)}, 0 offen")
    for b in range(4):
        E(f"  buffer_load_dwordx4 v[{4*b}:{4*b+3}], v164, {S(SX)}, 0 offen offset:{1024*b}")
    E("  s_waitcnt vmcnt(0)")
    for b in range(4): E(f"  v_mov_b32 v{24+b}, 0")
    for c in range(4):
        E(f"  v_lshlrev_b32 v20, 16, v{16+c}")
        E(f"  v_and_b32 v21, 0xffff0000, v{16+c}")
        for b in range(4):
            E(f"  v_lshlrev_b32 v22, 16, v{4*b+c}")
            E(f"  v_and_b32 v23, 0xffff0000, v{4*b+c}")
            E(f"  v_fmac_f32 v{24+b}, v20, v22")
            E(f"  v_fmac_f32 v{24+b}, v21, v23")
    for r in (8, 4, 2, 1):
        E("  s_nop 1")
        for b in range(4):
            E(f"  v_add_f32_dpp v{24+b}, v{24+b}, v{24+b} row_ror:{r} row_mask:0xf bank_mask:0xf")
    for op in ("v_permlane16_swap_b32", "v_permlane32_swap_b32"):
        for i in range(4): E(f"  v_mov_b32 v{28+i}, v{24+i}")
        E("  s_nop 1")
        for i in range(4): E(f"  {op} v{24+i}, v{28+i}")
        for i in range(4): E(f"  v_add_f32 v{24+i}, v{24+i}, v{28+i}")
    for i in range(4): E(f"  v_mul_f32 v{24+i}, 0xbfb8aa3b, v{24+i}")
    for i in range(4): E(f"  v_exp_f32 v{24+i}, v{24+i}")
    E("  s_nop 0")
    for i in range(4): E(f"  v_add_f32 v{24+i}, 1.0, v{24+i}")
    for i in range(4): E(f"  v_rcp_f32 v{24+i}, v{24+i}")
    E(f"  s_mov_b32 s68, {GOFF:#x}")
    E("  v_mov_b32 v164, 0")
    E("  s_mov_b64 exec, 1")
    E(f"  buffer_store_dwordx4 v[24:27], v164, {S(SW)}, s68 offen sc1")
    E("  s_mov_b64 exec, -1")
    E("L_s1_signal:")
    E("  s_waitcnt vmcnt(0)")
    stamp(2, 2)
    E("  v_mov_b32 v164, 0")
    E("  s_mov_b64 exec, 1")
    E("L_pollN:")
    E("  v_readfirstlane_b32 s78, v168")
    E("  v_readfirstlane_b32 s79, v169")
    E("  s_and_b32 s68, s78, 1")
    E("  s_lshr_b32 s69, s79, 31")
    E("  s_and_b32 s68, s68, s69")
    E("  s_cmp_eq_u32 s68, 1")
    E("  s_cbranch_scc1 L_pollN_done")
    spin_guard("L_pollN_done")
    E(f"  buffer_load_dwordx2 v[168:169], v164, {S(SD)}, 0 offen sc1")
    E("  s_waitcnt vmcnt(0)")
    E("  s_branch L_pollN")
    E("L_pollN_done:")
    E("  s_lshl_b32 s68, s2, 7")
    E(f"  s_add_u32 s68, s68, {FL:#x}")
    E(f"  buffer_store_dwordx2 v[168:169], v164, {S(SW)}, s68 offen sc1")
    E("  s_mov_b64 exec, -1")
    E(f"  v_lshrrev_b32 v164, 3, v{lane}")
    E("  v_lshlrev_b32 v164, 6, v164")
    E(f"  v_and_b32 v165, 7, v{lane}")
    E("  v_add_u32 v164, v164, v165")
    E("  v_lshlrev_b32 v164, 7, v164")
    E("  s_lshl_b32 s68, s61, 10")
    E(f"  s_add_u32 s68, s68, {FL:#x}")
    E("  s_mov_b64 exec, 0xffff")
    E("L_poll0:")
    E(f"  buffer_load_dwordx2 v[166:167], v164, {S(SW)}, s68 offen sc1")
    E("  s_waitcnt vmcnt(0)")
    E("  v_cmp_ne_u32 vcc, s78, v166")
    E("  v_cmp_ne_u32 s[72:73], s79, v167")
    E("  s_nop 1")
    E("  s_or_b64 vcc, vcc, s[72:73]")
    E("  s_cmp_eq_u64 vcc, 0")
    E("  s_cbranch_scc1 L_poll0_done")
    spin_guard("L_poll0_done")
    E("  s_sleep 1")
    E("  s_branch L_poll0")
    E("L_poll0_done:")
    E("  s_mov_b64 exec, -1")
    stamp(3, 2)
    E("  s_mul_i32 s68, s63, 30720")
    E("  s_lshl_b32 s69, s61, 11")
    E("  s_add_u32 s68, s68, s69")
    E(f"  v_lshlrev_b32 v164, 5, v{lane}")
    for kq in range(4):
        E(f"  buffer_load_dwordx4 v[{8*kq}:{8*kq+3}], v164, {S(SW)}, s68 offen")
        E(f"  buffer_load_dwordx4 v[{8*kq+4}:{8*kq+7}], v164, {S(SW)}, s68 offen offset:16")
        if kq < 3: E("  s_add_u32 s68, s68, 122880")
    E("  s_waitcnt vmcnt(0)")
    stamp(4, 2)
    for i in range(8):
        E(f"  v_add_f32 v{i}, v{i}, v{8+i}")
        E(f"  v_add_f32 v{16+i}, v{16+i}, v{24+i}")
    for i in range(8): E(f"  v_add_f32 v{i}, v{i}, v{16+i}")
    for i in range(4): E(f"  v_cvt_pk_bf16_f32 v{32+i}, v{2*i}, v{2*i+1}")
    E(f"  v_lshlrev_b32 v164, 4, v{lane}")
    E(f"  ds_write_b128 v164, v[32:35] offset:{LQ}")
    E(f"  v_mov_b32 v164, {LNONCE}")
    E("  v_mov_b32 v166, s78")
    E("  v_mov_b32 v167, s79")
    E("  ds_write_b64 v164, v[166:167]")
    E("  s_waitcnt lgkmcnt(0)")
    E(f"  v_mov_b32 v164, {LFLAG}")
    E("  v_mov_b32 v165, 2")
    E("  ds_write_b32 v164, v165")
    E("  s_setprio 0")
    for i in range(4): E(f"  v_mov_b32 v{i}, 0")
    E(f"  v_lshlrev_b32 v164, 5, v{lane}")
    E(f"  ds_write_b128 v164, v[0:3] offset:{LP}")
    E(f"  ds_write_b128 v164, v[0:3] offset:{LP+16}")
    E("  v_mov_b32 v0, 0xf149f2ca")
    E(f"  v_and_b32 v164, 3, v{lane}")
    E("  v_lshlrev_b32 v164, 3, v164")
    E(f"  ds_write_b64 v164, v[0:1] offset:{LML}")
    E("  s_branch L_pool")

    E(f""".section .rodata,"a"
.p2align 6
.amdhsa_kernel {name}
  .amdhsa_next_free_vgpr 256
  .amdhsa_next_free_sgpr 102
  .amdhsa_accum_offset 256
  .amdhsa_group_segment_fixed_size 0
  .amdhsa_kernarg_size 104
  .amdhsa_user_sgpr_count 2
  .amdhsa_user_sgpr_kernarg_segment_ptr 1
  .amdhsa_system_sgpr_workgroup_id_x 1
.end_amdhsa_kernel""")

E(HEADER.rstrip())
E(f"; @launch grid=(256,1,1) block=(512,1,1) lds={LDS_BYTES}")
E('.amdgcn_target "amdgcn-amd-amdhsa--gfx950"')
E(".text")
kernel()
open(sys.argv[1], "w").write("\n".join(out) + "\n")
```

```python
import sys, os, math, struct
NAME = "gated_mix__gqa_block_cached__glu_gated_glu__decode"
KVF = os.environ.get("KVF", "nt")
S1F = os.environ.get("S1F", "nt")
DIAG = int(os.environ.get("DIAG", "0"))
PT = int(os.environ.get("PT", "16"))
SLP = int(os.environ.get("SLP", "2"))
NCL = int(os.environ.get("NCL", "2"))
out = []
def E(s=""): out.append(s)

P1 = 0x0
GOFF = 0x80000
AO = 0x100000
AML = 0x180000
L2 = 0x200000
FL = 0x300000
CNT = 0x310000
DIAGOFF = 0x400000
WS_BYTES = 0x10000000
NT = 92
LQ, LP, LML, LFLAG, LNONCE, LPROG, VST = 0, 1024, 17408, 17664, 17672, 17680, 18432
LDS_BYTES = VST + 8 * 16384
W_WO, W_FFN, W_FIN, W_CMB, W_ALL = 5, 6, 7, 2, 3

HEADER = open("cdna_kernels/" + NAME + ".s.ref").read().split("; Override launch")[0]

def srd(d, b, nbytes):
    E(f"  s_mov_b32 s{d}, s{b}")
    E(f"  s_and_b32 s{d+1}, s{b+1}, 0xffff")
    E(f"  s_mov_b32 s{d+2}, {nbytes:#x}")
    E(f"  s_mov_b32 s{d+3}, 0x00020000")

SELLO, SELHI = 80, 81
def gemv_block(W, A, T, ACC, first=True):
    def perms(j):
        c = j >> 1
        sel = SELHI if (j & 1) else SELLO
        t = T + 4 * (j & 1)
        for i in range(4):
            E(f"  v_perm_b32 v{t+i}, v{W+4*(2*i+1)+c}, v{W+4*(2*i)+c}, s{sel}")
    def mfma(j):
        t = T + 4 * (j & 1)
        a = ACC + 4 * j
        c = "0" if first else f"v[{a}:{a+3}]"
        E(f"  v_mfma_f32_16x16x32_bf16 v[{a}:{a+3}], v[{A}:{A+3}], v[{t}:{t+3}], {c}")
    perms(0)
    for j in range(8):
        if j + 1 < 8: perms(j + 1)
        else: E("  s_nop 1")
        mfma(j)

def perm_all(W, T):
    for j in range(8):
        c = j >> 1
        sel = SELHI if (j & 1) else SELLO
        for i in range(4):
            E(f"  v_perm_b32 v{T+4*j+i}, v{W+4*(2*i+1)+c}, v{W+4*(2*i)+c}, s{sel}")
def mfma_all(T, A, ACC, first):
    for j in range(8):
        a = ACC + 4*j
        c = "0" if first else f"v[{a}:{a+3}]"
        E(f"  v_mfma_f32_16x16x32_bf16 v[{a}:{a+3}], v[{A}:{A+3}], v[{T+4*j}:{T+4*j+3}], {c}")

def stamp(i, lvl=1):
    if (1 if DIAG == 9 else DIAG) != lvl: return
    E(f"  s_memrealtime s[{84+2*i}:{85+2*i}]")

def spin_guard(label, lim="0x40000"):
    E("  s_add_u32 s83, s83, 1")
    E(f"  s_cmp_gt_u32 s83, {lim}")
    E(f"  s_cbranch_scc1 {label}")

def lds_wait(name, off, val, vtmp):
    E(f"  v_mov_b32 v{vtmp}, {off}")
    E(f"L_{name}:")
    E(f"  ds_read_b32 v{vtmp+1}, v{vtmp}")
    E("  s_waitcnt lgkmcnt(0)")
    E(f"  v_readfirstlane_b32 s67, v{vtmp+1}")
    E(f"  s_cmp_ge_u32 s67, {val}")
    E(f"  s_cbranch_scc1 L_{name}_done")
    spin_guard(f"L_{name}_done", "0x400000")
    E("  s_sleep 1")
    E(f"  s_branch L_{name}")
    E(f"L_{name}_done:")

KR, VR, SR, QR, M = 0, 128, 192, 224, 240
tid, lane, g, n = M, M+1, M+2, M+3
vk, vv = M+6, M+7
mx, t1, ls = M+8, M+9, M+10
SK, SV, SW, SD, ST, SX, SO = 32, 36, 40, 44, 48, 52, 56
def S(x): return f"s[{x}:{x+3}]"
cbits = struct.unpack("<I", struct.pack("<f", (128 ** -0.5) * math.log2(math.e)))[0]

class Q:
    def __init__(s): s.q = []
    def ld(s, nm): s.q.append(nm)
    def wait(s, nm):
        idx = max(i for i, x in enumerate(s.q) if x == nm)
        E(f"  s_waitcnt vmcnt({len(s.q)-1-idx})")
        del s.q[:idx+1]

def kload(q, t):
    E(f"  s_add_u32 s67, s66, {t*4096}")
    for j in range(4):
        r = KR + 16*t + 4*j
        E(f"  buffer_load_dwordx4 v[{r}:{r+3}], v{vk}, {S(SK)}, s67 offen offset:{64*j} {KVF}")
        q.ld(f"k{t}")
def vload(q, t, base):
    for half in range(2):
        E(f"  s_add_u32 s67, s66, {t*8192+half*4096}")
        for k4 in range(4):
            r = base + 4*(half*4+k4)
            E(f"  buffer_load_dwordx4 v[{r}:{r+3}], v{vv}, {S(SV)}, s67 offen offset:{256*k4} {KVF}")
            q.ld(f"v{t}")
def vload_lds(q, t):
    for half in range(2):
        E(f"  s_add_u32 s67, s66, {t*8192+half*4096}")
        for k4 in range(4):
            i = (t-2)*8 + half*4 + k4
            E(f"  s_add_u32 m0, s77, {i*1024 - 256*k4}")
            E("  s_nop 0")
            E(f"  buffer_load_dwordx4 v{vv}, {S(SV)}, s67 offen offset:{256*k4} {KVF} lds")
            q.ld(f"v{t}")

def body(q, nt, vbase, pre_pv3=None, post_s=None):
    E(f"  v_and_b32 v{M+9}, 3, v{n}")
    E(f"  v_lshlrev_b32 v{M+9}, 8, v{M+9}")
    E(f"  v_lshl_add_u32 v{M+9}, v{g}, 4, v{M+9}")
    for j in range(4):
        E(f"  ds_read_b128 v[{QR+4*j}:{QR+4*j+3}], v{M+9} offset:{LQ+64*j}")
    E("  s_waitcnt lgkmcnt(0)")
    for t in range(nt):
        q.wait(f"k{t}")
        s = SR + 4*t
        for j in range(4):
            r = KR + 16*t + 4*j
            c = "0" if j == 0 else f"v[{s}:{s+3}]"
            E(f"  v_mfma_f32_16x16x32_bf16 v[{s}:{s+3}], v[{r}:{r+3}], v[{QR+4*j}:{QR+4*j+3}], {c}")
    if post_s: post_s()
    E("  s_nop 7")
    ns = 4*nt
    E(f"  v_max3_f32 v{mx}, v{SR}, v{SR+1}, v{SR+2}")
    i = 3
    while i < ns:
        if i + 1 < ns:
            E(f"  v_max3_f32 v{mx}, v{mx}, v{SR+i}, v{SR+i+1}"); i += 2
        else:
            E(f"  v_max_f32 v{mx}, v{mx}, v{SR+i}"); i += 1
    for op in ("v_permlane16_swap_b32", "v_permlane32_swap_b32"):
        E(f"  v_mov_b32 v{t1}, v{mx}")
        E("  s_nop 1")
        E(f"  {op} v{mx}, v{t1}")
        E(f"  v_max_f32 v{mx}, v{mx}, v{t1}")
    E(f"  v_mul_f32 v{mx}, s82, v{mx}")
    for i in range(ns): E(f"  v_fma_f32 v{SR+i}, v{SR+i}, s82, -v{mx}")
    for i in range(ns): E(f"  v_exp_f32 v{SR+i}, v{SR+i}")
    E("  s_nop 0")
    E(f"  v_add_f32 v{ls}, v{SR}, v{SR+1}")
    for i in range(2, ns): E(f"  v_add_f32 v{ls}, v{ls}, v{SR+i}")
    for t in range(nt//2):
        for h in range(4):
            a = SR + 8*t + 2*h
            E(f"  v_cvt_pk_bf16_f32 v{QR+4*t+h}, v{a}, v{a+1}")
    for op in ("v_permlane16_swap_b32", "v_permlane32_swap_b32"):
        E(f"  v_mov_b32 v{t1}, v{ls}")
        E("  s_nop 1")
        E(f"  {op} v{ls}, v{t1}")
        E(f"  v_add_f32 v{ls}, v{ls}, v{t1}")
    ACC = SR; T = KR + 96
    for t in range(nt//2):
        q.wait(f"v{t}")
        if t >= 2:
            if t == 2:
                E(f"  v_lshlrev_b32 v{M+11}, 4, v{lane}")
                E(f"  v_add_u32 v{M+11}, s77, v{M+11}")
            for i in range(8):
                r = vbase[t] + 4*i
                E(f"  ds_read_b128 v[{r}:{r+3}], v{M+11} offset:{((t-2)*8+i)*1024}")
            E("  s_waitcnt lgkmcnt(0)")
        if t == 3 and pre_pv3: pre_pv3()
        gemv_block(vbase[t], QR+4*t, T, ACC, first=(t == 0))
    E("  s_lshl_b32 s67, s60, 11")
    E(f"  v_lshlrev_b32 v{M+11}, 5, v{n}")
    E(f"  v_add_u32 v{M+11}, s67, v{M+11}")
    E("  s_nop 5")
    for h in range(4):
        for j in range(8):
            E(f"  v_mov_b32 v{8*h+j}, v{ACC+4*j+h}")

def write_partial():
    E(f"  v_cmp_gt_u32 vcc, 16, v{lane}")
    E("  s_nop 1")
    E("  s_and_saveexec_b64 s[70:71], vcc")
    for h in range(4):
        E(f"  ds_write_b128 v{M+11}, v[{8*h}:{8*h+3}] offset:{LP+512*h}")
        E(f"  ds_write_b128 v{M+11}, v[{8*h+4}:{8*h+7}] offset:{LP+512*h+16}")
    E("  s_mov_b64 exec, s[70:71]")
    E("  s_lshl_b32 s67, s60, 5")
    E(f"  v_lshlrev_b32 v{M+11}, 3, v{lane}")
    E(f"  v_add_u32 v{M+11}, s67, v{M+11}")
    E(f"  v_mov_b32 v{M+12}, v{mx}")
    E(f"  v_mov_b32 v{M+13}, v{ls}")
    E(f"  v_cmp_gt_u32 vcc, 4, v{lane}")
    E("  s_nop 1")
    E("  s_and_saveexec_b64 s[70:71], vcc")
    E(f"  ds_write_b64 v{M+11}, v[{M+12}:{M+13}] offset:{LML}")
    E("  s_mov_b64 exec, s[70:71]")
    E("  s_waitcnt lgkmcnt(0)")

def merge_old():
    E("  s_lshl_b32 s67, s60, 5")
    E("  v_mov_b32 v32, s67")
    for h in range(4):
        E(f"  ds_read_b64 v[{34+2*h}:{35+2*h}], v32 offset:{LML+8*h}")
    for h in range(4):
        E(f"  ds_read_b128 v[{64+8*h}:{67+8*h}], v{M+11} offset:{LP+512*h}")
        E(f"  ds_read_b128 v[{68+8*h}:{71+8*h}], v{M+11} offset:{LP+512*h+16}")
    for h in range(4):
        E(f"  v_readlane_b32 s{68+h}, v{mx}, {h}")
        E(f"  v_readlane_b32 s{72+h}, v{ls}, {h}")
    E("  s_waitcnt lgkmcnt(0)")
    for h in range(4):
        mo, lo = 34+2*h, 35+2*h
        E(f"  v_max_f32 v44, s{68+h}, v{mo}")
        E(f"  v_sub_f32 v45, v{mo}, v44")
        E(f"  v_sub_f32 v46, s{68+h}, v44")
        E("  v_exp_f32 v45, v45")
        E("  v_exp_f32 v46, v46")
        E("  s_nop 0")
        E(f"  v_mul_f32 v{lo}, v{lo}, v45")
        E(f"  v_fma_f32 v{lo}, v46, s{72+h}, v{lo}")
        E(f"  v_mov_b32 v{mo}, v44")
        for j in range(8):
            E(f"  v_mul_f32 v{8*h+j}, v{8*h+j}, v46")
            E(f"  v_fmac_f32 v{8*h+j}, v{64+8*h+j}, v45")
    for h in range(4):
        E(f"  v_readfirstlane_b32 s{68+h}, v{34+2*h}")
        E(f"  v_readfirstlane_b32 s{72+h}, v{35+2*h}")
    E("  s_nop 3")
    for h in range(4):
        E(f"  v_writelane_b32 v{mx}, s{68+h}, {h}")
        E(f"  v_writelane_b32 v{ls}, s{72+h}, {h}")

def claim():
    E(f"  v_mov_b32 v{M+14}, 1")
    E(f"  v_mov_b32 v{M+15}, 0")
    E("  s_mov_b64 exec, 1")
    E(f"  buffer_atomic_add v{M+14}, v{M+15}, {S(SW)}, s76 offen sc0 sc1")
    E("  s_mov_b64 exec, -1")

def wo_slot(dst):
    E(f"  s_and_b32 s{dst}, s62, 3")
    E(f"  s_mul_i32 s{dst}, s{dst}, {NT}")
    E("  s_lshl_b32 s68, s61, 3")
    E(f"  s_add_u32 s{dst}, s{dst}, s68")
    E("  s_lshr_b32 s68, s62, 2")
    E(f"  s_add_u32 s{dst}, s{dst}, s68")
def ffn_slot(dst):
    E(f"  s_and_b32 s{dst}, s2, 3")
    E(f"  s_mul_i32 s{dst}, s{dst}, {NT}")
    E("  s_lshr_b32 s68, s2, 2")
    E(f"  s_add_u32 s{dst}, s{dst}, s68")
    E(f"  s_add_u32 s{dst}, s{dst}, 64")

def kernel():
    name = NAME + "_kernel"
    E(f".globl {name}\n.p2align 8\n.type {name},@function\n{name}:")
    E("  s_cmp_ge_u32 s2, 256")
    E("  s_cbranch_scc1 L_end")
    E("  s_load_dwordx16 s[4:19], s[0:1], 0")
    E("  s_load_dwordx8 s[20:27], s[0:1], 64")
    E("  s_load_dwordx2 s[28:29], s[0:1], 96")
    if DIAG:
        for i in range(18): E(f"  s_mov_b32 s{84+i}, 0")
        E("  s_memrealtime s[84:85]")
    if os.environ.get("XABS"): E("  s_memrealtime s[98:99]")
    E(f"  v_mov_b32 v{tid}, v0")
    E(f"  v_and_b32 v{lane}, 63, v0")
    E(f"  v_lshrrev_b32 v{M+4}, 6, v0")
    E(f"  v_lshrrev_b32 v{g}, 4, v{lane}")
    E(f"  v_readfirstlane_b32 s60, v{M+4}")
    E(f"  v_and_b32 v{n}, 15, v{lane}")
    E("  s_mov_b32 s83, 0")
    E(f"  s_mov_b32 s{SELLO}, 0x05040100")
    E(f"  s_mov_b32 s{SELHI}, 0x07060302")
    E(f"  s_mov_b32 s82, {cbits:#x}")
    E("  s_lshr_b32 s61, s2, 3")
    E("  s_and_b32 s61, s61, 7")
    E("  s_lshr_b32 s63, s2, 6")
    E("  s_and_b32 s64, s2, 7")
    E("  s_lshl_b32 s62, s63, 3")
    E("  s_add_u32 s62, s62, s64")
    E("  s_lshl_b32 s65, s63, 3")
    E("  s_add_u32 s65, s65, s61")
    E("  s_lshl_b32 s66, s65, 21")
    E("  s_lshl_b32 s67, s64, 18")
    E("  s_add_u32 s66, s66, s67")
    E("  s_lshl_b32 s67, s60, 15")
    E("  s_add_u32 s66, s66, s67")
    E("  s_lshl_b32 s77, s60, 14")
    E(f"  s_add_u32 s77, s77, {VST}")
    E("  s_lshl_b32 s76, s65, 7")
    E(f"  s_add_u32 s76, s76, {CNT:#x}")
    E(f"  v_lshlrev_b32 v{vk}, 8, v{n}")
    E(f"  v_lshl_add_u32 v{vk}, v{g}, 4, v{vk}")
    E(f"  v_lshlrev_b32 v{vv}, 10, v{g}")
    E(f"  v_lshl_add_u32 v{vv}, v{n}, 4, v{vv}")
    E(f"  v_mov_b32 v{M+8}, 0")
    E(f"  v_mov_b32 v{M+9}, {LFLAG}")
    E(f"  ds_write_b32 v{M+9}, v{M+8}")
    E(f"  ds_write_b32 v{M+9}, v{M+8} offset:16")
    E("  s_waitcnt lgkmcnt(0)")
    E("  s_barrier")
    srd(SK, 6, 0x4000000); srd(SV, 8, 0x4000000); srd(SW, 28, WS_BYTES)
    srd(SD, 26, 256); srd(SX, 4, 4096); srd(SO, 24, 4096)
    E("  s_cmp_eq_u32 s60, 0")
    E("  s_cbranch_scc1 L_stage1")
    E("  s_lshl_b32 s67, s2, 3")
    E("  s_add_u32 s67, s67, s60")
    E("  s_cmp_lg_u32 s67, 1")
    E("  s_cbranch_scc1 L_nopub")
    E("  s_memrealtime s[78:79]")
    E("  s_waitcnt lgkmcnt(0)")
    E("  s_or_b32 s78, s78, 1")
    E("  s_or_b32 s79, s79, 0x80000000")
    E("  v_mov_b32 v8, s78")
    E("  v_mov_b32 v9, s79")
    E("  v_mov_b32 v10, 0")
    E("  s_mov_b64 exec, 1")
    E(f"  buffer_store_dwordx2 v[8:9], v10, {S(SD)}, 0 offen sc1")
    E("  s_mov_b64 exec, -1")
    E("L_nopub:")
    lds_wait("fwait", LFLAG, 1, M+8)
    q = Q()
    for t in range(8): kload(q, t)
    vload(q, 0, VR); vload(q, 1, VR+32)
    vload_lds(q, 2); vload_lds(q, 3)
    E(f"  s_waitcnt vmcnt({PT})")
    E(f"  v_mov_b32 v{M+9}, {LPROG}")
    E(f"  v_mov_b32 v{M+8}, 1")
    E("  s_mov_b64 exec, 1")
    E(f"  ds_add_u32 v{M+9}, v{M+8}")
    E("  s_mov_b64 exec, -1")
    lds_wait("qwait", LFLAG, 2, M+8)
    stamp(1)
    def prefetch():
        stamp(3)
        E(f"  s_cmp_eq_u32 s60, {W_WO}")
        E("  s_cbranch_scc1 L_pf_wo")
        E(f"  s_cmp_eq_u32 s60, {W_FFN}")
        E("  s_cbranch_scc0 L_pf_done")
        E("  s_cmp_ge_u32 s2, 112")
        E("  s_cbranch_scc1 L_pf_done")
        srd(ST, 20, 0x1c0000)
        E("  s_lshr_b32 s68, s2, 2")
        E("  s_lshl_b32 s68, s68, 16")
        E("  s_and_b32 s69, s2, 3")
        E("  s_branch L_pf_go")
        E("L_pf_wo:")
        srd(ST, 12, 0x400000)
        E("  s_lshl_b32 s68, s61, 3")
        E("  s_lshr_b32 s69, s62, 2")
        E("  s_add_u32 s68, s68, s69")
        E("  s_lshl_b32 s68, s68, 16")
        E("  s_and_b32 s69, s62, 3")
        E("L_pf_go:")
        E("  s_lshl_b32 s69, s69, 8")
        E("  s_add_u32 s68, s68, s69")
        E(f"  v_lshlrev_b32 v{M+11}, 13, v{g}")
        E(f"  v_lshl_add_u32 v{M+11}, v{n}, 4, v{M+11}")
        for blk in range(2):
            for half in range(2):
                E(f"  s_add_u32 s69, s68, {blk*32768+half*4096}")
                for k4 in range(4):
                    r = VR + 32*blk + 4*(half*4+k4)
                    E(f"  buffer_load_dwordx4 v[{r}:{r+3}], v{M+11}, {S(ST)}, s69 offen offset:{1024*k4} {S1F}")
        E("L_pf_done:")
    body(q, 8, [VR, VR+32, KR, KR+32], pre_pv3=prefetch)
    write_partial()
    E(f"  s_cmp_lt_u32 s60, {NCL}")
    E("  s_cbranch_scc1 L_pool")
    E("L_w0done:")
    E(f"  s_cmp_eq_u32 s60, {W_ALL}")
    E("  s_cbranch_scc0 L_noall")
    E(f"  v_mov_b32 v0, {LNONCE}")
    E("  ds_read_b64 v[2:3], v0")
    E(f"  v_lshlrev_b32 v1, 7, v{lane}")
    E(f"  s_mov_b32 s68, {FL:#x}")
    E("  s_waitcnt lgkmcnt(0)")
    E("L_pollA:")
    for i in range(4):
        if i: E(f"  s_add_u32 s69, s68, {8192*i}")
        E(f"  buffer_load_dwordx2 v[{8+2*i}:{9+2*i}], v1, {S(SW)}, {'s69' if i else 's68'} offen sc1")
    E("  s_waitcnt vmcnt(0)")
    E("  v_xor_b32 v4, v8, v2")
    E("  v_xor_b32 v5, v9, v3")
    E("  v_or_b32 v4, v4, v5")
    for i in range(1, 4):
        E(f"  v_xor_b32 v5, v{8+2*i}, v2")
        E("  v_or_b32 v4, v4, v5")
        E(f"  v_xor_b32 v5, v{9+2*i}, v3")
        E("  v_or_b32 v4, v4, v5")
    E("  v_cmp_ne_u32 vcc, 0, v4")
    E("  s_nop 1")
    E("  s_cmp_eq_u64 vcc, 0")
    E("  s_cbranch_scc1 L_noall")
    spin_guard("L_noall")
    E("  s_sleep 4")
    E("  s_branch L_pollA")
    E("L_noall:")
    E("  s_barrier")
    E(f"  s_sub_u32 s67, s60, {W_CMB}")
    E("  s_cmp_ge_u32 s67, 2")
    E("  s_cbranch_scc1 L_nocomb")
    E(f"  v_subrev_u32 v1, {64*W_CMB}, v{tid}")
    E("  v_lshrrev_b32 v0, 5, v1")
    E("  v_lshlrev_b32 v2, 3, v0")
    E("  v_lshlrev_b32 v3, 4, v1")
    for w in range(8):
        E(f"  ds_read_b64 v[{8+2*w}:{9+2*w}], v2 offset:{LML+32*w}")
    for w in range(8):
        E(f"  ds_read_b128 v[{24+4*w}:{27+4*w}], v3 offset:{LP+2048*w}")
    E("  s_waitcnt lgkmcnt(8)")
    E("  v_max3_f32 v4, v8, v10, v12")
    E("  v_max3_f32 v4, v4, v14, v16")
    E("  v_max3_f32 v4, v4, v18, v20")
    E("  v_max_f32 v4, v4, v22")
    for w in range(8): E(f"  v_sub_f32 v{8+2*w}, v{8+2*w}, v4")
    for w in range(8): E(f"  v_exp_f32 v{8+2*w}, v{8+2*w}")
    E("  s_waitcnt lgkmcnt(0)")
    E("  v_mul_f32 v5, v8, v9")
    for e in range(4): E(f"  v_mul_f32 v{60+e}, v8, v{24+e}")
    for w in range(1, 8):
        E(f"  v_fmac_f32 v5, v{8+2*w}, v{9+2*w}")
        for e in range(4): E(f"  v_fmac_f32 v{60+e}, v{8+2*w}, v{24+4*w+e}")
    E("  v_min_u32 v4, 0xfffffffe, v4")
    E("  v_min_u32 v5, 0xfffffffe, v5")
    for e in range(4): E(f"  v_min_u32 v{60+e}, 0xfffffffe, v{60+e}")
    E("  s_lshl_b32 s67, s65, 5")
    E("  s_add_u32 s67, s67, s64")
    E("  s_mul_i32 s68, s67, 640")
    E(f"  s_add_u32 s68, s68, {AO:#x}")
    E("  v_and_b32 v1, 31, v1")
    E("  v_mul_u32_u24 v7, 5120, v0")
    E("  v_lshl_add_u32 v7, v1, 4, v7")
    E(f"  buffer_store_dwordx4 v[60:63], v7, {S(SW)}, s68 offen sc1")
    E("  s_mov_b32 exec_lo, 1")
    E("  s_mov_b32 exec_hi, 1")
    E(f"  buffer_store_dwordx2 v[4:5], v7, {S(SW)}, s68 offen offset:512 sc1")
    E("  s_mov_b64 exec, -1")
    E("L_nocomb:")
    stamp(4)
    E(f"  s_cmp_eq_u32 s60, {W_WO}")
    E("  s_cbranch_scc1 L_tail_wo")
    E(f"  s_cmp_eq_u32 s60, {W_FIN}")
    E("  s_cbranch_scc1 L_tail_fin")
    E(f"  s_cmp_eq_u32 s60, {W_FFN}")
    E("  s_cbranch_scc0 L_exit")
    E("  s_cmp_ge_u32 s2, 112")
    E("  s_cbranch_scc1 L_exit")
    E(f"  v_and_b32 v0, 3, v{n}")
    E(f"  v_lshrrev_b32 v1, 2, v{n}")
    E("  v_lshl_add_u32 v2, v1, 2, v0")
    E("  s_movk_i32 s67, 30720")
    E("  v_mul_lo_u32 v2, v2, s67")
    E(f"  v_lshl_add_u32 v2, v{g}, 4, v2")
    E("  s_lshr_b32 s68, s2, 2")
    E("  s_lshr_b32 s69, s68, 1")
    E("  s_lshl_b32 s69, s69, 9")
    E("  s_and_b32 s72, s68, 1")
    E("  s_lshl_b32 s72, s72, 7")
    E("  s_add_u32 s69, s69, s72")
    E("  s_add_u32 s69, s69, 16384")
    E("  s_add_u32 s72, s69, 7168")
    for blk in range(2):
        E(f"  buffer_load_dwordx4 v[{8+8*blk}:{11+8*blk}], v2, {S(SW)}, s69 offen offset:{64*blk}")
        E(f"  buffer_load_dwordx4 v[{12+8*blk}:{15+8*blk}], v2, {S(SW)}, s69 offen offset:{64*blk+256}")
        E(f"  buffer_load_dwordx4 v[{24+8*blk}:{27+8*blk}], v2, {S(SW)}, s72 offen offset:{64*blk}")
        E(f"  buffer_load_dwordx4 v[{28+8*blk}:{31+8*blk}], v2, {S(SW)}, s72 offen offset:{64*blk+256}")
    E("  v_lshlrev_b32 v3, 2, v0")
    E(f"  s_mov_b32 s73, {GOFF:#x}")
    E(f"  buffer_load_dword v4, v3, {S(SW)}, s73 offen")
    E("  s_waitcnt vmcnt(0)")
    for r in (4, 8):
        for i in range(32):
            E(f"  v_add_f32_dpp v{8+i}, v{8+i}, v{8+i} row_ror:{r} row_mask:0xf bank_mask:0xf")
    E("  v_sub_f32 v4, 1.0, v4")
    for i in range(16): E(f"  v_mul_f32 v{8+i}, 0xbfb8aa3b, v{8+i}")
    for i in range(16): E(f"  v_exp_f32 v{8+i}, v{8+i}")
    for i in range(16): E(f"  v_mul_f32 v{24+i}, v{24+i}, v4")
    for i in range(16): E(f"  v_add_f32 v{8+i}, 1.0, v{8+i}")
    for i in range(16): E(f"  v_rcp_f32 v{8+i}, v{8+i}")
    E("  s_nop 0")
    for i in range(16): E(f"  v_mul_f32 v{8+i}, v{8+i}, v{24+i}")
    for i in range(8): E(f"  v_cvt_pk_bf16_f32 v{40+i}, v{8+2*i}, v{9+2*i}")
    ffn_slot(69)
    E("  s_branch L_tail_mm")
    E("L_tail_wo:")
    E(f"  v_and_b32 v0, 3, v{n}")
    E(f"  v_lshrrev_b32 v1, 2, v{n}")
    E("  s_lshr_b32 s68, s62, 3")
    E("  s_lshl_b32 s69, s61, 2")
    E("  s_add_u32 s69, s69, s68")
    E("  s_mul_i32 s72, s69, 5120")
    E(f"  s_add_u32 s73, s72, {AO+512:#x}")
    E("  s_lshr_b32 s74, s62, 2")
    E("  s_and_b32 s74, s74, 1")
    E("  s_lshl_b32 s74, s74, 8")
    E("  s_add_u32 s72, s72, s74")
    E(f"  s_add_u32 s72, s72, {AO:#x}")
    E("  s_mov_b32 s75, 163840")
    E("  v_mul_lo_u32 v3, v0, s75")
    E("  v_mul_u32_u24 v2, 1280, v1")
    E("  v_add_u32 v2, v2, v3")
    E(f"  v_lshl_add_u32 v2, v{g}, 5, v2")
    E(f"  v_lshrrev_b32 v5, 2, v{lane}")
    E("  v_mul_u32_u24 v5, 640, v5")
    E("  v_add_u32 v5, v5, v3")
    E("  v_lshlrev_b32 v6, 2, v0")
    E(f"  s_mov_b32 s74, {GOFF:#x}")
    E(f"  buffer_load_dword v4, v6, {S(SW)}, s74 offen")
    E("  s_waitcnt vmcnt(0)")
    perm_all(VR, 64)
    perm_all(VR+32, 96)
    E("  s_mov_b32 exec_hi, 0")
    E("L_poll1a:")
    E(f"  buffer_load_dwordx2 v[56:57], v5, {S(SW)}, s73 offen sc1")
    E("  s_waitcnt vmcnt(0)")
    E("  v_max_u32 v7, v56, v57")
    E("  v_cmp_eq_u32 vcc, -1, v7")
    E("  s_nop 1")
    E("  s_cmp_eq_u64 vcc, 0")
    E("  s_cbranch_scc1 L_poll1a_done")
    spin_guard("L_poll1a_done")
    E(f"  s_sleep {SLP}")
    E("  s_branch L_poll1a")
    E("L_poll1a_done:")
    E("  s_mov_b64 exec, -1")
    E("L_poll1:")
    for s_ in range(2):
        for blk in range(2):
            r = 8 + 16*s_ + 8*blk
            E(f"  buffer_load_dwordx4 v[{r}:{r+3}], v2, {S(SW)}, s72 offen offset:{640*s_+128*blk} sc1")
            E(f"  buffer_load_dwordx4 v[{r+4}:{r+7}], v2, {S(SW)}, s72 offen offset:{640*s_+128*blk+16} sc1")
    E("  v_mov_b32 v40, v56")
    E("  s_nop 1")
    E("  v_max_f32_dpp v40, v40, v40 row_ror:4 row_mask:0xf bank_mask:0xf")
    E("  s_nop 1")
    E("  v_max_f32_dpp v40, v40, v40 row_ror:8 row_mask:0xf bank_mask:0xf")
    E("  v_mov_b32 v41, v40")
    E("  s_nop 1")
    E("  v_permlane16_swap_b32 v40, v41")
    E("  v_max_f32 v40, v40, v41")
    E("  v_sub_f32 v42, v56, v40")
    E("  v_exp_f32 v42, v42")
    E("  s_nop 0")
    E("  v_mul_f32 v43, v42, v57")
    E("  s_nop 1")
    E("  v_add_f32_dpp v43, v43, v43 row_ror:4 row_mask:0xf bank_mask:0xf")
    E("  s_nop 1")
    E("  v_add_f32_dpp v43, v43, v43 row_ror:8 row_mask:0xf bank_mask:0xf")
    E("  v_mov_b32 v41, v43")
    E("  s_nop 1")
    E("  v_permlane16_swap_b32 v43, v41")
    E("  v_add_f32 v43, v43, v41")
    E("  v_rcp_f32 v43, v43")
    E("  s_nop 0")
    E("  v_mul_f32 v42, v42, v43")
    E("  v_mul_f32 v42, v42, v4")
    E("  v_lshlrev_b32 v44, 3, v1")
    E("  v_add_u32 v44, v44, v0")
    E("  v_lshlrev_b32 v44, 2, v44")
    E("  v_add_u32 v45, 16, v44")
    E("  ds_bpermute_b32 v58, v44, v42")
    E("  ds_bpermute_b32 v59, v45, v42")
    E("  s_waitcnt vmcnt(0)")
    E("  v_max3_u32 v7, v8, v9, v10")
    i = 11
    while i < 40:
        if i + 1 < 40:
            E(f"  v_max3_u32 v7, v7, v{i}, v{i+1}"); i += 2
        else:
            E(f"  v_max_u32 v7, v7, v{i}"); i += 1
    E("  v_cmp_eq_u32 vcc, -1, v7")
    E("  s_waitcnt lgkmcnt(0)")
    E("  s_cmp_eq_u64 vcc, 0")
    E("  s_cbranch_scc1 L_poll1_done")
    spin_guard("L_poll1_done")
    E(f"  s_sleep {SLP}")
    E("  s_branch L_poll1")
    E("L_poll1_done:")
    stamp(5)
    for i in range(16): E(f"  v_mul_f32 v{8+i}, v{8+i}, v58")
    for i in range(16): E(f"  v_fmac_f32 v{8+i}, v{24+i}, v59")
    for r in (4, 8):
        for i in range(16):
            E(f"  v_add_f32_dpp v{8+i}, v{8+i}, v{8+i} row_ror:{r} row_mask:0xf bank_mask:0xf")
    for i in range(8): E(f"  v_cvt_pk_bf16_f32 v{40+i}, v{8+2*i}, v{9+2*i}")
    wo_slot(69)
    mfma_all(64, 40, SR, True)
    mfma_all(96, 44, SR, False)
    E("  s_branch L_tail_st")
    E("L_tail_mm:")
    E("  s_waitcnt vmcnt(0)")
    gemv_block(VR, 40, 96, SR, first=True)
    gemv_block(VR+32, 44, 96, SR, first=False)
    E("L_tail_st:")
    E("  s_lshl_b32 s69, s69, 11")
    E(f"  s_add_u32 s69, s69, {L2:#x}")
    E(f"  v_lshlrev_b32 v2, 4, v{n}")
    E(f"  v_cmp_gt_u32 vcc, 16, v{lane}")
    E("  s_nop 4")
    for i in range(32): E(f"  v_min_u32 v{SR+i}, 0xfffffffe, v{SR+i}")
    E("  s_and_saveexec_b64 s[70:71], vcc")
    for j in range(8):
        E(f"  buffer_store_dwordx4 v[{SR+4*j}:{SR+3+4*j}], v2, {S(SW)}, s69 offen offset:{256*j} sc1")
    E("  s_mov_b64 exec, s[70:71]")
    E(f"  s_cmp_eq_u32 s60, {W_WO}")
    E("  s_cbranch_scc0 L_noflag3")
    E(f"  v_mov_b32 v2, {LFLAG}")
    E("  v_mov_b32 v3, 3")
    E("  ds_write_b32 v2, v3")
    E("L_noflag3:")
    stamp(6)
    E("  s_branch L_exit")
    E("L_tail_fin:")
    E(f"  v_lshrrev_b32 v0, 1, v{lane}")
    E(f"  v_and_b32 v1, 1, v{lane}")
    E("  s_lshr_b32 s68, s2, 6")
    E(f"  s_mul_i32 s68, s68, {NT*2048}")
    E("  s_and_b32 s69, s2, 3")
    E("  s_lshl_b32 s69, s69, 9")
    E("  s_add_u32 s68, s68, s69")
    E("  s_lshr_b32 s69, s2, 2")
    E("  s_and_b32 s69, s69, 15")
    E("  s_lshl_b32 s69, s69, 4")
    E("  s_add_u32 s68, s68, s69")
    E(f"  s_add_u32 s68, s68, {L2:#x}")
    E("  v_lshlrev_b32 v2, 11, v0")
    E("  v_lshl_add_u32 v2, v1, 8, v2")
    E("  s_add_u32 s69, s68, 65536")
    E("  v_cmp_gt_u32 vcc, 28, v0")
    E("  v_add_u32 v3, 0x20000, v2")
    E("  s_nop 0")
    E("  v_cndmask_b32 v3, v2, v3, vcc")
    lds_wait("finwait", LFLAG, 3, 20)
    E("L_poll2:")
    E(f"  buffer_load_dwordx4 v[8:11], v2, {S(SW)}, s68 offen sc1")
    E(f"  buffer_load_dwordx4 v[12:15], v2, {S(SW)}, s69 offen sc1")
    E(f"  buffer_load_dwordx4 v[16:19], v3, {S(SW)}, s68 offen sc1")
    E("  s_waitcnt vmcnt(0)")
    E("  v_max3_u32 v7, v8, v9, v10")
    E("  v_max3_u32 v7, v7, v11, v12")
    E("  v_max3_u32 v7, v7, v13, v14")
    E("  v_max3_u32 v7, v7, v15, v16")
    E("  v_max3_u32 v7, v7, v17, v18")
    E("  v_max_u32 v7, v7, v19")
    E("  v_cmp_eq_u32 vcc, -1, v7")
    E("  s_nop 1")
    E("  s_cmp_eq_u64 vcc, 0")
    E("  s_cbranch_scc1 L_poll2_done")
    spin_guard("L_poll2_done")
    E(f"  s_sleep {SLP}")
    E("  s_branch L_poll2")
    E("L_poll2_done:")
    stamp(7)
    if os.environ.get("XABS"):
        E(f"  s_add_u32 s72, s98, {int(os.environ['XABS'])}")
        E("L_xa:")
        E("  s_memrealtime s[70:71]")
        E("  s_waitcnt lgkmcnt(0)")
        E("  s_sub_u32 s73, s70, s72")
        E("  s_cmp_lt_i32 s73, 0")
        E("  s_cbranch_scc1 L_xa")
    if os.environ.get("XNON"):
        E(f"  v_mov_b32 v20, {LNONCE}")
        E("  ds_read_b32 v21, v20")
        E("  s_waitcnt lgkmcnt(0)")
        E("  v_readfirstlane_b32 s72, v21")
        E(f"  s_add_u32 s72, s72, {int(os.environ['XNON'])}")
        E("L_xn:")
        E("  s_memrealtime s[70:71]")
        E("  s_waitcnt lgkmcnt(0)")
        E("  s_sub_u32 s73, s70, s72")
        E("  s_cmp_lt_i32 s73, 0")
        E("  s_cbranch_scc1 L_xn")
    if os.environ.get("XDELAY"):
        E("  s_memrealtime s[70:71]")
        E("  s_waitcnt lgkmcnt(0)")
        E(f"  s_add_u32 s72, s70, {int(os.environ['XDELAY'])}")
        E("L_xd:")
        E("  s_memrealtime s[70:71]")
        E("  s_waitcnt lgkmcnt(0)")
        E("  s_sub_u32 s73, s70, s72")
        E("  s_cmp_lt_i32 s73, 0")
        E("  s_cbranch_scc1 L_xd")
    E("  v_cmp_gt_u32 vcc, 28, v0")
    E("  s_nop 1")
    for i in range(4): E(f"  v_cndmask_b32 v{16+i}, 0, v{16+i}, vcc")
    for i in range(4): E(f"  v_add_f32 v{8+i}, v{8+i}, v{12+i}")
    for i in range(4): E(f"  v_add_f32 v{8+i}, v{8+i}, v{16+i}")
    for r in (2, 4, 8):
        E("  s_nop 1")
        for i in range(4):
            E(f"  v_add_f32_dpp v{8+i}, v{8+i}, v{8+i} row_ror:{r} row_mask:0xf bank_mask:0xf")
    for op in ("v_permlane16_swap_b32", "v_permlane32_swap_b32"):
        for i in range(4): E(f"  v_mov_b32 v{12+i}, v{8+i}")
        E("  s_nop 1")
        for i in range(4): E(f"  {op} v{8+i}, v{12+i}")
        for i in range(4): E(f"  v_add_f32 v{8+i}, v{8+i}, v{12+i}")
    E("  s_nop 1")
    for i in range(4):
        E(f"  v_mov_b32_dpp v{12+i}, v{8+i} quad_perm:[1,0,3,2] row_mask:0xf bank_mask:0xf")
    for i in range(4): E(f"  v_cvt_pk_bf16_f32 v{8+i}, v{8+i}, v{12+i}")
    E("  s_lshl_b32 s68, s2, 2")
    E("  v_mov_b32 v2, 0")
    E("  s_mov_b64 exec, 1")
    for i in range(4):
        E(f"  buffer_store_dword v{8+i}, v2, {S(SO)}, s68 offen offset:{1024*i}")
    E("  s_mov_b64 exec, -1")
    E("L_exit:")
    if DIAG == 9:
        E(f"  s_cmp_eq_u32 s60, {W_FIN}")
        E("  s_cbranch_scc0 L_end")
        E("  s_and_b32 s68, s2, 63")
        E("  s_cmp_lg_u32 s68, 0")
        E("  s_cbranch_scc1 L_end")
        E("  s_waitcnt lgkmcnt(0)")
        E("  s_lshr_b32 s68, s2, 6")
        E("  s_mul_i32 s68, s68, 12")
        E("  v_mov_b32 v2, 0")
        E("  s_mov_b64 exec, 1")
        E("  v_mov_b32 v8, s84")
        E("  v_mov_b32 v9, s92")
        E("  v_mov_b32 v10, s98")
        E(f"  buffer_store_dwordx3 v[8:10], v2, {S(SD)}, s68 offen offset:16")
    elif DIAG:
        E("  s_memrealtime s[100:101]")
        E("  s_waitcnt lgkmcnt(0)")
        E("  s_lshl_b32 s68, s2, 3")
        E("  s_add_u32 s68, s68, s60")
        E("  s_lshl_b32 s68, s68, 6")
        E(f"  s_add_u32 s68, s68, {DIAGOFF:#x}")
        for i in range(9): E(f"  v_mov_b32 v{8+i}, s{84+2*i}")
        E("  v_mov_b32 v2, 0")
        E("  s_mov_b64 exec, 1")
        E(f"  buffer_store_dwordx4 v[8:11], v2, {S(SW)}, s68 offen")
        E(f"  buffer_store_dwordx4 v[12:15], v2, {S(SW)}, s68 offen offset:16")
        E(f"  buffer_store_dword v16, v2, {S(SW)}, s68 offen offset:32")
    E("L_end:")
    E("  s_endpgm")

    E("L_pool:")
    lds_wait("pwait", LPROG, 7, M+8)
    claim()
    E("  s_waitcnt vmcnt(0)")
    E("L_claimed:")
    E(f"  v_readfirstlane_b32 s67, v{M+14}")
    E("  s_cmp_ge_u32 s67, 16")
    E("  s_cbranch_scc1 L_w0done")
    stamp(2)
    E("  s_lshl_b32 s66, s65, 21")
    E("  s_lshr_b32 s68, s67, 1")
    E("  s_lshl_b32 s68, s68, 18")
    E("  s_add_u32 s66, s66, s68")
    E("  s_and_b32 s68, s67, 1")
    E("  s_lshl_b32 s68, s68, 14")
    E("  s_add_u32 s66, s66, s68")
    q = Q()
    for t in range(4): kload(q, t)
    vload(q, 0, VR); vload(q, 1, VR+32)
    body(q, 4, [VR, VR+32], post_s=claim)
    E("  s_waitcnt vmcnt(0)")
    merge_old()
    write_partial()
    E("  s_branch L_claimed")

    E("L_stage1:")
    E("  s_setprio 3")
    E("  s_cmp_ge_u32 s62, 30")
    E("  s_cbranch_scc1 L_s1_clr")
    E("  s_cmp_ge_u32 s62, 16")
    E("  s_cbranch_scc1 L_s1_ffn")
    srd(ST, 10, 0x400000)
    E("  s_movk_i32 s72, 8192")
    E("  s_lshl_b32 s68, s61, 2")
    E("  s_lshr_b32 s69, s62, 2")
    E("  s_add_u32 s68, s68, s69")
    E("  s_and_b32 s73, s62, 3")
    E("  s_lshl_b32 s74, s68, 8")
    E("  s_lshl_b32 s75, s68, 9")
    E("  s_branch L_s1_go")
    E("L_s1_ffn:")
    E("  s_mul_i32 s68, s61, 14")
    E("  s_add_u32 s68, s68, s62")
    E("  s_sub_u32 s68, s68, 16")
    E("  s_and_b32 s73, s68, 3")
    E("  s_lshr_b32 s68, s68, 2")
    E("  s_movk_i32 s72, 3584")
    E("  s_lshl_b32 s75, s68, 9")
    E("  s_add_u32 s75, s75, 16384")
    E("  s_cmp_ge_u32 s68, 14")
    E(f"  s_cselect_b32 s{ST}, s18, s16")
    E(f"  s_cselect_b32 s{ST+1}, s19, s17")
    E("  s_cselect_b32 s69, 14, 0")
    E(f"  s_and_b32 s{ST+1}, s{ST+1}, 0xffff")
    E(f"  s_mov_b32 s{ST+2}, 0x1c0000")
    E(f"  s_mov_b32 s{ST+3}, 0x00020000")
    E("  s_sub_u32 s68, s68, s69")
    E("  s_lshl_b32 s74, s68, 8")
    E("L_s1_go:")
    E("  s_lshl_b32 s68, s73, 7")
    E(f"  v_lshlrev_b32 v164, 3, v{g}")
    E("  v_add_u32 v164, s68, v164")
    E(f"  v_and_b32 v165, 3, v{n}")
    E("  v_lshlrev_b32 v165, 10, v165")
    E("  v_lshl_add_u32 v165, v164, 1, v165")
    E("  v_mul_lo_u32 v166, v164, s72")
    E(f"  v_lshl_add_u32 v166, v{n}, 4, v166")
    E("  v_add_u32 v166, s74, v166")
    E("  s_mov_b32 s69, 0")
    E("  s_mul_i32 s67, s72, 24")
    for blk in range(4):
        E(f"  buffer_load_dwordx4 v[{128+4*blk}:{131+4*blk}], v165, {S(SX)}, 0 offen offset:{64*blk}")
        for kk in range(8):
            r = 32*blk + 4*kk
            E(f"  buffer_load_dwordx4 v[{r}:{r+3}], v166, {S(ST)}, s69 offen {S1F}")
            E("  s_add_u32 s69, s69, s72")
        if blk < 3: E("  s_add_u32 s69, s69, s67")
    E("L_s1_clr:")
    E(f"  v_mov_b32 v170, {LFLAG}")
    E("  v_mov_b32 v171, 1")
    E("  ds_write_b32 v170, v171")
    for i in range(4): E(f"  v_mov_b32 v{160+i}, -1")
    E("  s_lshl_b32 s67, s65, 5")
    E("  s_add_u32 s67, s67, s64")
    E("  s_mul_i32 s68, s67, 640")
    E(f"  s_add_u32 s68, s68, {AO:#x}")
    E(f"  v_mul_u32_u24 v172, 5120, v{g}")
    E(f"  v_lshl_add_u32 v172, v{n}, 4, v172")
    E(f"  buffer_store_dwordx4 v[160:163], v172, {S(SW)}, s68 offen sc1")
    E(f"  buffer_store_dwordx4 v[160:163], v172, {S(SW)}, s68 offen offset:256 sc1")
    E("  s_mov_b32 exec_lo, 0x00010001")
    E("  s_mov_b32 exec_hi, 0x00010001")
    E(f"  buffer_store_dwordx2 v[160:161], v172, {S(SW)}, s68 offen offset:512 sc1")
    E("  s_mov_b64 exec, -1")
    wo_slot(69)
    E("  s_lshl_b32 s69, s69, 11")
    E(f"  s_add_u32 s69, s69, {L2:#x}")
    E(f"  v_lshlrev_b32 v172, 4, v{lane}")
    E(f"  buffer_store_dwordx4 v[160:163], v172, {S(SW)}, s69 offen sc1")
    E(f"  buffer_store_dwordx4 v[160:163], v172, {S(SW)}, s69 offen offset:1024 sc1")
    NCLR = 5
    E("  s_cmp_ge_u32 s2, 112")
    E("  s_cbranch_scc1 L_s1_noffnclr")
    ffn_slot(69)
    E("  s_lshl_b32 s69, s69, 11")
    E(f"  s_add_u32 s69, s69, {L2:#x}")
    E(f"  buffer_store_dwordx4 v[160:163], v172, {S(SW)}, s69 offen sc1")
    E(f"  buffer_store_dwordx4 v[160:163], v172, {S(SW)}, s69 offen offset:1024 sc1")
    E("L_s1_noffnclr:")
    E("  s_cmp_ge_u32 s62, 4")
    E("  s_cbranch_scc1 L_s1_nocnt")
    E("  s_lshl_b32 s68, s62, 3")
    E("  s_add_u32 s68, s68, s61")
    E("  s_lshl_b32 s68, s68, 7")
    E(f"  s_add_u32 s68, s68, {CNT:#x}")
    E("  v_mov_b32 v172, 0")
    E("  s_mov_b64 exec, 1")
    E(f"  buffer_store_dword v172, v172, {S(SW)}, s68 offen sc1")
    E("  s_mov_b64 exec, -1")
    E("L_s1_nocnt:")
    E("  v_mov_b32 v172, 0")
    E("  s_mov_b64 exec, 1")
    E(f"  buffer_load_dwordx2 v[168:169], v172, {S(SD)}, 0 offen sc1")
    E("  s_mov_b64 exec, -1")
    E("  s_cmp_ge_u32 s62, 30")
    E("  s_cbranch_scc1 L_s1_gate")
    for blk in range(4):
        E(f"  s_waitcnt vmcnt({9*(3-blk)+6})")
        gemv_block(32*blk, 128+4*blk, 144, 192, first=(blk == 0))
    stamp(1, 2)
    E("  s_nop 7")
    for b in range(4):
        for j in range(8):
            E(f"  v_mov_b32 v{8*b+j}, v{192+4*j+b}")
    E("  s_mul_i32 s68, s73, 122880")
    E("  s_add_u32 s68, s68, s75")
    E(f"  v_lshlrev_b32 v164, 4, v{n}")
    E("  s_mov_b64 exec, 0xffff")
    for b in range(4):
        E(f"  buffer_store_dwordx4 v[{8*b}:{8*b+3}], v164, {S(SW)}, s68 offen sc1")
        E(f"  buffer_store_dwordx4 v[{8*b+4}:{8*b+7}], v164, {S(SW)}, s68 offen offset:256 sc1")
        if b < 3: E("  s_add_u32 s68, s68, 30720")
    E("  s_mov_b64 exec, -1")
    E("  s_branch L_s1_signal")
    E("L_s1_gate:")
    E("  s_cmp_lg_u32 s2, 198")
    E("  s_cbranch_scc1 L_s1_signal")
    srd(ST, 22, 1024)
    E(f"  v_lshlrev_b32 v164, 4, v{lane}")
    E(f"  buffer_load_dwordx4 v[16:19], v164, {S(ST)}, 0 offen")
    for b in range(4):
        E(f"  buffer_load_dwordx4 v[{4*b}:{4*b+3}], v164, {S(SX)}, 0 offen offset:{1024*b}")
    E("  s_waitcnt vmcnt(0)")
    for b in range(4): E(f"  v_mov_b32 v{24+b}, 0")
    for c in range(4):
        E(f"  v_lshlrev_b32 v20, 16, v{16+c}")
        E(f"  v_and_b32 v21, 0xffff0000, v{16+c}")
        for b in range(4):
            E(f"  v_lshlrev_b32 v22, 16, v{4*b+c}")
            E(f"  v_and_b32 v23, 0xffff0000, v{4*b+c}")
            E(f"  v_fmac_f32 v{24+b}, v20, v22")
            E(f"  v_fmac_f32 v{24+b}, v21, v23")
    for r in (8, 4, 2, 1):
        E("  s_nop 1")
        for b in range(4):
            E(f"  v_add_f32_dpp v{24+b}, v{24+b}, v{24+b} row_ror:{r} row_mask:0xf bank_mask:0xf")
    for op in ("v_permlane16_swap_b32", "v_permlane32_swap_b32"):
        for i in range(4): E(f"  v_mov_b32 v{28+i}, v{24+i}")
        E("  s_nop 1")
        for i in range(4): E(f"  {op} v{24+i}, v{28+i}")
        for i in range(4): E(f"  v_add_f32 v{24+i}, v{24+i}, v{28+i}")
    for i in range(4): E(f"  v_mul_f32 v{24+i}, 0xbfb8aa3b, v{24+i}")
    for i in range(4): E(f"  v_exp_f32 v{24+i}, v{24+i}")
    E("  s_nop 0")
    for i in range(4): E(f"  v_add_f32 v{24+i}, 1.0, v{24+i}")
    for i in range(4): E(f"  v_rcp_f32 v{24+i}, v{24+i}")
    E(f"  s_mov_b32 s68, {GOFF:#x}")
    E("  v_mov_b32 v164, 0")
    E("  s_mov_b64 exec, 1")
    E(f"  buffer_store_dwordx4 v[24:27], v164, {S(SW)}, s68 offen sc1")
    E("  s_mov_b64 exec, -1")
    E("L_s1_signal:")
    E("  s_waitcnt vmcnt(0)")
    stamp(2, 2)
    E("  v_mov_b32 v164, 0")
    E("  s_mov_b64 exec, 1")
    E("L_pollN:")
    E("  v_readfirstlane_b32 s78, v168")
    E("  v_readfirstlane_b32 s79, v169")
    E("  s_and_b32 s68, s78, 1")
    E("  s_lshr_b32 s69, s79, 31")
    E("  s_and_b32 s68, s68, s69")
    E("  s_cmp_eq_u32 s68, 1")
    E("  s_cbranch_scc1 L_pollN_done")
    spin_guard("L_pollN_done")
    E(f"  buffer_load_dwordx2 v[168:169], v164, {S(SD)}, 0 offen sc1")
    E("  s_waitcnt vmcnt(0)")
    E("  s_branch L_pollN")
    E("L_pollN_done:")
    E("  s_lshl_b32 s68, s2, 7")
    E(f"  s_add_u32 s68, s68, {FL:#x}")
    E(f"  buffer_store_dwordx2 v[168:169], v164, {S(SW)}, s68 offen sc1")
    E("  s_mov_b64 exec, -1")
    E(f"  v_lshrrev_b32 v164, 3, v{lane}")
    E("  v_lshlrev_b32 v164, 6, v164")
    E(f"  v_and_b32 v165, 7, v{lane}")
    E("  v_add_u32 v164, v164, v165")
    E("  v_lshlrev_b32 v164, 7, v164")
    E("  s_lshl_b32 s68, s61, 10")
    E(f"  s_add_u32 s68, s68, {FL:#x}")
    E("  s_mov_b64 exec, 0xffff")
    E("L_poll0:")
    E(f"  buffer_load_dwordx2 v[166:167], v164, {S(SW)}, s68 offen sc1")
    E("  s_waitcnt vmcnt(0)")
    E("  v_cmp_ne_u32 vcc, s78, v166")
    E("  v_cmp_ne_u32 s[72:73], s79, v167")
    E("  s_nop 1")
    E("  s_or_b64 vcc, vcc, s[72:73]")
    E("  s_cmp_eq_u64 vcc, 0")
    E("  s_cbranch_scc1 L_poll0_done")
    spin_guard("L_poll0_done")
    E("  s_sleep 1")
    E("  s_branch L_poll0")
    E("L_poll0_done:")
    E("  s_mov_b64 exec, -1")
    stamp(3, 2)
    E("  s_mul_i32 s68, s63, 30720")
    E("  s_lshl_b32 s69, s61, 11")
    E("  s_add_u32 s68, s68, s69")
    E(f"  v_lshlrev_b32 v164, 9, v{g}")
    E(f"  v_lshl_add_u32 v164, v{n}, 4, v164")
    for kq in range(4):
        E(f"  buffer_load_dwordx4 v[{8*kq}:{8*kq+3}], v164, {S(SW)}, s68 offen")
        E(f"  buffer_load_dwordx4 v[{8*kq+4}:{8*kq+7}], v164, {S(SW)}, s68 offen offset:256")
        if kq < 3: E("  s_add_u32 s68, s68, 122880")
    E("  s_waitcnt vmcnt(0)")
    stamp(4, 2)
    for i in range(8):
        E(f"  v_add_f32 v{i}, v{i}, v{8+i}")
        E(f"  v_add_f32 v{16+i}, v{16+i}, v{24+i}")
    for i in range(8): E(f"  v_add_f32 v{i}, v{i}, v{16+i}")
    for i in range(4): E(f"  v_cvt_pk_bf16_f32 v{32+i}, v{2*i}, v{2*i+1}")
    E(f"  v_lshlrev_b32 v164, 4, v{lane}")
    E(f"  ds_write_b128 v164, v[32:35] offset:{LQ}")
    E(f"  v_mov_b32 v164, {LNONCE}")
    E("  v_mov_b32 v166, s78")
    E("  v_mov_b32 v167, s79")
    E("  ds_write_b64 v164, v[166:167]")
    E("  s_waitcnt lgkmcnt(0)")
    E(f"  v_mov_b32 v164, {LFLAG}")
    E("  v_mov_b32 v165, 2")
    E("  ds_write_b32 v164, v165")
    E("  s_setprio 0")
    for i in range(4): E(f"  v_mov_b32 v{i}, 0")
    E(f"  v_lshlrev_b32 v164, 5, v{lane}")
    E(f"  ds_write_b128 v164, v[0:3] offset:{LP}")
    E(f"  ds_write_b128 v164, v[0:3] offset:{LP+16}")
    E("  v_mov_b32 v0, 0xf149f2ca")
    E(f"  v_and_b32 v164, 3, v{lane}")
    E("  v_lshlrev_b32 v164, 3, v164")
    E(f"  ds_write_b64 v164, v[0:1] offset:{LML}")
    E("  s_branch L_pool")

    E(f""".section .rodata,"a"
.p2align 6
.amdhsa_kernel {name}
  .amdhsa_next_free_vgpr 256
  .amdhsa_next_free_sgpr 102
  .amdhsa_accum_offset 256
  .amdhsa_group_segment_fixed_size 0
  .amdhsa_kernarg_size 104
  .amdhsa_user_sgpr_count 2
  .amdhsa_user_sgpr_kernarg_segment_ptr 1
  .amdhsa_system_sgpr_workgroup_id_x 1
.end_amdhsa_kernel""")

E(HEADER.rstrip())
E(f"; @launch grid=(256,1,1) block=(512,1,1) lds={LDS_BYTES}")
E('.amdgcn_target "amdgcn-amd-amdhsa--gfx950"')
E(".text")
kernel()
open(sys.argv[1], "w").write("\n".join(out) + "\n")
```

```python
import sys, os, math, struct
NAME = "gated_mix__gqa_block_cached__glu_gated_glu__decode"
KVF = os.environ.get("KVF", "nt")
S1F = os.environ.get("S1F", "nt")
DIAG = int(os.environ.get("DIAG", "0"))
PT = int(os.environ.get("PT", "16"))
SLP = int(os.environ.get("SLP", "2"))
EARLY = int(os.environ.get("EARLY", "0"))
PG = int(os.environ.get("PG", "7"))
NCL = int(os.environ.get("NCL", "2"))
out = []
def E(s=""): out.append(s)

P1 = 0x0
GOFF = 0x80000
AO = 0x100000
AML = 0x180000
L2 = 0x200000
FL = 0x300000
CNT = 0x310000
DIAGOFF = 0x400000
WS_BYTES = 0x10000000
NT = 92
LQ, LP, LML, LFLAG, LNONCE, LPROG, VST = 0, 1024, 17408, 17664, 17672, 17680, 18432
LDS_BYTES = VST + 8 * 16384
W_WO, W_FFN, W_FIN, W_CMB, W_ALL = 5, 6, 7, 2, 3

HEADER = open("cdna_kernels/" + NAME + ".s.ref").read().split("; Override launch")[0]

def srd(d, b, nbytes):
    E(f"  s_mov_b32 s{d}, s{b}")
    E(f"  s_and_b32 s{d+1}, s{b+1}, 0xffff")
    E(f"  s_mov_b32 s{d+2}, {nbytes:#x}")
    E(f"  s_mov_b32 s{d+3}, 0x00020000")

SELLO, SELHI = 80, 81
def gemv_block(W, A, T, ACC, first=True):
    def perms(j):
        c = j >> 1
        sel = SELHI if (j & 1) else SELLO
        t = T + 4 * (j & 1)
        for i in range(4):
            E(f"  v_perm_b32 v{t+i}, v{W+4*(2*i+1)+c}, v{W+4*(2*i)+c}, s{sel}")
    def mfma(j):
        t = T + 4 * (j & 1)
        a = ACC + 4 * j
        c = "0" if first else f"v[{a}:{a+3}]"
        E(f"  v_mfma_f32_16x16x32_bf16 v[{a}:{a+3}], v[{A}:{A+3}], v[{t}:{t+3}], {c}")
    perms(0)
    for j in range(8):
        if j + 1 < 8: perms(j + 1)
        else: E("  s_nop 1")
        mfma(j)

def perm_all(W, T):
    for j in range(8):
        c = j >> 1
        sel = SELHI if (j & 1) else SELLO
        for i in range(4):
            E(f"  v_perm_b32 v{T+4*j+i}, v{W+4*(2*i+1)+c}, v{W+4*(2*i)+c}, s{sel}")
def mfma_all(T, A, ACC, first):
    for j in range(8):
        a = ACC + 4*j
        c = "0" if first else f"v[{a}:{a+3}]"
        E(f"  v_mfma_f32_16x16x32_bf16 v[{a}:{a+3}], v[{A}:{A+3}], v[{T+4*j}:{T+4*j+3}], {c}")

def stamp(i, lvl=1):
    if (1 if DIAG == 9 else DIAG) != lvl: return
    E(f"  s_memrealtime s[{84+2*i}:{85+2*i}]")

def spin_guard(label, lim="0x40000"):
    E("  s_add_u32 s83, s83, 1")
    E(f"  s_cmp_gt_u32 s83, {lim}")
    E(f"  s_cbranch_scc1 {label}")

def lds_wait(name, off, val, vtmp):
    E(f"  v_mov_b32 v{vtmp}, {off}")
    E(f"L_{name}:")
    E(f"  ds_read_b32 v{vtmp+1}, v{vtmp}")
    E("  s_waitcnt lgkmcnt(0)")
    E(f"  v_readfirstlane_b32 s67, v{vtmp+1}")
    E(f"  s_cmp_ge_u32 s67, {val}")
    E(f"  s_cbranch_scc1 L_{name}_done")
    spin_guard(f"L_{name}_done", "0x400000")
    E("  s_sleep 1")
    E(f"  s_branch L_{name}")
    E(f"L_{name}_done:")

KR, VR, SR, QR, M = 0, 128, 192, 224, 240
tid, lane, g, n = M, M+1, M+2, M+3
vk, vv = M+6, M+7
mx, t1, ls = M+8, M+9, M+10
SK, SV, SW, SD, ST, SX, SO = 32, 36, 40, 44, 48, 52, 56
def S(x): return f"s[{x}:{x+3}]"
cbits = struct.unpack("<I", struct.pack("<f", (128 ** -0.5) * math.log2(math.e)))[0]

class Q:
    def __init__(s): s.q = []
    def ld(s, nm): s.q.append(nm)
    def wait(s, nm):
        idx = max(i for i, x in enumerate(s.q) if x == nm)
        E(f"  s_waitcnt vmcnt({len(s.q)-1-idx})")
        del s.q[:idx+1]

def kload(q, t):
    E(f"  s_add_u32 s67, s66, {t*4096}")
    for j in range(4):
        r = KR + 16*t + 4*j
        E(f"  buffer_load_dwordx4 v[{r}:{r+3}], v{vk}, {S(SK)}, s67 offen offset:{64*j} {KVF}")
        q.ld(f"k{t}")
def vload(q, t, base):
    for half in range(2):
        E(f"  s_add_u32 s67, s66, {t*8192+half*4096}")
        for k4 in range(4):
            r = base + 4*(half*4+k4)
            E(f"  buffer_load_dwordx4 v[{r}:{r+3}], v{vv}, {S(SV)}, s67 offen offset:{1024*k4} {KVF}")
            q.ld(f"v{t}")
def vload_lds(q, t):
    for half in range(2):
        E(f"  s_add_u32 s67, s66, {t*8192+half*4096}")
        for k4 in range(4):
            i = (t-2)*8 + half*4 + k4
            E(f"  s_add_u32 m0, s77, {i*1024 - 1024*k4}")
            E("  s_nop 0")
            E(f"  buffer_load_dwordx4 v{vv}, {S(SV)}, s67 offen offset:{1024*k4} {KVF} lds")
            q.ld(f"v{t}")

def body(q, nt, vbase, pre_pv3=None, post_s=None):
    E(f"  v_and_b32 v{M+9}, 3, v{n}")
    E(f"  v_lshlrev_b32 v{M+9}, 8, v{M+9}")
    E(f"  v_lshl_add_u32 v{M+9}, v{g}, 4, v{M+9}")
    for j in range(4):
        E(f"  ds_read_b128 v[{QR+4*j}:{QR+4*j+3}], v{M+9} offset:{LQ+64*j}")
    E("  s_waitcnt lgkmcnt(0)")
    for t in range(nt):
        q.wait(f"k{t}")
        s = SR + 4*t
        for j in range(4):
            r = KR + 16*t + 4*j
            c = "0" if j == 0 else f"v[{s}:{s+3}]"
            E(f"  v_mfma_f32_16x16x32_bf16 v[{s}:{s+3}], v[{r}:{r+3}], v[{QR+4*j}:{QR+4*j+3}], {c}")
    if post_s: post_s()
    E("  s_nop 7")
    ns = 4*nt
    E(f"  v_max3_f32 v{mx}, v{SR}, v{SR+1}, v{SR+2}")
    i = 3
    while i < ns:
        if i + 1 < ns:
            E(f"  v_max3_f32 v{mx}, v{mx}, v{SR+i}, v{SR+i+1}"); i += 2
        else:
            E(f"  v_max_f32 v{mx}, v{mx}, v{SR+i}"); i += 1
    for op in ("v_permlane16_swap_b32", "v_permlane32_swap_b32"):
        E(f"  v_mov_b32 v{t1}, v{mx}")
        E("  s_nop 1")
        E(f"  {op} v{mx}, v{t1}")
        E(f"  v_max_f32 v{mx}, v{mx}, v{t1}")
    E(f"  v_mul_f32 v{mx}, s82, v{mx}")
    for i in range(ns): E(f"  v_fma_f32 v{SR+i}, v{SR+i}, s82, -v{mx}")
    for i in range(ns): E(f"  v_exp_f32 v{SR+i}, v{SR+i}")
    E("  s_nop 0")
    E(f"  v_add_f32 v{ls}, v{SR}, v{SR+1}")
    for i in range(2, ns): E(f"  v_add_f32 v{ls}, v{ls}, v{SR+i}")
    for t in range(nt//2):
        for h in range(4):
            a = SR + 8*t + 2*h
            E(f"  v_cvt_pk_bf16_f32 v{QR+4*t+h}, v{a}, v{a+1}")
    for op in ("v_permlane16_swap_b32", "v_permlane32_swap_b32"):
        E(f"  v_mov_b32 v{t1}, v{ls}")
        E("  s_nop 1")
        E(f"  {op} v{ls}, v{t1}")
        E(f"  v_add_f32 v{ls}, v{ls}, v{t1}")
    ACC = SR; T = KR + 96
    for t in range(nt//2):
        q.wait(f"v{t}")
        if t >= 2:
            if t == 2:
                E(f"  v_lshlrev_b32 v{M+11}, 4, v{lane}")
                E(f"  v_add_u32 v{M+11}, s77, v{M+11}")
            for i in range(8):
                r = vbase[t] + 4*i
                E(f"  ds_read_b128 v[{r}:{r+3}], v{M+11} offset:{((t-2)*8+i)*1024}")
            E("  s_waitcnt lgkmcnt(0)")
        if t == 3 and pre_pv3: pre_pv3()
        gemv_block(vbase[t], QR+4*t, T, ACC, first=(t == 0))
    E("  s_lshl_b32 s67, s60, 11")
    E(f"  v_lshlrev_b32 v{M+11}, 5, v{n}")
    E(f"  v_add_u32 v{M+11}, s67, v{M+11}")
    E("  s_nop 5")
    for h in range(4):
        for j in range(8):
            E(f"  v_mov_b32 v{8*h+j}, v{ACC+4*j+h}")

def write_partial():
    E(f"  v_cmp_gt_u32 vcc, 16, v{lane}")
    E("  s_nop 1")
    E("  s_and_saveexec_b64 s[70:71], vcc")
    for h in range(4):
        E(f"  ds_write_b128 v{M+11}, v[{8*h}:{8*h+3}] offset:{LP+512*h}")
        E(f"  ds_write_b128 v{M+11}, v[{8*h+4}:{8*h+7}] offset:{LP+512*h+16}")
    E("  s_mov_b64 exec, s[70:71]")
    E("  s_lshl_b32 s67, s60, 5")
    E(f"  v_lshlrev_b32 v{M+11}, 3, v{lane}")
    E(f"  v_add_u32 v{M+11}, s67, v{M+11}")
    E(f"  v_mov_b32 v{M+12}, v{mx}")
    E(f"  v_mov_b32 v{M+13}, v{ls}")
    E(f"  v_cmp_gt_u32 vcc, 4, v{lane}")
    E("  s_nop 1")
    E("  s_and_saveexec_b64 s[70:71], vcc")
    E(f"  ds_write_b64 v{M+11}, v[{M+12}:{M+13}] offset:{LML}")
    E("  s_mov_b64 exec, s[70:71]")
    E("  s_waitcnt lgkmcnt(0)")

def merge_old():
    E("  s_lshl_b32 s67, s60, 5")
    E("  v_mov_b32 v32, s67")
    for h in range(4):
        E(f"  ds_read_b64 v[{34+2*h}:{35+2*h}], v32 offset:{LML+8*h}")
    for h in range(4):
        E(f"  ds_read_b128 v[{64+8*h}:{67+8*h}], v{M+11} offset:{LP+512*h}")
        E(f"  ds_read_b128 v[{68+8*h}:{71+8*h}], v{M+11} offset:{LP+512*h+16}")
    for h in range(4):
        E(f"  v_readlane_b32 s{68+h}, v{mx}, {h}")
        E(f"  v_readlane_b32 s{72+h}, v{ls}, {h}")
    E("  s_waitcnt lgkmcnt(0)")
    for h in range(4):
        mo, lo = 34+2*h, 35+2*h
        E(f"  v_max_f32 v44, s{68+h}, v{mo}")
        E(f"  v_sub_f32 v45, v{mo}, v44")
        E(f"  v_sub_f32 v46, s{68+h}, v44")
        E("  v_exp_f32 v45, v45")
        E("  v_exp_f32 v46, v46")
        E("  s_nop 0")
        E(f"  v_mul_f32 v{lo}, v{lo}, v45")
        E(f"  v_fma_f32 v{lo}, v46, s{72+h}, v{lo}")
        E(f"  v_mov_b32 v{mo}, v44")
        for j in range(8):
            E(f"  v_mul_f32 v{8*h+j}, v{8*h+j}, v46")
            E(f"  v_fmac_f32 v{8*h+j}, v{64+8*h+j}, v45")
    for h in range(4):
        E(f"  v_readfirstlane_b32 s{68+h}, v{34+2*h}")
        E(f"  v_readfirstlane_b32 s{72+h}, v{35+2*h}")
    E("  s_nop 3")
    for h in range(4):
        E(f"  v_writelane_b32 v{mx}, s{68+h}, {h}")
        E(f"  v_writelane_b32 v{ls}, s{72+h}, {h}")

def get_nonce(sfx):
    E("  s_waitcnt vmcnt(5)" if sfx == "a" else "  s_waitcnt vmcnt(0)")
    E("  v_mov_b32 v164, 0")
    E("  s_mov_b64 exec, 1")
    E(f"L_pollN{sfx}:")
    E("  v_readfirstlane_b32 s78, v168")
    E("  v_readfirstlane_b32 s79, v169")
    E("  s_and_b32 s68, s78, 1")
    E("  s_lshr_b32 s69, s79, 31")
    E("  s_and_b32 s68, s68, s69")
    E("  s_cmp_eq_u32 s68, 1")
    E(f"  s_cbranch_scc1 L_pollN{sfx}_done")
    spin_guard(f"L_pollN{sfx}_done")
    E(f"  buffer_load_dwordx2 v[168:169], v164, {S(SD)}, 0 offen sc1")
    E("  s_waitcnt vmcnt(0)")
    E(f"  s_branch L_pollN{sfx}")
    E(f"L_pollN{sfx}_done:")
    E("  s_mov_b64 exec, -1")
    E("  s_mul_i32 s68, s78, 0x9e3779b1")
    E("  s_mul_i32 s69, s78, 0x85ebca6b")
    E("  s_xor_b32 s69, s69, s79")
    E("  s_lshr_b32 s67, s68, 20")
    E("  v_mov_b32 v176, s67")
    E("  s_bfe_u32 s67, s68, 0xc0008")
    E("  v_mov_b32 v177, s67")
    E("  s_lshr_b32 s67, s69, 20")
    E("  v_mov_b32 v178, s67")
    E("  s_bfe_u32 s67, s69, 0xc0008")
    E("  v_mov_b32 v179, s67")
    E("  s_mov_b32 s67, 0xfffff000")

def claim():
    E(f"  v_mov_b32 v{M+14}, 1")
    E(f"  v_mov_b32 v{M+15}, 0")
    E("  s_mov_b64 exec, 1")
    E(f"  buffer_atomic_add v{M+14}, v{M+15}, {S(SW)}, s76 offen sc0 sc1")
    E("  s_mov_b64 exec, -1")

def wo_slot(dst):
    E(f"  s_and_b32 s{dst}, s62, 3")
    E(f"  s_mul_i32 s{dst}, s{dst}, {NT}")
    E("  s_lshl_b32 s68, s61, 3")
    E(f"  s_add_u32 s{dst}, s{dst}, s68")
    E("  s_lshr_b32 s68, s62, 2")
    E(f"  s_add_u32 s{dst}, s{dst}, s68")
def ffn_slot(dst):
    E(f"  s_and_b32 s{dst}, s2, 3")
    E(f"  s_mul_i32 s{dst}, s{dst}, {NT}")
    E("  s_lshr_b32 s68, s2, 2")
    E(f"  s_add_u32 s{dst}, s{dst}, s68")
    E(f"  s_add_u32 s{dst}, s{dst}, 64")

def kernel():
    name = NAME + "_kernel"
    E(f".globl {name}\n.p2align 8\n.type {name},@function\n{name}:")
    E("  s_cmp_ge_u32 s2, 256")
    E("  s_cbranch_scc1 L_end")
    E("  s_load_dwordx16 s[4:19], s[0:1], 0")
    E("  s_load_dwordx8 s[20:27], s[0:1], 64")
    E("  s_load_dwordx2 s[28:29], s[0:1], 96")
    if DIAG:
        for i in range(18): E(f"  s_mov_b32 s{84+i}, 0")
        E("  s_memrealtime s[84:85]")
    if os.environ.get("XABS"): E("  s_memrealtime s[98:99]")
    E(f"  v_mov_b32 v{tid}, v0")
    E(f"  v_and_b32 v{lane}, 63, v0")
    E(f"  v_lshrrev_b32 v{M+4}, 6, v0")
    E(f"  v_lshrrev_b32 v{g}, 4, v{lane}")
    E(f"  v_readfirstlane_b32 s60, v{M+4}")
    E(f"  v_and_b32 v{n}, 15, v{lane}")
    E("  s_mov_b32 s83, 0")
    E(f"  s_mov_b32 s{SELLO}, 0x05040100")
    E(f"  s_mov_b32 s{SELHI}, 0x07060302")
    E(f"  s_mov_b32 s82, {cbits:#x}")
    E("  s_lshr_b32 s61, s2, 3")
    E("  s_and_b32 s61, s61, 7")
    E("  s_lshr_b32 s63, s2, 6")
    E("  s_and_b32 s64, s2, 7")
    E("  s_lshl_b32 s62, s63, 3")
    E("  s_add_u32 s62, s62, s64")
    E("  s_lshl_b32 s65, s63, 3")
    E("  s_add_u32 s65, s65, s61")
    E("  s_lshl_b32 s66, s65, 21")
    E("  s_lshl_b32 s67, s64, 18")
    E("  s_add_u32 s66, s66, s67")
    E("  s_lshl_b32 s67, s60, 15")
    E("  s_add_u32 s66, s66, s67")
    E("  s_lshl_b32 s77, s60, 14")
    E(f"  s_add_u32 s77, s77, {VST}")
    E("  s_lshl_b32 s76, s65, 7")
    E(f"  s_add_u32 s76, s76, {CNT:#x}")
    E(f"  v_and_b32 v{vk}, 3, v{n}")
    E(f"  v_lshlrev_b32 v{vk}, 2, v{vk}")
    E(f"  v_lshrrev_b32 v{vv}, 2, v{n}")
    E(f"  v_add_u32 v{vk}, v{vk}, v{vv}")
    E(f"  v_lshlrev_b32 v{vk}, 8, v{vk}")
    E(f"  v_lshl_add_u32 v{vk}, v{g}, 4, v{vk}")
    E(f"  v_lshlrev_b32 v{vv}, 4, v{lane}")
    E(f"  v_mov_b32 v{M+8}, 0")
    E(f"  v_mov_b32 v{M+9}, {LFLAG}")
    E(f"  ds_write_b32 v{M+9}, v{M+8}")
    E(f"  ds_write_b32 v{M+9}, v{M+8} offset:16")
    E("  s_waitcnt lgkmcnt(0)")
    E("  s_barrier")
    srd(SK, 6, 0x4000000); srd(SV, 8, 0x4000000); srd(SW, 28, WS_BYTES)
    srd(SD, 26, 256); srd(SX, 4, 4096); srd(SO, 24, 4096)
    E("  s_cmp_eq_u32 s60, 0")
    E("  s_cbranch_scc1 L_stage1")
    E("  s_lshl_b32 s67, s2, 3")
    E("  s_add_u32 s67, s67, s60")
    E("  s_cmp_lg_u32 s67, 1")
    E("  s_cbranch_scc1 L_nopub")
    E("  s_memrealtime s[78:79]")
    E("  s_waitcnt lgkmcnt(0)")
    E("  s_or_b32 s78, s78, 1")
    E("  s_or_b32 s79, s79, 0x80000000")
    E("  v_mov_b32 v8, s78")
    E("  v_mov_b32 v9, s79")
    E("  v_mov_b32 v10, 0")
    E("  s_mov_b64 exec, 1")
    E(f"  buffer_store_dwordx2 v[8:9], v10, {S(SD)}, 0 offen sc1")
    E("  s_mov_b64 exec, -1")
    E("L_nopub:")
    lds_wait("fwait", LFLAG, 1, M+8)
    q = Q()
    for t in range(8): kload(q, t)
    vload(q, 0, VR); vload(q, 1, VR+32)
    vload_lds(q, 2); vload_lds(q, 3)
    E(f"  s_waitcnt vmcnt({PT})")
    E(f"  v_mov_b32 v{M+9}, {LPROG}")
    E(f"  v_mov_b32 v{M+8}, 1")
    E("  s_mov_b64 exec, 1")
    E(f"  ds_add_u32 v{M+9}, v{M+8}")
    E("  s_mov_b64 exec, -1")
    lds_wait("qwait", LFLAG, 2, M+8)
    stamp(1)
    def prefetch():
        stamp(3)
        E(f"  s_cmp_eq_u32 s60, {W_WO}")
        E("  s_cbranch_scc1 L_pf_wo")
        E(f"  s_cmp_eq_u32 s60, {W_FFN}")
        E("  s_cbranch_scc0 L_pf_done")
        E("  s_cmp_ge_u32 s2, 112")
        E("  s_cbranch_scc1 L_pf_done")
        srd(ST, 20, 0x1c0000)
        E("  s_lshr_b32 s68, s2, 2")
        E("  s_lshl_b32 s68, s68, 16")
        E("  s_and_b32 s69, s2, 3")
        E("  s_branch L_pf_go")
        E("L_pf_wo:")
        srd(ST, 12, 0x400000)
        E("  s_lshl_b32 s68, s61, 3")
        E("  s_lshr_b32 s69, s62, 2")
        E("  s_add_u32 s68, s68, s69")
        E("  s_lshl_b32 s68, s68, 16")
        E("  s_and_b32 s69, s62, 3")
        E("L_pf_go:")
        E("  s_lshl_b32 s69, s69, 8")
        E("  s_add_u32 s68, s68, s69")
        E(f"  v_lshlrev_b32 v{M+11}, 13, v{g}")
        E(f"  v_lshl_add_u32 v{M+11}, v{n}, 4, v{M+11}")
        for blk in range(2):
            for half in range(2):
                E(f"  s_add_u32 s69, s68, {blk*32768+half*4096}")
                for k4 in range(4):
                    r = VR + 32*blk + 4*(half*4+k4)
                    E(f"  buffer_load_dwordx4 v[{r}:{r+3}], v{M+11}, {S(ST)}, s69 offen offset:{1024*k4} {S1F}")
        E("L_pf_done:")
    body(q, 8, [VR, VR+32, KR, KR+32], pre_pv3=prefetch)
    write_partial()
    E(f"  s_cmp_lt_u32 s60, {NCL}")
    E("  s_cbranch_scc1 L_pool")
    E("L_w0done:")
    E(f"  s_cmp_eq_u32 s60, {W_ALL}")
    E("  s_cbranch_scc0 L_noall")
    E(f"  v_mov_b32 v0, {LNONCE}")
    E("  ds_read_b64 v[2:3], v0")
    E(f"  v_lshlrev_b32 v1, 7, v{lane}")
    E(f"  s_mov_b32 s68, {FL:#x}")
    E("  s_waitcnt lgkmcnt(0)")
    E("L_pollA:")
    for i in range(4):
        if i: E(f"  s_add_u32 s69, s68, {8192*i}")
        E(f"  buffer_load_dwordx2 v[{8+2*i}:{9+2*i}], v1, {S(SW)}, {'s69' if i else 's68'} offen sc1")
    E("  s_waitcnt vmcnt(0)")
    E("  v_xor_b32 v4, v8, v2")
    E("  v_xor_b32 v5, v9, v3")
    E("  v_or_b32 v4, v4, v5")
    for i in range(1, 4):
        E(f"  v_xor_b32 v5, v{8+2*i}, v2")
        E("  v_or_b32 v4, v4, v5")
        E(f"  v_xor_b32 v5, v{9+2*i}, v3")
        E("  v_or_b32 v4, v4, v5")
    E("  v_cmp_ne_u32 vcc, 0, v4")
    E("  s_nop 1")
    E("  s_cmp_eq_u64 vcc, 0")
    E("  s_cbranch_scc1 L_noall")
    spin_guard("L_noall")
    E("  s_sleep 4")
    E("  s_branch L_pollA")
    E("L_noall:")
    E("  s_barrier")
    E(f"  s_sub_u32 s67, s60, {W_CMB}")
    E("  s_cmp_ge_u32 s67, 2")
    E("  s_cbranch_scc1 L_nocomb")
    E(f"  v_subrev_u32 v1, {64*W_CMB}, v{tid}")
    E("  v_lshrrev_b32 v0, 5, v1")
    E("  v_lshlrev_b32 v2, 3, v0")
    E("  v_lshlrev_b32 v3, 4, v1")
    for w in range(8):
        E(f"  ds_read_b64 v[{8+2*w}:{9+2*w}], v2 offset:{LML+32*w}")
    for w in range(8):
        E(f"  ds_read_b128 v[{24+4*w}:{27+4*w}], v3 offset:{LP+2048*w}")
    E("  s_waitcnt lgkmcnt(8)")
    E("  v_max3_f32 v4, v8, v10, v12")
    E("  v_max3_f32 v4, v4, v14, v16")
    E("  v_max3_f32 v4, v4, v18, v20")
    E("  v_max_f32 v4, v4, v22")
    for w in range(8): E(f"  v_sub_f32 v{8+2*w}, v{8+2*w}, v4")
    for w in range(8): E(f"  v_exp_f32 v{8+2*w}, v{8+2*w}")
    E("  s_waitcnt lgkmcnt(0)")
    E("  v_mul_f32 v5, v8, v9")
    for e in range(4): E(f"  v_mul_f32 v{60+e}, v8, v{24+e}")
    for w in range(1, 8):
        E(f"  v_fmac_f32 v5, v{8+2*w}, v{9+2*w}")
        for e in range(4): E(f"  v_fmac_f32 v{60+e}, v{8+2*w}, v{24+4*w+e}")
    E("  v_min_u32 v4, 0xfffffffe, v4")
    E("  v_min_u32 v5, 0xfffffffe, v5")
    for e in range(4): E(f"  v_min_u32 v{60+e}, 0xfffffffe, v{60+e}")
    E("  s_lshl_b32 s67, s65, 5")
    E("  s_add_u32 s67, s67, s64")
    E("  s_mul_i32 s68, s67, 640")
    E(f"  s_add_u32 s68, s68, {AO:#x}")
    E("  v_and_b32 v1, 31, v1")
    E("  v_mul_u32_u24 v7, 5120, v0")
    E("  v_lshl_add_u32 v7, v1, 4, v7")
    E(f"  buffer_store_dwordx4 v[60:63], v7, {S(SW)}, s68 offen sc1")
    E("  s_mov_b32 exec_lo, 1")
    E("  s_mov_b32 exec_hi, 1")
    E(f"  buffer_store_dwordx2 v[4:5], v7, {S(SW)}, s68 offen offset:512 sc1")
    E("  s_mov_b64 exec, -1")
    E("L_nocomb:")
    stamp(4)
    E(f"  s_cmp_eq_u32 s60, {W_WO}")
    E("  s_cbranch_scc1 L_tail_wo")
    E(f"  s_cmp_eq_u32 s60, {W_FIN}")
    E("  s_cbranch_scc1 L_tail_fin")
    E(f"  s_cmp_eq_u32 s60, {W_FFN}")
    E("  s_cbranch_scc0 L_exit")
    E("  s_cmp_ge_u32 s2, 112")
    E("  s_cbranch_scc1 L_exit")
    E(f"  v_and_b32 v0, 3, v{n}")
    E(f"  v_lshrrev_b32 v1, 2, v{n}")
    E("  v_lshl_add_u32 v2, v1, 2, v0")
    E("  s_movk_i32 s67, 30720")
    E("  v_mul_lo_u32 v2, v2, s67")
    E(f"  v_lshl_add_u32 v2, v{g}, 4, v2")
    E("  s_lshr_b32 s68, s2, 2")
    E("  s_lshr_b32 s69, s68, 1")
    E("  s_lshl_b32 s69, s69, 9")
    E("  s_and_b32 s72, s68, 1")
    E("  s_lshl_b32 s72, s72, 7")
    E("  s_add_u32 s69, s69, s72")
    E("  s_add_u32 s69, s69, 16384")
    E("  s_add_u32 s72, s69, 7168")
    for blk in range(2):
        E(f"  buffer_load_dwordx4 v[{8+8*blk}:{11+8*blk}], v2, {S(SW)}, s69 offen offset:{64*blk}")
        E(f"  buffer_load_dwordx4 v[{12+8*blk}:{15+8*blk}], v2, {S(SW)}, s69 offen offset:{64*blk+256}")
        E(f"  buffer_load_dwordx4 v[{24+8*blk}:{27+8*blk}], v2, {S(SW)}, s72 offen offset:{64*blk}")
        E(f"  buffer_load_dwordx4 v[{28+8*blk}:{31+8*blk}], v2, {S(SW)}, s72 offen offset:{64*blk+256}")
    E("  v_lshlrev_b32 v3, 2, v0")
    E(f"  s_mov_b32 s73, {GOFF:#x}")
    E(f"  buffer_load_dword v4, v3, {S(SW)}, s73 offen")
    E("  s_waitcnt vmcnt(0)")
    for r in (4, 8):
        for i in range(32):
            E(f"  v_add_f32_dpp v{8+i}, v{8+i}, v{8+i} row_ror:{r} row_mask:0xf bank_mask:0xf")
    E("  v_sub_f32 v4, 1.0, v4")
    for i in range(16): E(f"  v_mul_f32 v{8+i}, 0xbfb8aa3b, v{8+i}")
    for i in range(16): E(f"  v_exp_f32 v{8+i}, v{8+i}")
    for i in range(16): E(f"  v_mul_f32 v{24+i}, v{24+i}, v4")
    for i in range(16): E(f"  v_add_f32 v{8+i}, 1.0, v{8+i}")
    for i in range(16): E(f"  v_rcp_f32 v{8+i}, v{8+i}")
    E("  s_nop 0")
    for i in range(16): E(f"  v_mul_f32 v{8+i}, v{8+i}, v{24+i}")
    for i in range(8): E(f"  v_cvt_pk_bf16_f32 v{40+i}, v{8+2*i}, v{9+2*i}")
    ffn_slot(69)
    E("  s_branch L_tail_mm")
    E("L_tail_wo:")
    E(f"  v_and_b32 v0, 3, v{n}")
    E(f"  v_lshrrev_b32 v1, 2, v{n}")
    E("  s_lshr_b32 s68, s62, 3")
    E("  s_lshl_b32 s69, s61, 2")
    E("  s_add_u32 s69, s69, s68")
    E("  s_mul_i32 s72, s69, 5120")
    E(f"  s_add_u32 s73, s72, {AO+512:#x}")
    E("  s_lshr_b32 s74, s62, 2")
    E("  s_and_b32 s74, s74, 1")
    E("  s_lshl_b32 s74, s74, 8")
    E("  s_add_u32 s72, s72, s74")
    E(f"  s_add_u32 s72, s72, {AO:#x}")
    E("  s_mov_b32 s75, 163840")
    E("  v_mul_lo_u32 v3, v0, s75")
    E("  v_mul_u32_u24 v2, 1280, v1")
    E("  v_add_u32 v2, v2, v3")
    E(f"  v_lshl_add_u32 v2, v{g}, 5, v2")
    E(f"  v_lshrrev_b32 v5, 2, v{lane}")
    E("  v_mul_u32_u24 v5, 640, v5")
    E("  v_add_u32 v5, v5, v3")
    E("  v_lshlrev_b32 v6, 2, v0")
    E(f"  s_mov_b32 s74, {GOFF:#x}")
    E(f"  buffer_load_dword v4, v6, {S(SW)}, s74 offen")
    E("  s_waitcnt vmcnt(0)")
    perm_all(VR, 64)
    perm_all(VR+32, 96)
    E("  s_mov_b32 exec_hi, 0")
    E("L_poll1a:")
    E(f"  buffer_load_dwordx2 v[56:57], v5, {S(SW)}, s73 offen sc1")
    E("  s_waitcnt vmcnt(0)")
    E("  v_max_u32 v7, v56, v57")
    E("  v_cmp_eq_u32 vcc, -1, v7")
    E("  s_nop 1")
    E("  s_cmp_eq_u64 vcc, 0")
    E("  s_cbranch_scc1 L_poll1a_done")
    spin_guard("L_poll1a_done")
    E(f"  s_sleep {SLP}")
    E("  s_branch L_poll1a")
    E("L_poll1a_done:")
    E("  s_mov_b64 exec, -1")
    E("L_poll1:")
    for s_ in range(2):
        for blk in range(2):
            r = 8 + 16*s_ + 8*blk
            E(f"  buffer_load_dwordx4 v[{r}:{r+3}], v2, {S(SW)}, s72 offen offset:{640*s_+128*blk} sc1")
            E(f"  buffer_load_dwordx4 v[{r+4}:{r+7}], v2, {S(SW)}, s72 offen offset:{640*s_+128*blk+16} sc1")
    E("  v_mov_b32 v40, v56")
    E("  s_nop 1")
    E("  v_max_f32_dpp v40, v40, v40 row_ror:4 row_mask:0xf bank_mask:0xf")
    E("  s_nop 1")
    E("  v_max_f32_dpp v40, v40, v40 row_ror:8 row_mask:0xf bank_mask:0xf")
    E("  v_mov_b32 v41, v40")
    E("  s_nop 1")
    E("  v_permlane16_swap_b32 v40, v41")
    E("  v_max_f32 v40, v40, v41")
    E("  v_sub_f32 v42, v56, v40")
    E("  v_exp_f32 v42, v42")
    E("  s_nop 0")
    E("  v_mul_f32 v43, v42, v57")
    E("  s_nop 1")
    E("  v_add_f32_dpp v43, v43, v43 row_ror:4 row_mask:0xf bank_mask:0xf")
    E("  s_nop 1")
    E("  v_add_f32_dpp v43, v43, v43 row_ror:8 row_mask:0xf bank_mask:0xf")
    E("  v_mov_b32 v41, v43")
    E("  s_nop 1")
    E("  v_permlane16_swap_b32 v43, v41")
    E("  v_add_f32 v43, v43, v41")
    E("  v_rcp_f32 v43, v43")
    E("  s_nop 0")
    E("  v_mul_f32 v42, v42, v43")
    E("  v_mul_f32 v42, v42, v4")
    E("  v_lshlrev_b32 v44, 3, v1")
    E("  v_add_u32 v44, v44, v0")
    E("  v_lshlrev_b32 v44, 2, v44")
    E("  v_add_u32 v45, 16, v44")
    E("  ds_bpermute_b32 v58, v44, v42")
    E("  ds_bpermute_b32 v59, v45, v42")
    E("  s_waitcnt vmcnt(0)")
    E("  v_max3_u32 v7, v8, v9, v10")
    i = 11
    while i < 40:
        if i + 1 < 40:
            E(f"  v_max3_u32 v7, v7, v{i}, v{i+1}"); i += 2
        else:
            E(f"  v_max_u32 v7, v7, v{i}"); i += 1
    E("  v_cmp_eq_u32 vcc, -1, v7")
    E("  s_waitcnt lgkmcnt(0)")
    E("  s_cmp_eq_u64 vcc, 0")
    E("  s_cbranch_scc1 L_poll1_done")
    spin_guard("L_poll1_done")
    E(f"  s_sleep {SLP}")
    E("  s_branch L_poll1")
    E("L_poll1_done:")
    stamp(5)
    for i in range(16): E(f"  v_mul_f32 v{8+i}, v{8+i}, v58")
    for i in range(16): E(f"  v_fmac_f32 v{8+i}, v{24+i}, v59")
    for r in (4, 8):
        for i in range(16):
            E(f"  v_add_f32_dpp v{8+i}, v{8+i}, v{8+i} row_ror:{r} row_mask:0xf bank_mask:0xf")
    for i in range(8): E(f"  v_cvt_pk_bf16_f32 v{40+i}, v{8+2*i}, v{9+2*i}")
    wo_slot(69)
    mfma_all(64, 40, SR, True)
    mfma_all(96, 44, SR, False)
    E("  s_branch L_tail_st")
    E("L_tail_mm:")
    E("  s_waitcnt vmcnt(0)")
    gemv_block(VR, 40, 96, SR, first=True)
    gemv_block(VR+32, 44, 96, SR, first=False)
    E("L_tail_st:")
    E("  s_lshl_b32 s69, s69, 11")
    E(f"  s_add_u32 s69, s69, {L2:#x}")
    E(f"  v_lshlrev_b32 v2, 4, v{n}")
    E(f"  v_cmp_gt_u32 vcc, 16, v{lane}")
    E("  s_nop 4")
    for i in range(32): E(f"  v_min_u32 v{SR+i}, 0xfffffffe, v{SR+i}")
    E("  s_and_saveexec_b64 s[70:71], vcc")
    for j in range(8):
        E(f"  buffer_store_dwordx4 v[{SR+4*j}:{SR+3+4*j}], v2, {S(SW)}, s69 offen offset:{256*j} sc1")
    E("  s_mov_b64 exec, s[70:71]")
    E(f"  s_cmp_eq_u32 s60, {W_WO}")
    E("  s_cbranch_scc0 L_noflag3")
    E(f"  v_mov_b32 v2, {LFLAG}")
    E("  v_mov_b32 v3, 3")
    E("  ds_write_b32 v2, v3")
    E("L_noflag3:")
    stamp(6)
    E("  s_branch L_exit")
    E("L_tail_fin:")
    E(f"  v_lshrrev_b32 v0, 1, v{lane}")
    E(f"  v_and_b32 v1, 1, v{lane}")
    E("  s_lshr_b32 s68, s2, 6")
    E(f"  s_mul_i32 s68, s68, {NT*2048}")
    E("  s_and_b32 s69, s2, 3")
    E("  s_lshl_b32 s69, s69, 9")
    E("  s_add_u32 s68, s68, s69")
    E("  s_lshr_b32 s69, s2, 2")
    E("  s_and_b32 s69, s69, 15")
    E("  s_lshl_b32 s69, s69, 4")
    E("  s_add_u32 s68, s68, s69")
    E(f"  s_add_u32 s68, s68, {L2:#x}")
    E("  v_lshlrev_b32 v2, 11, v0")
    E("  v_lshl_add_u32 v2, v1, 8, v2")
    E("  s_add_u32 s69, s68, 65536")
    E("  v_cmp_gt_u32 vcc, 28, v0")
    E("  v_add_u32 v3, 0x20000, v2")
    E("  s_nop 0")
    E("  v_cndmask_b32 v3, v2, v3, vcc")
    lds_wait("finwait", LFLAG, 3, 20)
    E("L_poll2:")
    E(f"  buffer_load_dwordx4 v[8:11], v2, {S(SW)}, s68 offen sc1")
    E(f"  buffer_load_dwordx4 v[12:15], v2, {S(SW)}, s69 offen sc1")
    E(f"  buffer_load_dwordx4 v[16:19], v3, {S(SW)}, s68 offen sc1")
    E("  s_waitcnt vmcnt(0)")
    E("  v_max3_u32 v7, v8, v9, v10")
    E("  v_max3_u32 v7, v7, v11, v12")
    E("  v_max3_u32 v7, v7, v13, v14")
    E("  v_max3_u32 v7, v7, v15, v16")
    E("  v_max3_u32 v7, v7, v17, v18")
    E("  v_max_u32 v7, v7, v19")
    E("  v_cmp_eq_u32 vcc, -1, v7")
    E("  s_nop 1")
    E("  s_cmp_eq_u64 vcc, 0")
    E("  s_cbranch_scc1 L_poll2_done")
    spin_guard("L_poll2_done")
    E(f"  s_sleep {SLP}")
    E("  s_branch L_poll2")
    E("L_poll2_done:")
    stamp(7)
    if os.environ.get("XABS"):
        E(f"  s_add_u32 s72, s98, {int(os.environ['XABS'])}")
        E("L_xa:")
        E("  s_memrealtime s[70:71]")
        E("  s_waitcnt lgkmcnt(0)")
        E("  s_sub_u32 s73, s70, s72")
        E("  s_cmp_lt_i32 s73, 0")
        E("  s_cbranch_scc1 L_xa")
    if os.environ.get("XNON"):
        E(f"  v_mov_b32 v20, {LNONCE}")
        E("  ds_read_b32 v21, v20")
        E("  s_waitcnt lgkmcnt(0)")
        E("  v_readfirstlane_b32 s72, v21")
        E(f"  s_add_u32 s72, s72, {int(os.environ['XNON'])}")
        E("L_xn:")
        E("  s_memrealtime s[70:71]")
        E("  s_waitcnt lgkmcnt(0)")
        E("  s_sub_u32 s73, s70, s72")
        E("  s_cmp_lt_i32 s73, 0")
        E("  s_cbranch_scc1 L_xn")
    if os.environ.get("XDELAY"):
        E("  s_memrealtime s[70:71]")
        E("  s_waitcnt lgkmcnt(0)")
        E(f"  s_add_u32 s72, s70, {int(os.environ['XDELAY'])}")
        E("L_xd:")
        E("  s_memrealtime s[70:71]")
        E("  s_waitcnt lgkmcnt(0)")
        E("  s_sub_u32 s73, s70, s72")
        E("  s_cmp_lt_i32 s73, 0")
        E("  s_cbranch_scc1 L_xd")
    E("  v_cmp_gt_u32 vcc, 28, v0")
    E("  s_nop 1")
    for i in range(4): E(f"  v_cndmask_b32 v{16+i}, 0, v{16+i}, vcc")
    for i in range(4): E(f"  v_add_f32 v{8+i}, v{8+i}, v{12+i}")
    for i in range(4): E(f"  v_add_f32 v{8+i}, v{8+i}, v{16+i}")
    for r in (2, 4, 8):
        E("  s_nop 1")
        for i in range(4):
            E(f"  v_add_f32_dpp v{8+i}, v{8+i}, v{8+i} row_ror:{r} row_mask:0xf bank_mask:0xf")
    for op in ("v_permlane16_swap_b32", "v_permlane32_swap_b32"):
        for i in range(4): E(f"  v_mov_b32 v{12+i}, v{8+i}")
        E("  s_nop 1")
        for i in range(4): E(f"  {op} v{8+i}, v{12+i}")
        for i in range(4): E(f"  v_add_f32 v{8+i}, v{8+i}, v{12+i}")
    E("  s_nop 1")
    for i in range(4):
        E(f"  v_mov_b32_dpp v{12+i}, v{8+i} quad_perm:[1,0,3,2] row_mask:0xf bank_mask:0xf")
    for i in range(4): E(f"  v_cvt_pk_bf16_f32 v{8+i}, v{8+i}, v{12+i}")
    E("  s_lshl_b32 s68, s2, 2")
    E("  v_mov_b32 v2, 0")
    E("  s_mov_b64 exec, 1")
    for i in range(4):
        E(f"  buffer_store_dword v{8+i}, v2, {S(SO)}, s68 offen offset:{1024*i}")
    E("  s_mov_b64 exec, -1")
    E("L_exit:")
    if DIAG == 9:
        E(f"  s_cmp_eq_u32 s60, {W_FIN}")
        E("  s_cbranch_scc0 L_end")
        E("  s_and_b32 s68, s2, 63")
        E("  s_cmp_lg_u32 s68, 0")
        E("  s_cbranch_scc1 L_end")
        E("  s_waitcnt lgkmcnt(0)")
        E("  s_lshr_b32 s68, s2, 6")
        E("  s_mul_i32 s68, s68, 12")
        E("  v_mov_b32 v2, 0")
        E("  s_mov_b64 exec, 1")
        E("  v_mov_b32 v8, s84")
        E("  v_mov_b32 v9, s92")
        E("  v_mov_b32 v10, s98")
        E(f"  buffer_store_dwordx3 v[8:10], v2, {S(SD)}, s68 offen offset:16")
    elif DIAG:
        E("  s_memrealtime s[100:101]")
        E("  s_waitcnt lgkmcnt(0)")
        E("  s_lshl_b32 s68, s2, 3")
        E("  s_add_u32 s68, s68, s60")
        E("  s_lshl_b32 s68, s68, 6")
        E(f"  s_add_u32 s68, s68, {DIAGOFF:#x}")
        for i in range(9): E(f"  v_mov_b32 v{8+i}, s{84+2*i}")
        E("  v_mov_b32 v2, 0")
        E("  s_mov_b64 exec, 1")
        E(f"  buffer_store_dwordx4 v[8:11], v2, {S(SW)}, s68 offen")
        E(f"  buffer_store_dwordx4 v[12:15], v2, {S(SW)}, s68 offen offset:16")
        E(f"  buffer_store_dword v16, v2, {S(SW)}, s68 offen offset:32")
    E("L_end:")
    E("  s_endpgm")

    E("L_pool:")
    lds_wait("pwait", LPROG, PG, M+8)
    E("L_pool_nogate:")
    claim()
    E("  s_waitcnt vmcnt(0)")
    E("L_claimed:")
    E(f"  v_readfirstlane_b32 s67, v{M+14}")
    E("  s_cmp_ge_u32 s67, 16")
    E("  s_cbranch_scc1 L_w0done")
    stamp(2)
    E("  s_lshl_b32 s66, s65, 21")
    E("  s_lshr_b32 s68, s67, 1")
    E("  s_lshl_b32 s68, s68, 18")
    E("  s_add_u32 s66, s66, s68")
    E("  s_and_b32 s68, s67, 1")
    E("  s_lshl_b32 s68, s68, 14")
    E("  s_add_u32 s66, s66, s68")
    q = Q()
    for t in range(4): kload(q, t)
    vload(q, 0, VR); vload(q, 1, VR+32)
    def post():
        E(f"  v_mov_b32 v{M+12}, {LPROG}")
        E(f"  ds_read_b32 v{M+13}, v{M+12}")
        E("  s_waitcnt lgkmcnt(0)")
        E(f"  v_readfirstlane_b32 s75, v{M+13}")
        E(f"  s_cmp_ge_u32 s75, {PG}")
        E("  s_cbranch_scc0 L_noahead")
        claim()
        E("L_noahead:")
    body(q, 4, [VR, VR+32], post_s=post)
    E("  s_waitcnt vmcnt(0)")
    E("  s_mov_b32 s66, s75")
    merge_old()
    write_partial()
    E(f"  s_cmp_ge_u32 s66, {PG}")
    E("  s_cbranch_scc1 L_claimed")
    E("  s_branch L_pool")

    E("L_stage1:")
    E("  s_setprio 3")
    E("  s_cmp_ge_u32 s62, 4")
    E("  s_cbranch_scc1 L_s1_nocnt")
    E("  s_lshl_b32 s68, s62, 3")
    E("  s_add_u32 s68, s68, s61")
    E("  s_lshl_b32 s68, s68, 7")
    E(f"  s_add_u32 s68, s68, {CNT:#x}")
    E("  v_mov_b32 v172, 0")
    E("  s_mov_b64 exec, 1")
    E(f"  buffer_store_dword v172, v172, {S(SW)}, s68 offen sc1")
    E("  s_mov_b64 exec, -1")
    E("L_s1_nocnt:")
    E("  s_cmp_ge_u32 s62, 30")
    E("  s_cbranch_scc1 L_s1_clr")
    E("  s_cmp_ge_u32 s62, 16")
    E("  s_cbranch_scc1 L_s1_ffn")
    srd(ST, 10, 0x400000)
    E("  s_movk_i32 s72, 8192")
    E("  s_lshl_b32 s68, s61, 2")
    E("  s_lshr_b32 s69, s62, 2")
    E("  s_add_u32 s68, s68, s69")
    E("  s_and_b32 s73, s62, 3")
    E("  s_lshl_b32 s74, s68, 8")
    E("  s_lshl_b32 s75, s68, 9")
    E("  s_branch L_s1_go")
    E("L_s1_ffn:")
    E("  s_mul_i32 s68, s61, 14")
    E("  s_add_u32 s68, s68, s62")
    E("  s_sub_u32 s68, s68, 16")
    E("  s_and_b32 s73, s68, 3")
    E("  s_lshr_b32 s68, s68, 2")
    E("  s_movk_i32 s72, 3584")
    E("  s_lshl_b32 s75, s68, 9")
    E("  s_add_u32 s75, s75, 16384")
    E("  s_cmp_ge_u32 s68, 14")
    E(f"  s_cselect_b32 s{ST}, s18, s16")
    E(f"  s_cselect_b32 s{ST+1}, s19, s17")
    E("  s_cselect_b32 s69, 14, 0")
    E(f"  s_and_b32 s{ST+1}, s{ST+1}, 0xffff")
    E(f"  s_mov_b32 s{ST+2}, 0x1c0000")
    E(f"  s_mov_b32 s{ST+3}, 0x00020000")
    E("  s_sub_u32 s68, s68, s69")
    E("  s_lshl_b32 s74, s68, 8")
    E("L_s1_go:")
    E("  s_lshl_b32 s68, s73, 7")
    E(f"  v_lshlrev_b32 v164, 3, v{g}")
    E("  v_add_u32 v164, s68, v164")
    E(f"  v_and_b32 v165, 3, v{n}")
    E("  v_lshlrev_b32 v165, 10, v165")
    E("  v_lshl_add_u32 v165, v164, 1, v165")
    E("  v_mul_lo_u32 v166, v164, s72")
    E(f"  v_lshl_add_u32 v166, v{n}, 4, v166")
    E("  v_add_u32 v166, s74, v166")
    E("  s_mov_b32 s69, 0")
    E("  s_mul_i32 s67, s72, 24")
    for blk in range(4):
        E(f"  buffer_load_dwordx4 v[{128+4*blk}:{131+4*blk}], v165, {S(SX)}, 0 offen offset:{64*blk}")
        for kk in range(8):
            r = 32*blk + 4*kk
            E(f"  buffer_load_dwordx4 v[{r}:{r+3}], v166, {S(ST)}, s69 offen {S1F}")
            E("  s_add_u32 s69, s69, s72")
        if blk < 3: E("  s_add_u32 s69, s69, s67")
    E("L_s1_clr:")
    E(f"  v_mov_b32 v170, {LFLAG}")
    E("  v_mov_b32 v171, 1")
    E("  ds_write_b32 v170, v171")
    E("  v_mov_b32 v172, 0")
    E("  s_mov_b64 exec, 1")
    E(f"  buffer_load_dwordx2 v[168:169], v172, {S(SD)}, 0 offen sc1")
    E("  s_mov_b64 exec, -1")
    for i in range(4): E(f"  v_mov_b32 v{160+i}, -1")
    E("  s_lshl_b32 s67, s65, 5")
    E("  s_add_u32 s67, s67, s64")
    E("  s_mul_i32 s68, s67, 640")
    E(f"  s_add_u32 s68, s68, {AO:#x}")
    E(f"  v_mul_u32_u24 v172, 5120, v{g}")
    E(f"  v_lshl_add_u32 v172, v{n}, 4, v172")
    E(f"  buffer_store_dwordx4 v[160:163], v172, {S(SW)}, s68 offen sc1")
    E(f"  buffer_store_dwordx4 v[160:163], v172, {S(SW)}, s68 offen offset:256 sc1")
    E("  s_mov_b32 exec_lo, 0x00010001")
    E("  s_mov_b32 exec_hi, 0x00010001")
    E(f"  buffer_store_dwordx2 v[160:161], v172, {S(SW)}, s68 offen offset:512 sc1")
    E("  s_mov_b64 exec, -1")
    wo_slot(69)
    E("  s_lshl_b32 s69, s69, 11")
    E(f"  s_add_u32 s69, s69, {L2:#x}")
    E(f"  v_lshlrev_b32 v172, 4, v{lane}")
    E(f"  buffer_store_dwordx4 v[160:163], v172, {S(SW)}, s69 offen sc1")
    E(f"  buffer_store_dwordx4 v[160:163], v172, {S(SW)}, s69 offen offset:1024 sc1")
    NCLR = 5
    E("  s_cmp_ge_u32 s2, 112")
    E("  s_cbranch_scc1 L_s1_noffnclr")
    ffn_slot(69)
    E("  s_lshl_b32 s69, s69, 11")
    E(f"  s_add_u32 s69, s69, {L2:#x}")
    E(f"  buffer_store_dwordx4 v[160:163], v172, {S(SW)}, s69 offen sc1")
    E(f"  buffer_store_dwordx4 v[160:163], v172, {S(SW)}, s69 offen offset:1024 sc1")
    E("L_s1_noffnclr:")
    E("  s_cmp_ge_u32 s62, 30")
    E("  s_cbranch_scc1 L_s1_gate")
    for blk in range(4):
        E(f"  s_waitcnt vmcnt({9*(3-blk)+6})")
        gemv_block(32*blk, 128+4*blk, 144, 192, first=(blk == 0))
    stamp(1, 2)
    get_nonce("a")
    for b in range(4):
        for j in range(8):
            E(f"  v_and_or_b32 v{8*b+j}, v{192+4*j+b}, s67, v{176+(j&3)}")
    E("  s_mul_i32 s68, s73, 122880")
    E("  s_add_u32 s68, s68, s75")
    E(f"  v_lshlrev_b32 v164, 4, v{n}")
    E("  s_mov_b64 exec, 0xffff")
    for b in range(4):
        E(f"  buffer_store_dwordx4 v[{8*b}:{8*b+3}], v164, {S(SW)}, s68 offen sc1")
        E(f"  buffer_store_dwordx4 v[{8*b+4}:{8*b+7}], v164, {S(SW)}, s68 offen offset:256 sc1")
        if b < 3: E("  s_add_u32 s68, s68, 30720")
    E("  s_mov_b64 exec, -1")
    E("  s_branch L_s1_signal")
    E("L_s1_gate:")
    E("  s_cmp_lg_u32 s2, 198")
    E("  s_cbranch_scc1 L_s1_signal0")
    srd(ST, 22, 1024)
    E(f"  v_lshlrev_b32 v164, 4, v{lane}")
    E(f"  buffer_load_dwordx4 v[16:19], v164, {S(ST)}, 0 offen")
    for b in range(4):
        E(f"  buffer_load_dwordx4 v[{4*b}:{4*b+3}], v164, {S(SX)}, 0 offen offset:{1024*b}")
    E("  s_waitcnt vmcnt(0)")
    for b in range(4): E(f"  v_mov_b32 v{24+b}, 0")
    for c in range(4):
        E(f"  v_lshlrev_b32 v20, 16, v{16+c}")
        E(f"  v_and_b32 v21, 0xffff0000, v{16+c}")
        for b in range(4):
            E(f"  v_lshlrev_b32 v22, 16, v{4*b+c}")
            E(f"  v_and_b32 v23, 0xffff0000, v{4*b+c}")
            E(f"  v_fmac_f32 v{24+b}, v20, v22")
            E(f"  v_fmac_f32 v{24+b}, v21, v23")
    for r in (8, 4, 2, 1):
        E("  s_nop 1")
        for b in range(4):
            E(f"  v_add_f32_dpp v{24+b}, v{24+b}, v{24+b} row_ror:{r} row_mask:0xf bank_mask:0xf")
    for op in ("v_permlane16_swap_b32", "v_permlane32_swap_b32"):
        for i in range(4): E(f"  v_mov_b32 v{28+i}, v{24+i}")
        E("  s_nop 1")
        for i in range(4): E(f"  {op} v{24+i}, v{28+i}")
        for i in range(4): E(f"  v_add_f32 v{24+i}, v{24+i}, v{28+i}")
    for i in range(4): E(f"  v_mul_f32 v{24+i}, 0xbfb8aa3b, v{24+i}")
    for i in range(4): E(f"  v_exp_f32 v{24+i}, v{24+i}")
    E("  s_nop 0")
    for i in range(4): E(f"  v_add_f32 v{24+i}, 1.0, v{24+i}")
    for i in range(4): E(f"  v_rcp_f32 v{24+i}, v{24+i}")
    E(f"  s_mov_b32 s68, {GOFF:#x}")
    E("  v_mov_b32 v164, 0")
    E("  s_mov_b64 exec, 1")
    E(f"  buffer_store_dwordx4 v[24:27], v164, {S(SW)}, s68 offen sc1")
    E("  s_mov_b64 exec, -1")
    E("L_s1_signal0:")
    get_nonce("b")
    E("L_s1_signal:")
    E(f"  v_and_b32 v164, 3, v{lane}")
    E("  s_mov_b32 s68, 122880")
    E("  v_mul_lo_u32 v164, v164, s68")
    E(f"  v_lshrrev_b32 v165, 2, v{lane}")
    E("  v_lshl_add_u32 v164, v165, 9, v164")
    E("  s_mul_i32 s68, s63, 30720")
    E("  s_lshl_b32 s69, s61, 11")
    E("  s_add_u32 s68, s68, s69")
    E("  s_mov_b32 s72, 0")
    E("  s_mov_b64 exec, 0xffff")
    E("L_poll0:")
    E(f"  buffer_load_dwordx4 v[180:183], v164, {S(SW)}, s68 offen offset:496 sc1")
    E("  s_waitcnt vmcnt(0)")
    E("  s_cmp_lg_u32 s72, 0")
    E("  s_cbranch_scc1 L_noflagst")
    stamp(2, 2)
    E("  s_mov_b32 s72, 1")
    E("  s_lshl_b32 s69, s2, 7")
    E(f"  s_add_u32 s69, s69, {FL:#x}")
    E("  v_mov_b32 v165, 0")
    E("  s_mov_b64 exec, 1")
    E(f"  buffer_store_dwordx2 v[168:169], v165, {S(SW)}, s69 offen sc1")
    E("  s_mov_b64 exec, 0xffff")
    E("L_noflagst:")
    E("  v_xor_b32 v184, v180, v176")
    for i in range(1, 4):
        E(f"  v_xor_b32 v185, v{180+i}, v{176+i}")
        E("  v_or_b32 v184, v184, v185")
    E("  v_and_b32 v184, 0xfff, v184")
    E("  v_cmp_ne_u32 vcc, 0, v184")
    E("  s_nop 1")
    E("  s_cmp_eq_u64 vcc, 0")
    E("  s_cbranch_scc1 L_poll0_done")
    spin_guard("L_poll0_done")
    E("  s_branch L_poll0")
    E("L_poll0_done:")
    E("  s_mov_b64 exec, -1")
    stamp(3, 2)
    E(f"  v_lshlrev_b32 v164, 9, v{g}")
    E(f"  v_lshl_add_u32 v164, v{n}, 4, v164")
    E("L_gath:")
    E("  s_mov_b32 s69, s68")
    for kq in range(4):
        E(f"  buffer_load_dwordx4 v[{8*kq}:{8*kq+3}], v164, {S(SW)}, s69 offen sc1")
        E(f"  buffer_load_dwordx4 v[{8*kq+4}:{8*kq+7}], v164, {S(SW)}, s69 offen offset:256 sc1")
        if kq < 3: E("  s_add_u32 s69, s69, 122880")
    E("  s_waitcnt vmcnt(0)")
    E("  v_xor_b32 v184, v0, v176")
    for i in range(1, 32):
        E(f"  v_xor_b32 v185, v{i}, v{176+(i&3)}")
        E("  v_or_b32 v184, v184, v185")
    E("  v_and_b32 v184, 0xfff, v184")
    E("  v_cmp_ne_u32 vcc, 0, v184")
    E("  s_nop 1")
    E("  s_cmp_eq_u64 vcc, 0")
    E("  s_cbranch_scc1 L_gath_done")
    spin_guard("L_gath_done")
    E("  s_branch L_gath")
    E("L_gath_done:")
    stamp(4, 2)
    for i in range(8):
        E(f"  v_add_f32 v{i}, v{i}, v{8+i}")
        E(f"  v_add_f32 v{16+i}, v{16+i}, v{24+i}")
    for i in range(8): E(f"  v_add_f32 v{i}, v{i}, v{16+i}")
    for i in range(4): E(f"  v_cvt_pk_bf16_f32 v{32+i}, v{2*i}, v{2*i+1}")
    E(f"  v_lshlrev_b32 v164, 4, v{lane}")
    E(f"  ds_write_b128 v164, v[32:35] offset:{LQ}")
    E(f"  v_mov_b32 v164, {LNONCE}")
    E("  v_mov_b32 v166, s78")
    E("  v_mov_b32 v167, s79")
    E("  ds_write_b64 v164, v[166:167]")
    E("  s_waitcnt lgkmcnt(0)")
    E(f"  v_mov_b32 v164, {LFLAG}")
    E("  v_mov_b32 v165, 2")
    E("  ds_write_b32 v164, v165")
    E("  s_setprio 0")
    for i in range(4): E(f"  v_mov_b32 v{i}, 0")
    E(f"  v_lshlrev_b32 v164, 5, v{lane}")
    E(f"  ds_write_b128 v164, v[0:3] offset:{LP}")
    E(f"  ds_write_b128 v164, v[0:3] offset:{LP+16}")
    E("  v_mov_b32 v0, 0xf149f2ca")
    E(f"  v_and_b32 v164, 3, v{lane}")
    E("  v_lshlrev_b32 v164, 3, v164")
    E(f"  ds_write_b64 v164, v[0:1] offset:{LML}")
    E("  s_waitcnt lgkmcnt(0)")
    E("  s_branch L_pool_nogate" if EARLY else "  s_branch L_pool")

    E(f""".section .rodata,"a"
.p2align 6
.amdhsa_kernel {name}
  .amdhsa_next_free_vgpr 256
  .amdhsa_next_free_sgpr 102
  .amdhsa_accum_offset 256
  .amdhsa_group_segment_fixed_size 0
  .amdhsa_kernarg_size 104
  .amdhsa_user_sgpr_count 2
  .amdhsa_user_sgpr_kernarg_segment_ptr 1
  .amdhsa_system_sgpr_workgroup_id_x 1
.end_amdhsa_kernel""")

E(HEADER.rstrip())
E(f"; @launch grid=(256,1,1) block=(512,1,1) lds={LDS_BYTES}")
E('.amdgcn_target "amdgcn-amd-amdhsa--gfx950"')
E(".text")
kernel()
open(sys.argv[1], "w").write("\n".join(out) + "\n")
```

```python
import sys, os
KVF = os.environ.get("KVF", "")
NAME = "gated_mix__gqa_block_cached__glu_gated_glu__decode"
out = []
def E(s=""): out.append(s)

P1 = 0x0
GOFF = 0x80000
AO = 0x100000
AML = 0x180000
CP = 0x200000
WS_BYTES = 0x10000000

HEADER = open("cdna_kernels/" + NAME + ".s.ref").read().split("; Override launch")[0]

def srd(d, b, nbytes):
    E(f"  s_mov_b32 s{d}, s{b}")
    E(f"  s_and_b32 s{d+1}, s{b+1}, 0xffff")
    E(f"  s_mov_b32 s{d+2}, {nbytes:#x}")
    E(f"  s_mov_b32 s{d+3}, 0x00020000")

def kstart(name):
    E(f".globl {name}")
    E(".p2align 8")
    E(f".type {name},@function")
    E(f"{name}:")

def kdesc(name, vgpr, sgpr=102):
    E(".section .rodata,\"a\"")
    E(".p2align 6")
    E(f".amdhsa_kernel {name}")
    E(f"  .amdhsa_next_free_vgpr {vgpr}")
    E(f"  .amdhsa_next_free_sgpr {sgpr}")
    E(f"  .amdhsa_accum_offset {(vgpr+3)//4*4}")
    E("  .amdhsa_group_segment_fixed_size 0")
    E("  .amdhsa_kernarg_size 104")
    E("  .amdhsa_user_sgpr_count 2")
    E("  .amdhsa_user_sgpr_kernarg_segment_ptr 1")
    E("  .amdhsa_system_sgpr_workgroup_id_x 1")
    E(".end_amdhsa_kernel")
    E(".text")

def gemv_block(W, A, T, ACC, SELLO, SELHI, first=True):
    def perms(j):
        c = j >> 1
        sel = SELHI if (j & 1) else SELLO
        t = T + 4 * (j & 1)
        for i in range(4):
            E(f"  v_perm_b32 v{t+i}, v{W+4*(2*i+1)+c}, v{W+4*(2*i)+c}, s{sel}")
    def mfma(j):
        t = T + 4 * (j & 1)
        a = ACC + 4 * j
        c = "0" if first else f"v[{a}:{a+3}]"
        E(f"  v_mfma_f32_16x16x32_bf16 v[{a}:{a+3}], v[{A}:{A+3}], v[{t}:{t+3}], {c}")
    perms(0)
    for j in range(8):
        if j + 1 < 8:
            perms(j + 1)
        else:
            E("  s_nop 1")
        mfma(j)

def kernelA():
    kstart("kA_kernel")
    E("  s_cmp_ge_u32 s2, 241")
    E("  s_cbranch_scc1 kA_end")
    E("  s_load_dwordx2 s[4:5], s[0:1], 0")
    E("  s_load_dwordx2 s[6:7], s[0:1], 24")
    E("  s_load_dwordx2 s[8:9], s[0:1], 48")
    E("  s_load_dwordx2 s[10:11], s[0:1], 56")
    E("  s_load_dwordx2 s[12:13], s[0:1], 72")
    E("  s_load_dwordx2 s[14:15], s[0:1], 96")
    E("  v_and_b32 v1, 63, v0")
    E("  v_lshrrev_b32 v2, 6, v0")
    E("  v_lshrrev_b32 v3, 4, v1")
    E("  v_readfirstlane_b32 s16, v2")
    E("  v_and_b32 v4, 15, v1")
    E("  s_mov_b32 s44, 0x05040100")
    E("  s_mov_b32 s45, 0x07060302")
    E("  s_waitcnt lgkmcnt(0)")
    srd(20, 4, 4096)
    srd(24, 14, WS_BYTES)
    E("  s_cmp_eq_u32 s2, 240")
    E("  s_cbranch_scc1 kA_gate")
    E("  s_lshr_b32 s17, s2, 2")
    E("  s_and_b32 s18, s2, 3")
    E("  s_mov_b32 s28, s6")
    E("  s_mov_b32 s29, s7")
    E("  s_mov_b32 s30, 0x400000")
    E("  s_mov_b32 s19, 8192")
    E("  s_mov_b32 s32, s17")
    E("  s_cmp_ge_u32 s17, 32")
    E("  s_cselect_b32 s28, s8, s28")
    E("  s_cselect_b32 s29, s9, s29")
    E("  s_cselect_b32 s30, 0x1c0000, s30")
    E("  s_cselect_b32 s19, 3584, s19")
    E("  s_cselect_b32 s33, 32, 0")
    E("  s_cmp_ge_u32 s17, 46")
    E("  s_cselect_b32 s28, s10, s28")
    E("  s_cselect_b32 s29, s11, s29")
    E("  s_cselect_b32 s33, 46, s33")
    E("  s_sub_u32 s32, s17, s33")
    E("  s_and_b32 s29, s29, 0xffff")
    E("  s_mov_b32 s31, 0x00020000")
    E("  s_lshl_b32 s34, s18, 7")
    E("  s_lshl_b32 s35, s16, 5")
    E("  s_add_u32 s34, s34, s35")
    E("  v_lshlrev_b32 v5, 3, v3")
    E("  v_add_u32 v5, s34, v5")
    E("  v_and_b32 v6, 3, v4")
    E("  v_lshlrev_b32 v6, 10, v6")
    E("  v_lshl_add_u32 v6, v5, 1, v6")
    E("  buffer_load_dwordx4 v[8:11], v6, s[20:23], 0 offen")
    E("  v_mul_lo_u32 v7, v5, s19")
    E("  s_lshl_b32 s36, s32, 8")
    E("  v_lshl_add_u32 v7, v4, 4, v7")
    E("  v_add_u32 v7, s36, v7")
    E("  s_mov_b32 s37, 0")
    for kk in range(8):
        E(f"  buffer_load_dwordx4 v[{16+4*kk}:{19+4*kk}], v7, s[28:31], s37 offen")
        if kk < 7: E("  s_add_u32 s37, s37, s19")
    E("  s_waitcnt vmcnt(0)")
    gemv_block(16, 8, 48, 64, 44, 45)
    E("  s_lshl_b32 s38, s16, 11")
    E("  v_lshlrev_b32 v5, 7, v4")
    E("  v_add_u32 v5, s38, v5")
    E("  v_cmp_gt_u32 vcc, 16, v1")
    E("  s_nop 4")
    E("  s_and_saveexec_b64 s[40:41], vcc")
    for j in range(8):
        E(f"  ds_write_b128 v5, v[{64+4*j}:{67+4*j}] offset:{16*j}")
    E("  s_mov_b64 exec, s[40:41]")
    E("  s_waitcnt lgkmcnt(0)")
    E("  s_barrier")
    E("  v_lshlrev_b32 v5, 3, v0")
    for w in range(4):
        E(f"  ds_read_b64 v[{8+2*w}:{9+2*w}], v5 offset:{2048*w}")
    E("  s_mul_i32 s38, s18, 122880")
    E("  s_lshl_b32 s39, s17, 9")
    E("  s_add_u32 s38, s38, s39")
    E("  v_and_b32 v6, 1, v0")
    E("  v_mul_u32_u24 v6, 61440, v6")
    E("  v_lshrrev_b32 v7, 1, v0")
    E("  v_lshl_add_u32 v6, v7, 2, v6")
    E("  v_add_u32 v7, 30720, v6")
    E("  s_waitcnt lgkmcnt(0)")
    E("  v_add_f32 v8, v8, v10")
    E("  v_add_f32 v9, v9, v11")
    E("  v_add_f32 v12, v12, v14")
    E("  v_add_f32 v13, v13, v15")
    E("  v_add_f32 v8, v8, v12")
    E("  v_add_f32 v9, v9, v13")
    E("  buffer_store_dword v8, v6, s[24:27], s38 offen")
    E("  buffer_store_dword v9, v7, s[24:27], s38 offen")
    E("  s_endpgm")
    E("kA_gate:")
    E("  s_memrealtime s[60:61]")
    E("  s_waitcnt lgkmcnt(0)")
    E("  v_mov_b32 v30, s60")
    E("  v_mov_b32 v31, 0")
    E("  s_mov_b32 s62, 0x3f0000")
    E("  buffer_store_dword v30, v31, s[24:27], s62 offen")
    srd(28, 12, 1024)
    E("  v_lshlrev_b32 v5, 4, v1")
    E("  s_lshl_b32 s34, s16, 10")
    E("  buffer_load_dwordx4 v[8:11], v5, s[20:23], s34 offen")
    E("  buffer_load_dwordx4 v[12:15], v5, s[28:31], 0 offen")
    E("  s_waitcnt vmcnt(0)")
    E("  v_mov_b32 v20, 0")
    for c in range(4):
        E(f"  v_lshlrev_b32 v16, 16, v{8+c}")
        E(f"  v_lshlrev_b32 v17, 16, v{12+c}")
        E(f"  v_and_b32 v18, 0xffff0000, v{8+c}")
        E(f"  v_and_b32 v19, 0xffff0000, v{12+c}")
        E("  v_fmac_f32 v20, v16, v17")
        E("  v_fmac_f32 v20, v18, v19")
    for r in (8, 4, 2, 1):
        E("  s_nop 1")
        E(f"  v_add_f32_dpp v20, v20, v20 row_ror:{r} row_mask:0xf bank_mask:0xf")
    E("  v_mov_b32 v21, v20")
    E("  s_nop 1")
    E("  v_permlane16_swap_b32 v20, v21")
    E("  v_add_f32 v20, v20, v21")
    E("  v_mov_b32 v21, v20")
    E("  s_nop 1")
    E("  v_permlane32_swap_b32 v20, v21")
    E("  v_add_f32 v20, v20, v21")
    E("  v_mul_f32 v20, 0xbfb8aa3b, v20")
    E("  v_exp_f32 v20, v20")
    E("  s_nop 0")
    E("  v_add_f32 v20, 1.0, v20")
    E("  v_rcp_f32 v20, v20")
    E("  s_lshl_b32 s34, s16, 2")
    E(f"  s_add_u32 s34, s34, {GOFF:#x}")
    E("  v_mov_b32 v5, 0")
    E("  v_cmp_eq_u32 vcc, 0, v1")
    E("  s_nop 1")
    E("  s_and_saveexec_b64 s[40:41], vcc")
    E("  buffer_store_dword v20, v5, s[24:27], s34 offen")
    E("kA_end:")
    E("  s_endpgm")
    kdesc("kA_kernel", 96)

def kernelB():
    KR = 0
    VR = 128
    SR = 192
    QR = 224
    M = 240
    kstart("kB_kernel")
    E("  s_cmp_ge_u32 s2, 256")
    E("  s_cbranch_scc1 kB_end")
    E("  s_load_dwordx2 s[4:5], s[0:1], 8")
    E("  s_load_dwordx2 s[6:7], s[0:1], 16")
    E("  s_load_dwordx2 s[14:15], s[0:1], 96")
    tid, lane, g, n = M, M+1, M+2, M+3
    E(f"  v_mov_b32 v{tid}, v0")
    E(f"  v_and_b32 v{lane}, 63, v0")
    E(f"  v_lshrrev_b32 v{M+4}, 6, v0")
    E(f"  v_lshrrev_b32 v{g}, 4, v{lane}")
    E(f"  v_readfirstlane_b32 s16, v{M+4}")
    E(f"  v_and_b32 v{n}, 15, v{lane}")
    E("  s_mov_b32 s44, 0x05040100")
    E("  s_mov_b32 s45, 0x07060302")
    E("  s_lshr_b32 s17, s2, 3")
    E("  s_and_b32 s18, s2, 7")
    E("  s_lshr_b32 s19, s17, 3")
    E("  s_and_b32 s32, s17, 7")
    E("  s_mul_i32 s33, s19, 30720")
    E("  s_lshl_b32 s34, s32, 11")
    E("  s_add_u32 s33, s33, s34")
    E("  s_lshl_b32 s35, s17, 21")
    E("  s_lshl_b32 s36, s18, 18")
    E("  s_add_u32 s35, s35, s36")
    E("  s_lshl_b32 s36, s16, 15")
    E("  s_add_u32 s35, s35, s36")
    vq, vk, vv = M+5, M+6, M+7
    E(f"  v_lshlrev_b32 v{vq}, 2, v{tid}")
    E(f"  v_lshlrev_b32 v{vk}, 8, v{n}")
    E(f"  v_lshl_add_u32 v{vk}, v{g}, 4, v{vk}")
    E(f"  v_lshlrev_b32 v{vv}, 10, v{g}")
    E(f"  v_lshl_add_u32 v{vv}, v{n}, 4, v{vv}")
    E("  s_waitcnt lgkmcnt(0)")
    srd(20, 4, 0x4000000)
    srd(24, 6, 0x4000000)
    srd(28, 14, WS_BYTES)
    q = []
    def ld(name): q.append(name)
    def wait_for(name):
        idx = max(i for i, x in enumerate(q) if x == name)
        nleft = len(q) - 1 - idx
        E(f"  s_waitcnt vmcnt({nleft})")
        del q[:idx+1]
    for ks in range(4):
        E(f"  buffer_load_dword v{M+8+ks}, v{vq}, s[28:31], s33 offen")
        ld("q")
        if ks < 3: E("  s_add_u32 s33, s33, 122880")
    def kload(t):
        E(f"  s_add_u32 s37, s35, {t*4096}")
        for j in range(4):
            r = KR + 16*t + 4*j
            E(f"  buffer_load_dwordx4 v[{r}:{r+3}], v{vk}, s[20:23], s37 offen offset:{64*j} {KVF}")
            ld(f"k{t}")
    def vload(t, base):
        for half in range(2):
            E(f"  s_add_u32 s37, s35, {t*8192+half*4096}")
            for k4 in range(4):
                r = base + 4*(half*4+k4)
                E(f"  buffer_load_dwordx4 v[{r}:{r+3}], v{vv}, s[24:27], s37 offen offset:{256*k4} {KVF}")
                ld(f"v{t}")
    for t in range(8): kload(t)
    vload(0, VR); vload(1, VR+32)
    wait_for("q")
    E(f"  v_add_f32 v{M+8}, v{M+8}, v{M+9}")
    E(f"  v_add_f32 v{M+10}, v{M+10}, v{M+11}")
    E(f"  v_add_f32 v{M+8}, v{M+8}, v{M+10}")
    E(f"  v_cvt_pk_bf16_f32 v{M+8}, v{M+8}, v{M+8}")
    E(f"  v_lshlrev_b32 v{M+9}, 1, v{tid}")
    E(f"  ds_write_b16 v{M+9}, v{M+8}")
    E(f"  v_and_b32 v{M+9}, 3, v{n}")
    E(f"  v_lshlrev_b32 v{M+9}, 8, v{M+9}")
    E(f"  v_lshl_add_u32 v{M+9}, v{g}, 4, v{M+9}")
    E("  s_waitcnt lgkmcnt(0)")
    E("  s_barrier")
    for j in range(4):
        E(f"  ds_read_b128 v[{QR+4*j}:{QR+4*j+3}], v{M+9} offset:{64*j}")
    E("  s_waitcnt lgkmcnt(0)")
    for t in range(8):
        wait_for(f"k{t}")
        s = SR + 4*t
        for j in range(4):
            r = KR + 16*t + 4*j
            c = "0" if j == 0 else f"v[{s}:{s+3}]"
            E(f"  v_mfma_f32_16x16x32_bf16 v[{s}:{s+3}], v[{r}:{r+3}], v[{QR+4*j}:{QR+4*j+3}], {c}")
        if t == 1: vload(2, KR)
        if t == 3: vload(3, KR+32)
    E("  s_nop 7")
    mx, t1, ls = M+8, M+9, M+10
    E(f"  v_max3_f32 v{mx}, v{SR}, v{SR+1}, v{SR+2}")
    i = 3
    while i < 32:
        if i + 1 < 32:
            E(f"  v_max3_f32 v{mx}, v{mx}, v{SR+i}, v{SR+i+1}"); i += 2
        else:
            E(f"  v_max_f32 v{mx}, v{mx}, v{SR+i}"); i += 1
    E(f"  v_mov_b32 v{t1}, v{mx}")
    E("  s_nop 1")
    E(f"  v_permlane16_swap_b32 v{mx}, v{t1}")
    E(f"  v_max_f32 v{mx}, v{mx}, v{t1}")
    E(f"  v_mov_b32 v{t1}, v{mx}")
    E("  s_nop 1")
    E(f"  v_permlane32_swap_b32 v{mx}, v{t1}")
    E(f"  v_max_f32 v{mx}, v{mx}, v{t1}")
    import math
    cval = (128 ** -0.5) * math.log2(math.e)
    import struct
    cbits = struct.unpack("<I", struct.pack("<f", cval))[0]
    E(f"  s_mov_b32 s46, {cbits:#x}")
    E(f"  v_mul_f32 v{mx}, s46, v{mx}")
    for i in range(32):
        E(f"  v_fma_f32 v{SR+i}, v{SR+i}, s46, -v{mx}")
    for i in range(32):
        E(f"  v_exp_f32 v{SR+i}, v{SR+i}")
    E("  s_nop 0")
    E(f"  v_add_f32 v{ls}, v{SR}, v{SR+1}")
    for i in range(2, 32):
        E(f"  v_add_f32 v{ls}, v{ls}, v{SR+i}")
    for t in range(4):
        for h in range(4):
            a = SR + 8*t + 2*h
            E(f"  v_cvt_pk_bf16_f32 v{QR+4*t+h}, v{a}, v{a+1}")
    E(f"  v_mov_b32 v{t1}, v{ls}")
    E("  s_nop 1")
    E(f"  v_permlane16_swap_b32 v{ls}, v{t1}")
    E(f"  v_add_f32 v{ls}, v{ls}, v{t1}")
    E(f"  v_mov_b32 v{t1}, v{ls}")
    E("  s_nop 1")
    E(f"  v_permlane32_swap_b32 v{ls}, v{t1}")
    E(f"  v_add_f32 v{ls}, v{ls}, v{t1}")
    ACC = KR + 64; T = KR + 96
    vbase = [VR, VR+32, KR, KR+32]
    for t in range(4):
        wait_for(f"v{t}")
        gemv_block(vbase[t], QR+4*t, T, ACC, 44, 45, first=(t == 0))
    E("  s_lshl_b32 s38, s16, 11")
    E(f"  v_lshlrev_b32 v{M+11}, 7, v{n}")
    E(f"  v_add_u32 v{M+11}, s38, v{M+11}")
    E(f"  v_cmp_gt_u32 vcc, 16, v{lane}")
    E("  s_nop 4")
    E("  s_and_saveexec_b64 s[40:41], vcc")
    for j in range(8):
        E(f"  ds_write_b128 v{M+11}, v[{ACC+4*j}:{ACC+4*j+3}] offset:{1024+16*j}")
    E("  s_mov_b64 exec, s[40:41]")
    E("  s_lshl_b32 s38, s16, 5")
    E(f"  v_lshlrev_b32 v{M+11}, 3, v{lane}")
    E(f"  v_add_u32 v{M+11}, s38, v{M+11}")
    E(f"  v_mov_b32 v{M+12}, v{mx}")
    E(f"  v_mov_b32 v{M+13}, v{ls}")
    E(f"  v_cmp_gt_u32 vcc, 4, v{lane}")
    E("  s_nop 1")
    E("  s_and_saveexec_b64 s[40:41], vcc")
    E(f"  ds_write_b64 v{M+11}, v[{M+12}:{M+13}] offset:17408")
    E("  s_mov_b64 exec, s[40:41]")
    E("  s_waitcnt lgkmcnt(0)")
    E("  s_barrier")
    E(f"  v_lshrrev_b32 v0, 7, v{tid}")
    E(f"  v_and_b32 v1, 127, v{tid}")
    E("  v_lshlrev_b32 v2, 3, v0")
    E("  v_lshlrev_b32 v3, 4, v1")
    E("  v_lshl_add_u32 v3, v0, 2, v3")
    for w in range(8):
        E(f"  ds_read_b64 v[{8+2*w}:{9+2*w}], v2 offset:{17408+32*w}")
    for w in range(8):
        E(f"  ds_read_b32 v{24+w}, v3 offset:{1024+2048*w}")
    E("  s_waitcnt lgkmcnt(0)")
    E("  v_max3_f32 v4, v8, v10, v12")
    E("  v_max3_f32 v4, v4, v14, v16")
    E("  v_max3_f32 v4, v4, v18, v20")
    E("  v_max_f32 v4, v4, v22")
    for w in range(8):
        E(f"  v_sub_f32 v{8+2*w}, v{8+2*w}, v4")
    for w in range(8):
        E(f"  v_exp_f32 v{8+2*w}, v{8+2*w}")
    E("  s_nop 0")
    E("  v_mul_f32 v5, v8, v9")
    E("  v_mul_f32 v6, v8, v24")
    for w in range(1, 8):
        E(f"  v_fmac_f32 v5, v{8+2*w}, v{9+2*w}")
        E(f"  v_fmac_f32 v6, v{8+2*w}, v{24+w}")
    E("  s_lshl_b32 s38, s2, 11")
    E(f"  s_add_u32 s38, s38, {AO:#x}")
    E(f"  v_lshlrev_b32 v7, 2, v{tid}")
    E("  buffer_store_dword v6, v7, s[28:31], s38 offen")
    E("  s_lshl_b32 s38, s2, 5")
    E(f"  s_add_u32 s38, s38, {AML:#x}")
    E("  v_cmp_eq_u32 vcc, 0, v1")
    E("  s_nop 1")
    E("  s_and_saveexec_b64 s[40:41], vcc")
    E("  buffer_store_dwordx2 v[4:5], v2, s[28:31], s38 offen")
    E("kB_end:")
    E("  s_endpgm")
    kdesc("kB_kernel", 256)

def kernelC():
    kstart("kC_kernel")
    E("  s_cmp_ge_u32 s2, 184")
    E("  s_cbranch_scc1 kC_end")
    E("  s_load_dwordx2 s[4:5], s[0:1], 32")
    E("  s_load_dwordx2 s[6:7], s[0:1], 64")
    E("  s_load_dwordx2 s[14:15], s[0:1], 96")
    E("  v_and_b32 v1, 63, v0")
    E("  v_lshrrev_b32 v2, 6, v0")
    E("  v_lshrrev_b32 v3, 4, v1")
    E("  v_readfirstlane_b32 s16, v2")
    E("  v_and_b32 v4, 15, v1")
    E("  s_mov_b32 s44, 0x05040100")
    E("  s_mov_b32 s45, 0x07060302")
    E("  s_lshr_b32 s17, s2, 2")
    E("  s_and_b32 s18, s2, 3")
    E("  s_waitcnt lgkmcnt(0)")
    srd(24, 14, WS_BYTES)
    E("  s_mov_b32 s30, 0x400000")
    E("  s_cmp_ge_u32 s17, 32")
    E("  s_cselect_b32 s28, s6, s4")
    E("  s_cselect_b32 s29, s7, s5")
    E("  s_cselect_b32 s30, 0x1c0000, s30")
    E("  s_cselect_b32 s33, 32, 0")
    E("  s_and_b32 s29, s29, 0xffff")
    E("  s_mov_b32 s31, 0x00020000")
    E("  s_sub_u32 s32, s17, s33")
    E("  s_lshl_b32 s34, s32, 17")
    E("  s_lshl_b32 s35, s16, 15")
    E("  s_add_u32 s34, s34, s35")
    E("  s_lshl_b32 s35, s18, 8")
    E("  s_add_u32 s34, s34, s35")
    E("  v_lshlrev_b32 v7, 13, v3")
    E("  v_lshl_add_u32 v7, v4, 4, v7")
    E("  s_add_u32 s35, s34, 4096")
    for kk in range(8):
        so = "s34" if kk < 4 else "s35"
        E(f"  buffer_load_dwordx4 v[{16+4*kk}:{19+4*kk}], v7, s[28:31], {so} offen offset:{1024*(kk&3)}")
    E("  v_mov_b32 v5, 0")
    E("  s_lshl_b32 s36, s16, 2")
    E(f"  s_add_u32 s36, s36, {GOFF:#x}")
    E("  buffer_load_dword v96, v5, s[24:27], s36 offen")
    E("  v_lshlrev_b32 v6, 3, v1")
    E("  s_cmp_ge_u32 s17, 32")
    E("  s_cbranch_scc1 kC_ffn")
    E("  s_lshr_b32 s36, s17, 2")
    E("  s_and_b32 s37, s17, 3")
    E("  s_lshl_b32 s38, s16, 3")
    E("  s_add_u32 s38, s38, s36")
    E("  s_lshl_b32 s38, s38, 5")
    E("  s_add_u32 s38, s38, s37")
    E("  s_lshl_b32 s39, s38, 9")
    E(f"  s_add_u32 s39, s39, {AO:#x}")
    E("  s_lshl_b32 s40, s38, 3")
    E(f"  s_add_u32 s40, s40, {AML:#x}")
    for s in range(8):
        E(f"  buffer_load_dwordx2 v[{64+2*s}:{65+2*s}], v6, s[24:27], s39 offen")
        E(f"  buffer_load_dwordx2 v[{80+2*s}:{81+2*s}], v5, s[24:27], s40 offen offset:{32*s}")
        if s < 7: E("  s_add_u32 s39, s39, 2048")
    E("  s_waitcnt vmcnt(0)")
    E("  v_max3_f32 v8, v80, v82, v84")
    E("  v_max3_f32 v8, v8, v86, v88")
    E("  v_max3_f32 v8, v8, v90, v92")
    E("  v_max_f32 v8, v8, v94")
    for s in range(8):
        E(f"  v_sub_f32 v{80+2*s}, v{80+2*s}, v8")
    for s in range(8):
        E(f"  v_exp_f32 v{80+2*s}, v{80+2*s}")
    E("  s_nop 0")
    E("  v_mul_f32 v9, v80, v81")
    E("  v_mul_f32 v10, v80, v64")
    E("  v_mul_f32 v11, v80, v65")
    for s in range(1, 8):
        E(f"  v_fmac_f32 v9, v{80+2*s}, v{81+2*s}")
        E(f"  v_fmac_f32 v10, v{80+2*s}, v{64+2*s}")
        E(f"  v_fmac_f32 v11, v{80+2*s}, v{65+2*s}")
    E("  v_rcp_f32 v9, v9")
    E("  s_nop 0")
    E("  v_mul_f32 v9, v9, v96")
    E("  v_mul_f32 v10, v10, v9")
    E("  v_mul_f32 v11, v11, v9")
    E("  s_branch kC_join")
    E("kC_ffn:")
    E("  s_mul_i32 s36, s16, 30720")
    E("  s_lshl_b32 s37, s32, 9")
    E("  s_add_u32 s36, s36, s37")
    E("  s_add_u32 s36, s36, 16384")
    E("  s_add_u32 s37, s36, 7168")
    for ks in range(4):
        E(f"  buffer_load_dwordx2 v[{64+2*ks}:{65+2*ks}], v6, s[24:27], s36 offen")
        E(f"  buffer_load_dwordx2 v[{72+2*ks}:{73+2*ks}], v6, s[24:27], s37 offen")
        if ks < 3:
            E("  s_add_u32 s36, s36, 122880")
            E("  s_add_u32 s37, s37, 122880")
    E("  s_waitcnt vmcnt(0)")
    for e in range(2):
        E(f"  v_add_f32 v{64+e}, v{64+e}, v{66+e}")
        E(f"  v_add_f32 v{68+e}, v{68+e}, v{70+e}")
        E(f"  v_add_f32 v{64+e}, v{64+e}, v{68+e}")
        E(f"  v_add_f32 v{72+e}, v{72+e}, v{74+e}")
        E(f"  v_add_f32 v{76+e}, v{76+e}, v{78+e}")
        E(f"  v_add_f32 v{72+e}, v{72+e}, v{76+e}")
        E(f"  v_mul_f32 v{64+e}, 0xbfb8aa3b, v{64+e}")
        E(f"  v_exp_f32 v{64+e}, v{64+e}")
        E("  s_nop 0")
        E(f"  v_add_f32 v{64+e}, 1.0, v{64+e}")
        E(f"  v_rcp_f32 v{64+e}, v{64+e}")
        E("  s_nop 0")
        E(f"  v_mul_f32 v{10+e}, v{64+e}, v{72+e}")
    E("  v_sub_f32 v9, 1.0, v96")
    E("  v_mul_f32 v10, v10, v9")
    E("  v_mul_f32 v11, v11, v9")
    E("kC_join:")
    E("  v_cvt_pk_bf16_f32 v10, v10, v11")
    E("  s_lshl_b32 s36, s16, 8")
    E("  v_lshlrev_b32 v6, 2, v1")
    E("  v_add_u32 v6, s36, v6")
    E("  ds_write_b32 v6, v10")
    E("  v_and_b32 v6, 3, v4")
    E("  v_lshlrev_b32 v6, 8, v6")
    E("  v_lshl_add_u32 v6, v3, 4, v6")
    E("  s_lshl_b32 s36, s16, 6")
    E("  v_add_u32 v6, s36, v6")
    E("  s_waitcnt lgkmcnt(0)")
    E("  s_barrier")
    E("  ds_read_b128 v[8:11], v6")
    E("  s_waitcnt lgkmcnt(0)")
    gemv_block(16, 8, 48, 64, 44, 45)
    E("  s_lshl_b32 s38, s16, 11")
    E("  v_lshlrev_b32 v5, 7, v4")
    E("  v_add_u32 v5, s38, v5")
    E("  v_cmp_gt_u32 vcc, 16, v1")
    E("  s_nop 4")
    E("  s_and_saveexec_b64 s[40:41], vcc")
    for j in range(8):
        E(f"  ds_write_b128 v5, v[{64+4*j}:{67+4*j}] offset:{1024+16*j}")
    E("  s_mov_b64 exec, s[40:41]")
    E("  s_waitcnt lgkmcnt(0)")
    E("  s_barrier")
    E("  v_lshlrev_b32 v5, 3, v0")
    for w in range(4):
        E(f"  ds_read_b64 v[{8+2*w}:{9+2*w}], v5 offset:{1024+2048*w}")
    E("  s_lshl_b32 s38, s17, 13")
    E("  s_lshl_b32 s39, s18, 9")
    E("  s_add_u32 s38, s38, s39")
    E(f"  s_add_u32 s38, s38, {CP:#x}")
    E("  v_and_b32 v6, 1, v0")
    E("  v_lshlrev_b32 v6, 12, v6")
    E("  v_lshrrev_b32 v7, 1, v0")
    E("  v_lshl_add_u32 v6, v7, 2, v6")
    E("  s_waitcnt lgkmcnt(0)")
    E("  v_add_f32 v8, v8, v10")
    E("  v_add_f32 v9, v9, v11")
    E("  v_add_f32 v12, v12, v14")
    E("  v_add_f32 v13, v13, v15")
    E("  v_add_f32 v8, v8, v12")
    E("  v_add_f32 v9, v9, v13")
    E("  buffer_store_dword v8, v6, s[24:27], s38 offen")
    E("  buffer_store_dword v9, v6, s[24:27], s38 offen offset:2048")
    E("kC_end:")
    E("  s_endpgm")
    kdesc("kC_kernel", 104)

def kernelD():
    kstart("kD_kernel")
    E("  s_cmp_ge_u32 s2, 16")
    E("  s_cbranch_scc1 kD_end")
    E("  s_load_dwordx2 s[4:5], s[0:1], 80")
    E("  s_load_dwordx2 s[14:15], s[0:1], 96")
    E("  v_and_b32 v1, 31, v0")
    E("  v_lshrrev_b32 v2, 5, v0")
    E("  v_lshlrev_b32 v3, 13, v2")
    E("  v_lshl_add_u32 v3, v1, 4, v3")
    E("  s_lshl_b32 s17, s2, 9")
    E(f"  s_add_u32 s17, s17, {CP:#x}")
    E("  s_waitcnt lgkmcnt(0)")
    srd(24, 14, CP + 46 * 8192)
    srd(20, 4, 4096)
    for i in range(6):
        E(f"  buffer_load_dwordx4 v[{8+4*i}:{11+4*i}], v3, s[24:27], s17 offen")
        if i < 5: E("  s_add_u32 s17, s17, 65536")
    E("  s_waitcnt vmcnt(0)")
    for i in range(1, 6):
        for e in range(4):
            E(f"  v_add_f32 v{8+e}, v{8+e}, v{8+4*i+e}")
    E("  v_lshlrev_b32 v4, 4, v0")
    E("  ds_write_b128 v4, v[8:11]")
    E("  s_waitcnt lgkmcnt(0)")
    E("  s_barrier")
    E("  v_cmp_gt_u32 vcc, 64, v0")
    E("  s_nop 1")
    E("  s_and_saveexec_b64 s[40:41], vcc")
    E("  s_cbranch_execz kD_end")
    E("  v_lshlrev_b32 v4, 3, v0")
    for p in range(8):
        E(f"  ds_read_b64 v[{8+2*p}:{9+2*p}], v4 offset:{512*p}")
    E("  s_waitcnt lgkmcnt(0)")
    for p in range(1, 8):
        E(f"  v_add_f32 v8, v8, v{8+2*p}")
        E(f"  v_add_f32 v9, v9, v{9+2*p}")
    E("  v_cvt_pk_bf16_f32 v8, v8, v9")
    E("  s_add_u32 s60, s14, 0x3f0000")
    E("  s_addc_u32 s61, s15, 0")
    E("  s_load_dword s62, s[60:61], 0")
    E("  s_waitcnt lgkmcnt(0)")
    E(f"  s_add_u32 s62, s62, {int(os.environ['XL'])}")
    E("L_xl:")
    E("  s_memrealtime s[64:65]")
    E("  s_waitcnt lgkmcnt(0)")
    E("  s_sub_u32 s63, s64, s62")
    E("  s_cmp_lt_i32 s63, 0")
    E("  s_cbranch_scc1 L_xl")
    E("  s_lshl_b32 s17, s2, 8")
    E("  v_lshlrev_b32 v4, 2, v0")
    E("  buffer_store_dword v8, v4, s[20:23], s17 offen")
    E("kD_end:")
    E("  s_endpgm")
    kdesc("kD_kernel", 32)

E(HEADER.rstrip())
E("; @launch kernel=kA_kernel grid=(241,1,1) block=(256,1,1) lds=8192")
E("; @launch kernel=kB_kernel grid=(256,1,1) block=(512,1,1) lds=17664")
E("; @launch kernel=kC_kernel grid=(184,1,1) block=(256,1,1) lds=9216")
E("; @launch kernel=kD_kernel grid=(16,1,1) block=(256,1,1) lds=4096")
E('.amdgcn_target "amdgcn-amd-amdhsa--gfx950"')
E(".text")
kernelA(); kernelB(); kernelC(); kernelD()
open(sys.argv[1], "w").write("\n".join(out) + "\n")
```
